```python
import torch

def _softmax(x, axis=-1):
    return torch.softmax(x, dim=axis)
def _gelu(x):
    return torch.nn.functional.gelu(x, approximate="tanh")
def _silu(x):
    return torch.nn.functional.silu(x)
def _sigmoid(x):
    return torch.sigmoid(x)
def _layernorm(x, axis=-1, eps=1e-5):
    m = x.mean(dim=axis, keepdim=True)
    v = x.var(dim=axis, keepdim=True, unbiased=False)
    return (x - m) / torch.sqrt(v + eps)
def _scatter_add(tgt, idx, src, axis=0):
    return tgt.clone().index_add_(axis, idx, src)
def _segment_sum(src, seg, n):
    out = torch.zeros((n,) + src.shape[1:], dtype=src.dtype)
    return out.index_add_(0, seg, src)
def _pad(x, pw):
    flat = tuple(v for pair in reversed(pw) for v in pair)
    return torch.nn.functional.pad(x, flat)

kernel_name = 'gated_mix__grouped_kv_mqa__dense_activation_gelu__prompt'

def setup_inputs():

    _w = (lambda a: (lambda t: t.to(torch.bfloat16) if t.is_floating_point() else t)(torch.as_tensor(a)))
    def _A_setup():
        B, S, D, H = 1, 2048, 576, 32
        Dh = D // H
        return {
            "x": _w((lambda *s: torch.randn(*s, dtype=torch.bfloat16) * 0.05)(B, S, D)),
            "wq": _w((lambda *s: torch.randn(*s, dtype=torch.bfloat16) * 0.8)(D, H * Dh)),
            "wk": _w((lambda *s: torch.randn(*s, dtype=torch.bfloat16) * 0.8)(D, Dh)),
            "wv": _w((lambda *s: torch.randn(*s, dtype=torch.bfloat16) * 0.05)(D, Dh)),
            "wo": _w((lambda *s: torch.randn(*s, dtype=torch.bfloat16) * 0.05)(H * Dh, D)),
        }
    _A_in = _A_setup()

    def _B_setup():
        B, S, D, F = 1, 2048, 576, 4608
        return {
            "x": _w((lambda *s: torch.randn(*s, dtype=torch.bfloat16) * 0.05)(B, S, D)),
            "w1": _w((lambda *s: torch.randn(*s, dtype=torch.bfloat16) * 3.2)(D, F) * (D ** -0.5)),
            "b1": _w((lambda *s: torch.randn(*s, dtype=torch.bfloat16) * 3.2)(F) * 0.01),
            "w2": _w((lambda *s: torch.randn(*s, dtype=torch.bfloat16) * 0.05)(F, D) * (F ** -0.5)),
            "b2": _w((lambda *s: torch.randn(*s, dtype=torch.bfloat16) * 0.1)(D) * 0.01),
        }
    _B_in = _B_setup()

    return {
        "A_x": _A_in["x"],
        "A_wq": _A_in["wq"],
        "A_wk": _A_in["wk"],
        "A_wv": _A_in["wv"],
        "A_wo": _A_in["wo"],
        "B_x": _B_in["x"],
        "B_w1": _B_in["w1"],
        "B_b1": _B_in["b1"],
        "B_w2": _B_in["w2"],
        "B_b2": _B_in["b2"],
        "gate_w": _w((lambda *s: torch.randn(*s, dtype=torch.bfloat16) * 0.05)(576) * 16.0),
    }

def reference(A_x, A_wq, A_wk, A_wv, A_wo, B_x, B_w1, B_b1, B_w2, B_b2, gate_w):
    def _A_ref(x, wq, wk, wv, wo):
        B, S, D = x.shape
        H = 32
        Dh = D // H
        q = (lambda x, *d: x.permute(*d))((x @ wq).reshape(B, S, H, Dh), 0, 2, 1, 3)
        k = x @ wk
        v = x @ wv
        scores = torch.einsum("bhqd,bkd->bhqk", q, k) * (Dh ** -0.5)
        p = _softmax(scores, axis=-1)
        o = torch.einsum("bhqk,bkd->bhqd", p, v)
        return (lambda x, *d: x.permute(*d))(o, 0, 2, 1, 3).reshape(B, S, H * Dh) @ wo

    def _B_ref(x, w1, b1, w2, b2):
        h = torch.einsum("bsd,df->bsf", x, w1) + b1
        h = _gelu(h)
        return torch.einsum("bsf,fd->bsd", h, w2) + b2

    x = A_x
    g = _sigmoid((x * gate_w).sum(-1, keepdims=True))
    a = _A_ref(x, A_wq, A_wk, A_wv, A_wo)
    b = _B_ref(x, B_w1, B_b1, B_w2, B_b2)
    return g * a + (1 - g) * b
```

```python
import re

TRANS = ("v_exp_f32", "v_rcp_f32", "v_log_f32", "v_rsq_f32", "v_sqrt_f32")

def regs_of(tok):
    tok = tok.strip()
    neg = tok.lstrip("-")
    m = re.match(r"^abs\((.*)\)$", neg)
    if m: neg = m.group(1)
    neg = neg.strip("|")
    m = re.match(r"^([vas])\[(\d+):(\d+)\]$", neg)
    if m: return [(m.group(1), i) for i in range(int(m.group(2)), int(m.group(3)) + 1)]
    m = re.match(r"^([vas])(\d+)$", neg)
    if m: return [(m.group(1), int(m.group(2)))]
    if neg == "vcc": return [("s", "vcc")]
    if neg == "m0": return [("s", "m0")]
    if neg == "exec": return [("s", "exec")]
    return []

class I:
    def __init__(self, text, opt=False, note=None):
        self.text = text.strip()
        self.opt = opt
        self.note = note
        self.parse()
    def parse(self):
        t = self.text.split(";")[0].strip()
        self.label = t.endswith(":")
        p = t.split(None, 1)
        self.mn = p[0] if p else ""
        rest = p[1] if len(p) > 1 else ""
        ops = [o.strip() for o in rest.split(",")] if rest else []
        mods = ""
        if ops:
            l = ops[-1].split()
            ops[-1] = l[0]; mods = " ".join(l[1:])
        self.ops = ops; self.mods = mods
        mn = self.mn
        R = lambda k: regs_of(ops[k]) if k < len(ops) else []
        allr = lambda a: [r for k in range(a, len(ops)) for r in R(k)]
        self.rd = []; self.wr = []; self.kind = "other"; self.cnt = None
        self.srcc = []
        if mn.startswith("v_mfma"):
            self.kind = "mfma"; self.wr = R(0); self.rd = allr(1); self.srcc = R(3); self.ab = R(1) + R(2)
            self.passes = 8 if "32x32" in mn else 4
        elif mn.startswith("v_smfmac"):
            self.kind = "mfma"; self.wr = R(0); self.rd = allr(0); self.srcc = R(0); self.ab = R(1) + R(2) + R(3)
            self.passes = 8 if "32x32" in mn else 4
        elif mn.startswith("v_"):
            self.kind = "trans" if mn.replace("_e32", "").replace("_e64", "") in TRANS else "valu"
            self.wr = R(0); self.rd = allr(1)
            if "swap" in mn: self.wr = R(0) + R(1); self.rd = R(0) + R(1)
            if mn.startswith(("v_fmac", "v_writelane", "v_dot2c")) or "dpp" in mn or "row_" in mods: self.rd = self.rd + R(0)
            if mn.startswith(("v_add_co", "v_addc_co")): self.wr = R(0) + R(1); self.rd = allr(2)
        elif mn.startswith("ds_read"):
            self.kind = "ds"; self.wr = R(0); self.rd = R(1); self.cnt = "lgkm"
        elif mn.startswith("ds_"):
            self.kind = "ds"; self.rd = allr(0); self.cnt = "lgkm"
        elif mn.startswith(("buffer_load", "global_load")):
            self.kind = "vmem"; self.cnt = "vm"
            if " lds" in " " + mods: self.rd = allr(0) + [("s", "m0")]; self.dma = True
            else:
                self.wr = R(0); self.rd = allr(1)
                if "d16" in mn: self.rd += R(0)
        elif mn.startswith(("buffer_store", "buffer_atomic", "global_store")):
            self.kind = "vmem"; self.cnt = "vm"; self.rd = allr(0); self.store = R(0)
            if "atomic" in mn and "sc0" in mods: self.wr = R(0)
        elif mn.startswith(("s_load", "s_memtime", "s_memrealtime")):
            self.kind = "smem"; self.cnt = "smem"; self.wr = R(0); self.rd = allr(1)
        elif mn.startswith("s_"):
            self.kind = "salu"
            if mn.startswith(("s_cmp", "s_cbranch", "s_branch", "s_nop", "s_barrier", "s_waitcnt", "s_sleep", "s_endpgm", "s_setprio", "s_bitcmp")):
                self.rd = allr(0)
            else:
                self.wr = R(0); self.rd = allr(1)
    def cost(self):
        if self.kind == "mfma":
            if "smfmac" in self.mn: return 12
            if "32x32x8" in self.mn: return 4
            return 8
        if self.kind == "trans": return 8
        if self.kind == "vmem": return 24 if "store_dwordx4" in self.mn else 8
        if self.mn == "ds_write_b128": return 16
        if self.label or not self.mn or self.mn[0] in ".;": return 0
        return 4

class W(I):
    def __init__(self, vm=(), lgkm=(), vm0=False, lgkm0=False):
        self.vm = [x for x in vm if x is not None]; self.lg = [x for x in lgkm if x is not None]
        self.vm0 = vm0; self.lgkm0 = lgkm0
        super().__init__("s_waitcnt ?")

def flat(x):
    for e in x:
        if e is None: continue
        if isinstance(e, (list, tuple)): yield from flat(e)
        elif isinstance(e, str):
            for l in e.split("\n"):
                if l.strip(): yield I(l)
        else: yield e

def resolve_waits(prog):
    pos = {id(x): n for n, x in enumerate(prog)}
    for n, x in enumerate(prog):
        if not isinstance(x, W): continue
        parts = []
        for cnt, ops, zero, name, mx in (("vm", x.vm, x.vm0, "vmcnt", 63), ("lgkm", x.lg, x.lgkm0, "lgkmcnt", 15)):
            if zero: parts.append(f"{name}(0)"); continue
            if not ops: continue
            for o in ops:
                assert id(o) in pos, f"wait target not in program: {o.text}"
                assert pos[id(o)] < n, f"wait target after wait: {o.text}"
            last = max(pos[id(o)] for o in ops)
            N = sum(1 for y in prog[last + 1:n] if y.cnt == cnt and not y.opt)
            if cnt == "lgkm":
                sm = False
                for y in prog[max(0, last - 200):n]:
                    if y.cnt == "smem": sm = True
                    if y.mn == "s_waitcnt" and "lgkmcnt(0)" in y.text: sm = False
                assert not sm, "smem mixed in counted lgkm wait"
            parts.append(f"{name}({min(N, mx)})")
        assert parts
        x.text = "s_waitcnt " + " ".join(parts); x.parse()

def check(prog, fix=True, verbose=True):
    out = []; nfix = 0; errs = []
    pend = {"vm": [], "lgkm": [], "smem": []}
    hist = []
    lastw = {}; scc = None; m0used = True
    st = 0
    for x in prog:
        if x.label or not x.mn or x.mn[0] in ".;":
            out.append(x); continue
        need = 0; why = None
        rd = set(x.rd); wr = set(x.wr)
        def req(p_st, n, w):
            nonlocal need, why
            d = n - (st - p_st - 1)
            if d > need: need = d; why = w
        for p_st, p in hist[-24:]:
            pw = set(p.wr)
            if p.kind == "mfma":
                big = 12 if p.passes == 8 else 8
                if x.kind == "mfma":
                    if pw & set(x.ab): req(p_st, big, ("mfma->AB", p))
                    sc = set(x.srcc)
                    if pw & sc and not (pw == sc and p.passes == x.passes): req(p_st, big - 2, ("mfma->C overlap", p))
                    if pw & wr and not (pw == wr and p.passes == x.passes): req(p_st, big - 2, ("mfma WAW", p))
                elif x.kind in ("valu", "trans", "ds", "vmem"):
                    if pw & (rd | wr): req(p_st, big, ("mfma->use", p))
                    if x.kind in ("valu", "trans") and set(p.srcc) & wr: req(p_st, 7 if p.passes == 8 else 3, ("mfma C WAR", p))
                    if x.kind in ("ds", "vmem") and set(p.srcc) & wr: req(p_st, 7 if p.passes == 8 else 3, ("mfma C WAR(load)", p))
            if p.kind in ("valu", "trans"):
                pv = {r for r in pw if r[0] != "s"}; ps = {r for r in pw if r[0] == "s"}
                if x.kind == "mfma" and pv & rd: req(p_st, 2, ("valu->mfma", p))
                if x.kind in ("valu", "trans"):
                    if p.kind == "trans" and pv & rd: req(p_st, 1, ("trans->valu", p))
                    if ("permlane" in x.mn or "dpp" in x.mn or "row_" in x.mods) and pv & rd: req(p_st, 2, ("valu->perm/dpp", p))
                    if x.mn.startswith(("v_readfirstlane", "v_readlane")) and pv & rd: req(p_st, 1, ("valu->readlane", p))
                    if ps & rd: req(p_st, 2, ("valu sgpr->valu", p))
                if x.kind == "vmem" and ps & rd: req(p_st, 5, ("valu sgpr->vmem", p))
                if x.kind in ("ds", "vmem") and p.kind == "trans" and pv & rd: req(p_st, 1, ("trans->mem", p))
                if x.kind == "salu" and ps & rd: req(p_st, 1, ("valu sgpr->salu", p))
                if x.mn.startswith("s_cbranch_vcc") and ("s", "vcc") in ps: req(p_st, 1, ("vcc->branch", p))
            if p.kind == "vmem" and hasattr(p, "store") and len(p.store) >= 3 and set(p.store) & wr:
                req(p_st, 2, ("store WAR", p))
            if p.kind == "salu" and ("s", "m0") in pw and getattr(x, "dma", False): req(p_st, 1, ("m0->dma", p))
        if need > 0:
            nfix += 1
            if verbose: print(f"  [nop {need}] {why[0]}: {why[1].text}  ->  {x.text}")
            assert fix
            n = need
            while n > 0:
                k = min(n, 16); out.append(I(f"s_nop {k-1}")); st += k; n -= k
        if x.mn.startswith(("s_cselect", "s_cbranch_scc")):
            if not (scc and scc.mn.startswith(("s_cmp", "s_bitcmp", "s_sub_u32"))): errs.append(f"scc clobbered by {scc.text if scc else None} before {x.text}")
        if x.kind == "salu" and not x.mn.startswith(("s_mov", "s_cselect", "s_mul_i32", "s_nop", "s_waitcnt", "s_barrier", "s_cbranch", "s_branch", "s_sleep", "s_getpc", "s_setprio")): scc = x
        if getattr(x, "dma", False):
            if m0used: errs.append(f"dma without fresh m0: {x.text}")
            m0used = True
        if ("s", "m0") in x.wr:
            if not m0used: errs.append(f"m0 overwritten unused: {x.text}")
            m0used = False
        for dpi in getattr(x, "deps", []):
            if lastw.get(dpi.wr[0]) is not dpi: errs.append(f"dep broken: {x.text} expects {dpi.text}, has {lastw.get(dpi.wr[0]).text if lastw.get(dpi.wr[0]) else None}")
        for r in x.wr: lastw[r] = x
        for c in pend:
            for p in pend[c]:
                if set(p.wr) & (rd | wr):
                    if c == p.cnt == x.cnt and not (set(p.wr) & rd) and c != "smem": continue
                    errs.append(f"uncovered {c}: {p.text}  ->  {x.text}")
        if x.mn == "s_waitcnt":
            m = re.search(r"vmcnt\((\d+)\)", x.text)
            if m:
                n = int(m.group(1)); q = pend["vm"]
                keep = []; c = 0
                for p in reversed(q):
                    if c >= n: break
                    keep.append(p)
                    if not p.opt: c += 1
                pend["vm"] = keep[::-1]
            m = re.search(r"lgkmcnt\((\d+)\)", x.text)
            if m:
                n = int(m.group(1))
                pend["lgkm"] = pend["lgkm"][len(pend["lgkm"]) - n:] if n and n < len(pend["lgkm"]) else ([] if n == 0 else pend["lgkm"])
                if n == 0: pend["smem"] = []
        if x.cnt: pend[x.cnt].append(x)
        if len([p for p in pend["vm"]]) > 63: errs.append(f"vmcnt overflow at {x.text}")
        out.append(x); hist.append((st, x))
        if x.mn == "s_nop": st += int(x.ops[0]) + 1
        else: st += 1
    for e in errs[:30]: print("ERROR", e)
    assert not errs, f"{len(errs)} errors"
    return out

def spread(slots, fill, s0, s1, pipe):
    fill = list(flat(fill))
    if not fill: return
    def used(sl):
        c = 0
        for k, y in enumerate(sl):
            if k == 1 and y.kind == "salu" and sl[0].cost() >= 8: continue
            c += y.cost()
        return c
    free = [max(pipe - used(slots[k]), 1) for k in range(s0, s1)]
    tot = sum(y.cost() for y in fill); F = sum(free)
    if tot > F:
        extra = (tot - F) / len(free); free = [f + extra for f in free]; F = sum(free)
    acc = 0.0; done = 0; n = 0
    for k in range(s0, s1):
        acc += free[k - s0] * tot / F
        while n < len(fill) and (done + fill[n].cost() / 2 <= acc or k == s1 - 1 or fill[n].mn.startswith("s_cselect")):
            slots[k].append(fill[n]); done += fill[n].cost(); n += 1

def render(prog):
    o = []
    for x in prog:
        o.append(x.text if x.label or x.text.startswith(".") else "    " + x.text)
    return "\n".join(o) + "\n"

def link(pairs):
    cur = {}
    out = []
    for pre, op in pairs:
        pre = list(flat([pre]))
        for y in pre:
            for r in y.wr:
                if r[0] == "s": cur[r] = y
        if isinstance(op, I): op.deps = [cur[r] for r in op.rd if r in cur]
        out.append([pre, op])
    return out
```

```python
import sys, math, struct, os
from asm import *

NAME = "gated_mix__grouped_kv_mqa__dense_activation_gelu__prompt"
OPT = dict(stamps=0, force_fb=0, spin=1 << 18)
for a in sys.argv[2:]:
    k, v = a.split("="); OPT[k] = int(v)

def f2u(x): return struct.unpack("<I", struct.pack("<f", x))[0]
def v(a, n=1): return f"v{a}" if n == 1 else f"v[{a}:{a+n-1}]"
def a_(a, n=1): return f"a{a}" if n == 1 else f"a[{a}:{a+n-1}]"
def rg(r, off=0, n=1):
    return (v if r[0] == "v" else a_)(r[1] + off, n)

WS_KV = 0; CH = 9472; DC = 2 * CH
WS_G = 0x28000
WS_PF = 0x30000
WS_OF = 0x50000
WS_ST = 0x70000
WS_O = 0x80000
WS_P = 0x400000; R = 73728
OOB = 0x40000000
WR = 11296; SLOT = 4 * WR; TOP = 3 * SLOT
BIAS = TOP; TMP = TOP + 2048
KVS = [TOP, TOP - 2 * 20480, TOP - 20480]; KVB = TOP - 2 * 20480
WOR = 20768
LDS_BYTES = 163840
SX, SW1, SWQ, SEX, SW2, SWO, SWS, SOUT, SB1, SB2, SGW, SDBG = [f"s[{4+4*k}:{7+4*k}]" for k in range(12)]
sI, sJ, sW, sWB = "s56", "s57", "s58", "s59"
sO1, sOQ, sOE, sOM, sXT = "s64", "s65", "s66", "s67", "s68"
sGB, sQS, sWKV, sWWO, sSP = "s70", "s71", "s72", "s73", "s74"
sTH, sCG, sOS, sOL = "s75", "s76", "s77", "s78"
vL = 0
vR2, vW2, vHW, vHR, vGA, vPOLL, vKVD, vSIG, vONE = 1, 2, 3, 4, 5, 6, 7, 8, 9
vPS0, vPS1, vFLG = 10, 11, 12
vIDX, vG1, vTMP = 13, 14, 15
HOWN = [16, 24]; GT = 32
ACCV = 48
PROJ = 48; XR = 72; WRING = 120; GATE = 152
vW1, vWQ, vWQT, vEX, vX, vR1a, vR1b, vR1xa, vR1xb, vTID, vBI = range(176, 187)
vPW, vPW2, vPQ, vPV, vS1, vS2, vS3, vQF, vT0, vT1, vT2 = range(187, 198)
AW = 192; AHP = [208, 216]; AQ = 224; AQR = 232

def hp(ft, T):
    s, k = divmod(ft, 2)
    base = ("v", 224 + 16 * s) if s < 2 else ("a", 16 * (s - 2))
    return (base[0], base[1] + 8 * k + 4 * T)
ORD = [(t, o) for t in range(9) for o in range(2)]
ATILES = ORD[6:11]
def acc2(t, o):
    n = ORD.index((t, o))
    if (t, o) in ATILES: return ("a", 112 + 16 * (n - 6))
    return ("v", ACCV + 16 * (n if n < 6 else n - 5))
def packed(t, o): return ACCV + 8 * ORD.index((t, o))

P = []
OUTL = []
def em(*x): P.extend(flat(x))
nst = [0]
def stamp():
    if not OPT["stamps"]: return []
    k = nst[0]; nst[0] += 1
    return [f"s_memrealtime s[80:81]", "s_waitcnt lgkmcnt(0)", f"s_mov_b32 s{84+k}, s80"]

def srd_consts():
    sizes = {4: 2359296, 8: 5308416, 12: 663552, 16: 20736, 20: 5308416, 24: 663552, 28: 268435456, 32: 2359296, 36: 9216, 40: 1152, 44: 1152, 48: 256}
    return [f"s_mov_b32 s{b+2}, {n}\ns_mov_b32 s{b+3}, 0x20000" for b, n in sizes.items()]

em(f"""
s_cmp_ge_u32 s2, 256
s_cbranch_scc1 L_end
s_load_dwordx2 s[8:9], s[0:1], 48
s_load_dwordx2 s[4:5], s[0:1], 0
s_load_dwordx2 s[12:13], s[0:1], 8
s_load_dwordx4 s[52:55], s[0:1], 16
s_load_dwordx2 s[36:37], s[0:1], 56
s_load_dwordx2 s[20:21], s[0:1], 64
s_load_dwordx2 s[24:25], s[0:1], 32
s_load_dwordx2 s[28:29], s[0:1], 104
s_load_dwordx2 s[32:33], s[0:1], 88
s_load_dwordx2 s[40:41], s[0:1], 72
s_load_dwordx2 s[44:45], s[0:1], 80
s_load_dwordx2 s[48:49], s[0:1], 96
s_getpc_b64 s[60:61]
L_pc:
v_lshlrev_b32 v1, 7, v0
v_min_u32 v2, L_codeend-L_pc-4, v1
""")
pf0 = I("global_load_dword v3, v2, s[60:61]")
em(pf0, f"""
v_add_u32 v1, 0x8000, v1
v_min_u32 v2, L_codeend-L_pc-4, v1
""")
pf1 = I("global_load_dword v4, v2, s[60:61]")
em(pf1, f"""
v_lshrrev_b32 v1, 6, v0
v_mov_b32 v{vTID}, v0
v_readfirstlane_b32 {sW}, v1
v_and_b32 v0, 63, v0
s_and_b32 {sI}, s2, 1
s_lshl_b32 {sI}, {sI}, 3
s_bfe_u32 s62, s2, 0x30003
s_add_u32 {sI}, {sI}, s62
s_bfe_u32 {sJ}, s2, 0x20001
s_lshl_b32 {sJ}, {sJ}, 2
s_lshr_b32 s62, s2, 6
s_add_u32 {sJ}, {sJ}, s62
s_mul_i32 {sWB}, {sW}, {WR}
""", srd_consts(), f"""
v_lshrrev_b32 v1, 2, v{vTID}
v_and_b32 v2, 3, v{vTID}
s_mul_i32 s62, {sJ}, 576
v_mul_u32_u24 v{vW1}, 9216, v1
v_lshl_add_u32 v{vW1}, v2, 4, v{vW1}
v_add_u32 v{vW1}, s62, v{vW1}
v_lshl_add_u32 v{vBI}, v{vTID}, 1, s62
s_mul_i32 s62, {sJ}, 72
v_mul_u32_u24 v5, 1152, v1
v_add_u32 v5, s62, v5
v_lshl_add_u32 v{vWQ}, v2, 4, v5
v_lshl_add_u32 v{vWQT}, v2, 2, v5
v_add_u32 v{vWQT}, 56, v{vWQT}
s_and_b32 s62, {sJ}, 1
s_lshl_b32 s62, s62, 4
s_cmp_ge_u32 {sJ}, 4
s_cselect_b32 s62, 20, s62
v_mul_u32_u24 v5, 36, v1
v_lshl_add_u32 v5, v2, 2, v5
v_add_u32 v{vEX}, s62, v5
s_lshl_b32 s62, {sI}, 2
s_add_u32 s62, s62, {sW}
s_mul_i32 s62, s62, {32*1152}
v_and_b32 v1, 15, v0
v_lshrrev_b32 v2, 4, v0
v_mul_u32_u24 v5, 1152, v1
v_lshl_add_u32 v5, v2, 5, v5
v_add_u32 v{vX}, s62, v5
s_mov_b32 {sXT}, {16*1152}
s_lshr_b32 s62, 0x2c, {sJ}
s_waitcnt lgkmcnt(0)
s_bitcmp1_b32 s62, 0
s_cselect_b32 s16, s54, s52
s_cselect_b32 s17, s55, s53
""")
em(stamp())
bl0 = I(f"buffer_load_ushort v6, v{vBI}, {SB1}, 0 offen"); bl1 = I(f"buffer_load_ushort v7, v{vBI}, {SB1}, 0 offen offset:512")
em(bl0, bl1)

def p1_loads(c):
    sl = (c % 3) * SLOT; o = []
    def x(T, s):
        return I(f"buffer_load_dwordx4 {v(XR + 16*(c%3) + 8*T + 4*s, 4)}, v{vX}, {SX}, {sXT if T else 0} offen offset:{128*c + 16*s}")
    o.append([I(f"s_mov_b32 {sO1}, {c*64*9216}"), x(0, 0)])
    o.append([I(f"s_mov_b32 {sOQ}, {c*64*1152}"), x(0, 1)])
    o.append([I(f"s_mov_b32 {sOE}, {c*64*36}"), x(1, 0)])
    o.append([None, x(1, 1)])
    for n in range(9):
        o.append([I(f"s_add_u32 m0, {sWB}, {sl + 960*n}"), I(f"buffer_load_dwordx4 v{vW1}, {SW1}, {sO1} offen offset:{64*n} lds")])
    o.append([I(f"s_add_u32 m0, {sWB}, {sl + 9216}"), I(f"buffer_load_dwordx4 v{vWQ}, {SWQ}, {sOQ} offen lds")])
    o.append([I(f"s_add_u32 m0, {sWB}, {sl + 10240}"), I(f"buffer_load_dword v{vWQT}, {SWQ}, {sOQ} offen lds")])
    o.append([I(f"s_add_u32 m0, {sWB}, {sl + 10496}"), I(f"buffer_load_dword v{vEX}, {SEX}, {sOE} offen lds")])
    return o
def p2_loads(s):
    sl = (s % 3) * SLOT; o = []
    for n in range(9):
        pre = [I(f"s_add_u32 m0, {sWB}, {sl + 896*n}")]
        if n == 0: pre = [I(f"s_mov_b32 {sO1}, {s*36864}")] + pre
        o.append([pre, I(f"buffer_load_dwordx4 v{vW2}, {SW2}, {sO1} offen offset:{128*n} lds")])
    return o
LOADS = [link(p1_loads(c)) for c in range(9)] + [link(p2_loads(s)) for s in range(9)]
def last(c): return LOADS[c][-1][1]

em(LOADS[0])
em(f"""
v_bfe_u32 v5, v0, 2, 2
v_and_b32 v1, 3, v0
v_mul_u32_u24 v{vR1a}, {WR}, v2
v_lshl_add_u32 v{vR1xa}, v5, 4, v{vR1a}
v_lshl_add_u32 v{vR1a}, v5, 6, v{vR1a}
v_lshl_add_u32 v{vR1a}, v1, 3, v{vR1a}
v_add_u32 v{vR1b}, {2*SLOT}, v{vR1a}
v_lshrrev_b32 v5, 1, v1
v_and_b32 v1, 1, v1
v_lshl_add_u32 v{vR1xa}, v5, 8, v{vR1xa}
v_lshl_add_u32 v{vR1xa}, v1, 3, v{vR1xa}
v_add_u32 v{vR1xa}, 10240, v{vR1xa}
v_add_u32 v{vR1xb}, {2*SLOT}, v{vR1xa}
v_lshlrev_b32 v5, 2, v{vTID}
v_add_u32 v5, {BIAS}, v5
v_lshlrev_b32 v2, 4, v2
v_add_u32 v2, {BIAS}, v2
""", W(vm=[bl1]), f"""
v_lshlrev_b32 v6, 16, v6
v_lshlrev_b32 v7, 16, v7
ds_write_b32 v5, v6
ds_write_b32 v5, v7 offset:1024
s_waitcnt lgkmcnt(0)
s_barrier
""")
for ft in range(18):
    em(f"ds_read_b128 {rg(hp(ft, 0), 0, 4)}, v2 offset:{64*ft}")
    if ft == 8: em(W(lgkm0=True))
em(LOADS[1])
em(W(vm=[last(0)], lgkm0=True), "s_barrier", stamp())

def p1_reads(c, t):
    sl = c % 3; ring = WRING + 8 * ((21 * c + t) % 4); o = []
    for s in range(2):
        for rho in range(2):
            if t < 20:
                ad = vR1a if sl < 2 else vR1b
                off = (sl % 2) * SLOT + 1024 * (t // 2) + 512 * s + 256 * rho + 32 * (t % 2)
            else:
                ad = vR1xa if sl < 2 else vR1xb
                off = (sl % 2) * SLOT + 128 * s + 64 * rho
            o.append(I(f"ds_read_b64_tr_b16 {v(ring + 4*s + 2*rho, 2)}, v{ad} offset:{off}"))
    return o
def p1_acc(t, T): return hp(t, T) if t < 18 else ("v", PROJ + 8 * (t - 18) + 4 * T)
RD = {(c, t): p1_reads(c, t) for c in range(9) for t in range(21)}

def p2_reads(s, t):
    o = []
    for k in range(2):
        for rho in range(2):
            o.append(I(f"ds_read_b64_tr_b16 {a_(AW + 8*((9*s+t)%2) + 4*k + 2*rho, 2)}, v{vR2} offset:{2*WR*k + 512*t + 256*rho}"))
    return o
RD2 = {(s, t): p2_reads(s, t) for s in range(9) for t in range(9)}

gl = [I(f"buffer_load_dwordx4 {v(GATE,4)}, v{vT0}, {SX}, 0 offen"), I(f"buffer_load_dwordx4 {v(GATE+4,4)}, v{vT0}, {SX}, 0 offen offset:16"),
      I(f"buffer_load_dword v{GATE+8}, v{vT0}, {SX}, 0 offen offset:32"),
      I(f"buffer_load_dwordx4 {v(GATE+10,4)}, v{vT1}, {SGW}, 0 offen"), I(f"buffer_load_dwordx4 {v(GATE+14,4)}, v{vT1}, {SGW}, 0 offen offset:16"),
      I(f"buffer_load_dword v{GATE+18}, v{vT1}, {SGW}, 0 offen offset:32")]
fill_c0 = f"""
s_lshl_b32 s62, {sI}, 4
s_add_u32 s62, s62, {sJ}
s_lshl_b32 s63, s62, 3
v_lshrrev_b32 v{vT2}, 5, v{vTID}
v_add_u32 v{vT2}, s63, v{vT2}
v_and_b32 v{vT1}, 31, v0
v_mul_u32_u24 v{vT1}, 36, v{vT1}
v_mul_u32_u24 v{vT0}, 1152, v{vT2}
v_add_u32 v{vT0}, v{vT0}, v{vT1}
s_lshl_b32 s62, s62, 2
s_add_u32 s62, s62, {sW}
s_lshl_b32 s62, s62, 7
s_add_u32 s62, s62, {WS_PF}
v_mov_b32 v{vFLG}, {OOB}
v_mov_b32 v{vONE}, 0
v_writelane_b32 v{vFLG}, s62, 0
"""
clr = [I(f"buffer_store_dword v{vONE}, v{vFLG}, {SWS}, 0 offen sc1"), I(f"buffer_store_dword v{vONE}, v{vFLG}, {SWS}, {sOM} offen sc1")]
g_acc = GATE + 9; g0, g1, g2, g3 = GATE + 19, GATE + 20, GATE + 21, GATE + 22
gate_math = [f"v_mov_b32 v{g_acc}, 0"]
for d in range(9):
    xx = GATE + d; ww = GATE + 10 + d
    gate_math += [f"v_lshlrev_b32 v{g0}, 16, v{xx}", f"v_lshlrev_b32 v{g1}, 16, v{ww}", f"v_and_b32 v{g2}, 0xffff0000, v{xx}", f"v_and_b32 v{g3}, 0xffff0000, v{ww}",
                  f"v_fmac_f32 v{g_acc}, v{g0}, v{g1}", f"v_fmac_f32 v{g_acc}, v{g2}, v{g3}"]
pad2 = lambda a, b: [a, b]
gate_red = [
    f"v_lshlrev_b32 v{vT2}, 2, v{vT2}", f"v_add_u32 v{vT2}, {WS_G}, v{vT2}",
    f"v_add_f32_dpp v{g_acc}, v{g_acc}, v{g_acc} row_shr:1 row_mask:0xf bank_mask:0xf bound_ctrl:1",
    f"v_and_b32 v{g0}, 31, v0", f"v_cmp_eq_u32 vcc, 31, v{g0}",
    f"v_add_f32_dpp v{g_acc}, v{g_acc}, v{g_acc} row_shr:2 row_mask:0xf bank_mask:0xf bound_ctrl:1",
    f"v_mov_b32 v{g1}, {OOB}", f"v_mov_b32 v{vGA}, {hex(f2u(-2*math.sqrt(2/math.pi)*math.log2(math.e)))}",
    f"v_add_f32_dpp v{g_acc}, v{g_acc}, v{g_acc} row_shr:4 row_mask:0xf bank_mask:0xf bound_ctrl:1",
    f"v_cndmask_b32 v{vT2}, v{g1}, v{vT2}, vcc", f"v_mov_b32 v{vIDX}, 0xdddddddd",
    f"v_add_f32_dpp v{g_acc}, v{g_acc}, v{g_acc} row_shr:8 row_mask:0xf bank_mask:0xf bound_ctrl:1",
    f"v_mov_b32 v{vONE}, 1", f"v_lshlrev_b32 v{vSIG}, 8, v{vTID}",
    f"v_add_f32_dpp v{g_acc}, v{g_acc}, v{g_acc} row_bcast:15 row_mask:0xa bank_mask:0xf",
    f"v_mul_f32 v{g_acc}, {hex(f2u(-math.log2(math.e)))}, v{g_acc}",
    f"v_exp_f32 v{g_acc}, v{g_acc}", f"s_mov_b32 {sGB}, {hex(f2u(-2*math.sqrt(2/math.pi)*math.log2(math.e)*0.044715))}",
    f"v_add_f32 v{g_acc}, 1.0, v{g_acc}", f"v_rcp_f32 v{g_acc}, v{g_acc}", f"s_mov_b32 {sQS}, {hex(f2u(math.log2(math.e)/math.sqrt(18)))}"]
gst = I(f"buffer_store_dword v{g_acc}, v{vT2}, {SWS}, 0 offen sc1")
fill_p2 = f"""
s_mul_i32 s62, {sJ}, 288
s_lshl_b32 s63, {sW}, 3
s_add_u32 s62, s62, s63
v_bfe_u32 v{vT0}, v0, 2, 3
v_add_u32 v{vT0}, s62, v{vT0}
v_mul_u32_u24 v{vW2}, 1152, v{vT0}
v_lshrrev_b32 v{vT1}, 5, v0
v_lshl_add_u32 v{vW2}, v{vT1}, 6, v{vW2}
v_and_b32 v{vT0}, 3, v0
v_lshl_add_u32 v{vW2}, v{vT0}, 4, v{vW2}
s_and_b32 s62, {sW}, 1
s_mul_i32 s62, s62, 4608
v_mul_u32_u24 v{vR2}, {WR}, v{vT1}
v_add_u32 v{vR2}, s62, v{vR2}
v_bfe_u32 v{vT0}, v0, 2, 2
v_lshl_add_u32 v{vR2}, v{vT0}, 6, v{vR2}
v_bfe_u32 v{vT0}, v0, 4, 1
v_lshl_add_u32 v{vR2}, v{vT0}, 5, v{vR2}
v_and_b32 v{vT0}, 1, v0
v_lshl_add_u32 v{vR2}, v{vT0}, 4, v{vR2}
v_bfe_u32 v{vT0}, v0, 1, 1
v_lshl_add_u32 v{vR2}, v{vT0}, 3, v{vR2}
s_add_u32 s62, {sWB}, 9216
v_lshl_add_u32 v{vHW}, v0, 4, s62
s_xor_b32 s62, {sW}, 1
s_mul_i32 s62, s62, {WR}
s_add_u32 s62, s62, 9216
v_lshl_add_u32 v{vHR}, v0, 4, s62
"""
fill_pe = f"""
s_mul_i32 s62, {sW}, 3072
s_add_u32 s62, s62, {TMP}
v_and_b32 v{vT0}, 15, v0
v_lshrrev_b32 v{vT1}, 4, v0
v_mul_u32_u24 v{vPW2}, 96, v{vT0}
v_add_u32 v{vPW2}, s62, v{vPW2}
v_lshl_add_u32 v{vPW}, v{vT1}, 3, v{vPW2}
v_cmp_gt_u32 vcc, 32, v0
v_xor_b32 v{vT2}, 1, v{vT1}
v_mov_b32 v{vQF}, {sQS}
v_cndmask_b32 v{vT2}, v{vT1}, v{vT2}, vcc
v_cndmask_b32 v{vQF}, 1.0, v{vQF}, vcc
v_lshl_add_u32 v{vPW2}, v{vT2}, 3, v{vPW2}
v_and_b32 v{vT2}, 31, v0
v_mul_u32_u24 v{vPQ}, 96, v{vT2}
v_add_u32 v{vPQ}, s62, v{vPQ}
v_bfe_u32 v{vPV}, v0, 2, 2
v_lshl_add_u32 v{vPV}, v{vT1}, 3, v{vPV}
v_mul_u32_u24 v{vPV}, 96, v{vPV}
v_and_b32 v{vS1}, 3, v0
v_lshl_add_u32 v{vPV}, v{vS1}, 3, v{vPV}
v_add_u32 v{vPV}, s62, v{vPV}
s_mul_i32 s60, {sI}, {CH}
s_lshl_b32 s62, {sW}, 10
s_lshl_b32 s63, {sJ}, 9
s_add_u32 s62, s62, s63
s_add_u32 s62, s62, s60
s_cmp_lt_u32 {sJ}, 2
s_cselect_b32 s62, s62, {OOB}
v_lshl_add_u32 v{vS1}, v{vT2}, 4, s62
s_lshr_b32 s62, {sW}, 1
s_lshl_b32 s62, s62, 8
s_and_b32 s63, {sW}, 1
s_lshl_b32 s63, s63, 2
s_add_u32 s62, s62, s63
s_add_u32 s62, s62, s60
s_add_u32 s62, s62, 4096
s_cmp_eq_u32 {sJ}, 4
s_cselect_b32 s62, s62, {OOB}
v_lshl_add_u32 v{vS2}, v{vT2}, 3, s62
v_mov_b32 v{vT2}, {OOB}
v_cndmask_b32 v{vS1}, v{vT2}, v{vS1}, vcc
v_cndmask_b32 v{vS2}, v{vT2}, v{vS2}, vcc
s_mul_i32 s62, {sW}, 1216
s_add_u32 s62, s62, s60
s_add_u32 s62, s62, {4608 - 128}
s_cmp_eq_u32 {sJ}, 3
s_cselect_b32 s63, 128, 0
s_cmp_eq_u32 {sJ}, 5
s_cselect_b32 s63, 160, s63
s_cselect_b32 s61, 13, 8
s_cselect_b32 s69, 13, 99
s_add_u32 s62, s62, s63
s_lshr_b32 s63, 0x2c, {sJ}
s_bitcmp1_b32 s63, 0
s_cselect_b32 s61, s61, 99
v_mul_u32_u24 v{vS3}, 304, v{vT1}
v_lshl_add_u32 v{vS3}, v{vT0}, 4, v{vS3}
v_add_u32 v{vS3}, s62, v{vS3}
v_cmp_eq_u32 s[82:83], s69, v{vT0}
v_add_u32 v{vT1}, 48, v{vS3}
v_cmp_le_u32 vcc, s61, v{vT0}
v_cndmask_b32 v{vS3}, v{vS3}, v{vT1}, s[82:83]
v_mov_b32 v{vT0}, 0x3f803f80
v_cndmask_b32 v{vS3}, v{vT2}, v{vS3}, vcc
"""
fill_at = f"""
v_lshlrev_b32 v{vKVD}, 4, v{vTID}
s_lshl_b32 {sWKV}, {sW}, 10
s_mul_i32 {sWWO}, {sW}, {WOR}
s_lshr_b32 {sTH}, {sJ}, 3
s_and_b32 {sCG}, {sJ}, 7
s_lshr_b32 s62, {sW}, 1
s_lshl_b32 s63, {sI}, 1
s_add_u32 s62, s62, s63
s_lshl_b32 s62, s62, 4
s_add_u32 s62, s62, {sJ}
s_mul_i32 s62, s62, {R}
s_and_b32 s63, {sW}, 1
s_mul_i32 s63, s63, {36864 + 512}
s_add_u32 s62, s62, s63
s_add_u32 s62, s62, {WS_P}
v_lshrrev_b32 v{vPS0}, 5, v0
v_lshlrev_b32 v{vPS0}, 10, v{vPS0}
v_and_b32 v{vPS1}, 31, v0
v_lshl_add_u32 v{vPS0}, v{vPS1}, 4, v{vPS0}
v_add_u32 v{vPS0}, s62, v{vPS0}
v_xor_b32 v{vPS1}, 512, v{vPS0}
"""

def place(slots, pairs, s0, s1):
    n = len(pairs)
    for k, (pre, op) in enumerate(pairs):
        sidx = s0 + (k * (s1 - s0)) // n
        while len(slots[sidx]) > 1 and slots[sidx][1].kind == "salu" and sidx + 1 < len(slots): sidx += 1
        pre = list(flat([pre]))
        for y in reversed(pre): slots[sidx].insert(1, y)
        if pre and slots[sidx][-1] is pre[-1] and getattr(op, "dma", False) and sidx + 1 < len(slots):
            slots[sidx + 1].append(op)
        else:
            slots[sidx].append(op)

em(RD[0, 0], RD[0, 1], RD[0, 2], W(lgkm=RD[0, 0]))
for c in range(9):
    slots = []
    for t in range(21):
        ring = WRING + 8 * ((21 * c + t) % 4)
        for T in (1, 0):
            for s in range(2):
                d = p1_acc(t, T)
                cc = rg(d, 0, 4)
                if c == 0 and s == 0: cc = rg(p1_acc(t, 0), 0, 4) if t < 18 else "0"
                slots.append([I(f"v_mfma_f32_16x16x32_bf16 {rg(d,0,4)}, {v(ring + 4*s, 4)}, {v(XR + 16*(c%3) + 8*T + 4*s, 4)}, {cc}")])
    tail = []
    if c < 8: tail = RD[c + 1, 0] + RD[c + 1, 1] + RD[c + 1, 2]
    for t in range(21):
        b = 4 * t
        if t < 18:
            if t < 17: slots[b + 3].append(W(lgkm=RD[c, t + 1]))
            else: slots[b + 3].append(W(lgkm=RD[c, 18]))
            for m in range(4): slots[b + m].append(RD[c, t + 3][m])
        elif t == 18:
            slots[b + 3] += [W(vm=[last(c + 1)], lgkm0=True), I("s_barrier")]
        elif t == 19 and tail:
            for m in range(4): slots[b + m] += tail[2 * m:2 * m + 2]
        elif t == 20 and tail:
            slots[b + 3].append(W(lgkm=RD[c + 1, 0]))
            for m in range(4): slots[b + m].append(tail[8 + m])
    pairs = list(LOADS[c + 2])
    if c == 1: pairs = [[None, x] for x in gl] + link([[None, clr[0]], [I(f"s_mov_b32 {sOM}, {WS_OF - WS_PF}"), clr[1]]]) + pairs
    if c == 5: pairs = [[None, gst]] + pairs
    place(slots, pairs, 0, 70)
    fl = {0: fill_c0, 2: fill_p2, 3: gate_math, 4: gate_red, 5: fill_at, 6: fill_pe}.get(c)
    if fl: spread(slots, [fl], 2 if c != 5 else 4, 72, 16)
    em(slots)
em(stamp())

def gelu(s):
    o = []; H = HOWN[s % 2]; wr = []
    groups = [(k, T) for k in range(2) for T in range(2)]
    for gi, (k, T) in enumerate(groups):
        src = hp(2 * s + k, T)
        t = [GT + 4 + e for e in range(4)]
        if src[0] == "a":
            u = [GT + e for e in range(4)]
            o += [f"v_accvgpr_read_b32 v{u[e]}, a{src[1]+e}" for e in range(4)]
        else: u = [src[1] + e for e in range(4)]
        o += [f"v_mul_f32 v{t[e]}, v{u[e]}, v{u[e]}" for e in range(4)]
        o += [f"v_fma_f32 v{t[e]}, v{t[e]}, {sGB}, v{vGA}" for e in range(4)]
        o += [f"v_mul_f32 v{t[e]}, v{t[e]}, v{u[e]}" for e in range(4)]
        o += [f"v_exp_f32 v{t[e]}, v{t[e]}" for e in range(4)]
        o += [f"v_add_f32 v{t[e]}, 1.0, v{t[e]}" for e in range(4)]
        o += [f"v_rcp_f32 v{t[e]}, v{t[e]}" for e in range(4)]
        o += [f"v_mul_f32 v{t[e]}, v{t[e]}, v{u[e]}" for e in range(4)]
        o += [f"v_cvt_pk_bf16_f32 v{H + 4*k + 2*T + r}, v{t[2*r]}, v{t[2*r+1]}" for r in range(2)]
        if T == 1:
            w = I(f"ds_write_b128 v{vHW}, {v(H + 4*k, 4)} offset:{1024*k}")
            sw = [f"v_permlane16_swap_b32 v{H+4*k+r}, v{H+4*k+2+r}" for r in range(2)] + [w]
            wr.append(w)
            o.append(("late", sw))
    res = []; pend = None; cnt = 0
    for x in o:
        if isinstance(x, tuple): pend = x[1]; cnt = 0; continue
        res.append(x)
        if pend:
            cnt += 1
            if cnt == 4: res += pend; pend = None
    if pend: res += ["s_nop 1"] + pend
    nxt = SLOT if (s + 1) % 3 else -2 * SLOT
    res.append(f"v_add_u32 v{vHW}, {nxt & 0xffffffff}, v{vHW}")
    return list(flat(res))

g0s = gelu(0)
pe = []
for t in range(3):
    for T in range(2):
        b = PROJ + 8 * t + 4 * T
        pe += [f"v_mul_f32 v{b+e}, {sQS if t < 2 else 'v%d' % vQF}, v{b+e}" for e in range(4)]
        pe += [f"v_cvt_pk_bf16_f32 v{b+r}, v{b+2*r}, v{b+2*r+1}" for r in range(2)]
        pe += [f"ds_write_b64 v{vPW if t < 2 else vPW2}, {v(b, 2)} offset:{1536*T + 32*t}"]
em(RD2[0, 0], g0s[:30], pe)
em(f"v_lshrrev_b32 v{vT1}, 5, v0", f"v_lshl_add_u32 v{vT1}, v{vT1}, 4, v{vPQ}", g0s[30:60], W(lgkm0=True))
D1 = XR; D2 = XR + 4
em(f"""
ds_read_b128 {v(D1,4)}, v{vPQ} offset:80
ds_read_b64_tr_b16 {v(D2,2)}, v{vPV} offset:64
ds_read_b64_tr_b16 {v(D2+2,2)}, v{vPV} offset:{64 + 4*96}
ds_read_b128 {a_(AQ,4)}, v{vT1}
ds_read_b128 {a_(AQ+4,4)}, v{vT1} offset:36
ds_read_b32 a{AQR}, v{vPQ} offset:32
ds_read_b32 a{AQR+1}, v{vPQ} offset:68
""", g0s[60:90], W(lgkm0=True))
em([f"v_cndmask_b32 v{D2+e}, v{D2+e}, v{vT0}, s[82:83]" for e in range(4)])
kvst = [I(f"buffer_store_dwordx4 {v(D1,4)}, v{vS1}, {SWS}, 0 offen sc1"), I(f"buffer_store_dword v{D1+3}, v{vS2}, {SWS}, 0 offen sc1"),
        I(f"buffer_store_dwordx4 {v(D2,4)}, v{vS3}, {SWS}, 0 offen sc1")]
em(kvst, g0s[90:], W(lgkm0=True), "s_barrier")
def h_reads(s):
    o = [I(f"ds_read_b128 {a_(AHP[s%2] + 4*k, 4)}, v{vHR} offset:{1024*k}") for k in range(2)]
    nxt = SLOT if (s + 1) % 3 else -2 * SLOT
    return o, I(f"v_add_u32 v{vHR}, {nxt & 0xffffffff}, v{vHR}")
HR = {s: h_reads(s) for s in range(9)}
em(HR[0], W(lgkm0=True), stamp())

nspin = [0]
def spin_check(load_text, cmp_text):
    k = nspin[0]; nspin[0] += 1
    OUTL.extend(flat([f"""
L_spin{k}:
s_mov_b32 {sSP}, {OPT['spin']}
L_spin{k}_l:
s_sleep 2
{load_text}
s_sub_u32 {sSP}, {sSP}, 1
s_waitcnt vmcnt(0)
s_cbranch_scc1 L_back{k}
{cmp_text}
s_nop 1
s_cbranch_vccnz L_spin{k}_l
s_branch L_back{k}
"""]))
    return list(flat([cmp_text, "s_nop 0", f"s_cbranch_vccnz L_spin{k}", f"L_back{k}:"]))

def kv_dma(d):
    o = []
    for n in range(5):
        o.append([[I(f"s_mov_b32 {sOM}, {WS_KV + d*DC + 4096*n}"), I(f"s_add_u32 m0, {sWKV}, {KVS[d%3] + 4096*n}")],
                  I(f"buffer_load_dwordx4 v{vKVD}, {SWS}, {sOM} offen sc1 lds")])
    return o
KVD = {d: link(kv_dma(d)) for d in range(8)}
sig1 = I(f"buffer_atomic_add v{vONE}, v{vSIG}, {SDBG}, 0 offen sc1")
poll1_t = f"buffer_load_dword v{vPOLL}, off, {SDBG}, 0 sc1"
poll1 = I(poll1_t)

def convert(t, o):
    src = acc2(t, o); d = packed(t, o); r = []
    if src[0] == "v":
        return [f"v_cvt_pk_bf16_f32 v{d+e}, v{src[1]+2*e}, v{src[1]+2*e+1}" for e in range(8)]
    for h in range(2):
        r += [f"v_accvgpr_read_b32 v{GT+e}, a{src[1]+8*h+e}" for e in range(8)]
        r += [f"v_cvt_pk_bf16_f32 v{d+4*h+e}, v{GT+2*e}, v{GT+2*e+1}" for e in range(4)]
    return r

slots = []
for s in range(9):
    for t in range(9):
        wf = AW + 8 * ((9 * s + t) % 2)
        for o in range(2):
            for k in range(2):
                d = rg(acc2(t, o), 0, 16)
                b = v(HOWN[s % 2] + 4 * k, 4) if o == 0 else a_(AHP[s % 2] + 4 * k, 4)
                slots.append([I(f"v_mfma_f32_32x32x16_bf16 {d}, {a_(wf + 4*k, 4)}, {b}, {'0' if s == 0 and k == 0 else d}")])
BAR2 = {}
for s in range(9):
    for t in range(9):
        b = 36 * s + 4 * t
        nx = (s, t + 1) if t < 8 else (s + 1, 0)
        if nx[0] < 9:
            slots[b] += RD2[nx][:2]; slots[b + 1] += RD2[nx][2:]
            if t == 8: slots[b + 2] += list(flat([HR[s + 1]]))
            if t != 7: slots[b + 3].append(W(lgkm=RD2[nx]))
        if t == 0 and s > 0: slots[b + 1].insert(1, W(lgkm=HR[s][0]))
    if s <= 6: place(slots, LOADS[9 + s + 2], 36 * s + 1, 36 * s + 30)
place(slots, [[None, sig1]], 36 * 1 + 34, 36 * 1 + 35)
place(slots, [[None, poll1]], 36 * 5 + 34, 36 * 5 + 35)
place(slots, KVD[0], 36 * 7 + 1, 36 * 7 + 20)
for s in range(8):
    spread(slots, gelu(s + 1), max(36 * s - 4, 0), 36 * s + 31, 32)
for s in range(9):
    b = 36 * s + 31
    vm = [last(9 + s + 1)] if s < 8 else [KVD[0][-1][1]]
    if s == 1: vm += kvst + clr + [gst]
    if s == 6: vm += [poll1]
    ex = []
    if s < 8: ex.append(I(f"v_add_u32 v{vR2}, {(SLOT if (s + 1) % 3 else -2 * SLOT) & 0xffffffff}, v{vR2}"))
    if s == 6: ex += spin_check(poll1_t, f"v_cmp_gt_u32 vcc, 0x100, v{vPOLL}")
    slots[b] += [W(vm=vm, lgkm0=True), I("s_barrier")] + ex
b8 = 36 * 8
for n, (t, o) in enumerate(ORD[:15]):
    s0 = b8 + 2 * n + 5
    spread(slots, convert(t, o), s0, min(s0 + 2, b8 + 36), 32)
vK, vK2, vV = vR2, vW2, vHW
AK = [32, 36]; AK2 = [40, 42]; AV = [44, 52]; AO = [0, 16]; APL = 64
SB = [192, 208, 224]; CR = [240, 16]; Q2 = 32
def kv_off(kt):
    d, r = divmod(kt, 8)
    return KVS[d % 3] - KVB + (r // 4) * CH, r % 4
def k_read(kt):
    base, r = kv_off(kt); o = [I(f"ds_read_b128 {a_(AK[kt%2], 4)}, v{vK} offset:{base + 1024*r}")]
    if r == 0: o.append(I(f"ds_read_b64 {a_(AK2[(kt//4)%2], 2)}, v{vK2} offset:{base + 4096}"))
    return o
def v_read(kt):
    base, r = kv_off(kt)
    return [I(f"ds_read_b128 {a_(AV[kt%2] + 4*e, 4)}, v{vV} offset:{base + 4608 + 1216*r + 608*e}") for e in range(2)]
KR = {kt: k_read(kt) for kt in range(64)}; VR = {kt: v_read(kt) for kt in range(64)}
at_addr = f"""
v_lshlrev_b32 v{vK2}, 3, v0
v_add_u32 v{vK2}, {KVB}, v{vK2}
v_bfe_u32 v{vHR}, v0, 3, 2
v_and_b32 v{vTMP}, 3, v0
v_lshl_add_u32 v{vHR}, v{vHR}, 2, v{vTMP}
v_bfe_u32 v{vTMP}, v0, 2, 1
v_cmp_eq_u32 vcc, 9, v{vHR}
v_mad_u32_u24 v{vV}, v{vTMP}, 9, v{vHR}
v_lshrrev_b32 v{vTMP}, 5, v0
v_cndmask_b32 v{vV}, v{vV}, 18, vcc
v_cmp_lt_u32 vcc, 9, v{vHR}
v_mad_u32_u24 v{vV}, v{vTMP}, 19, v{vV}
v_lshlrev_b32 v{vV}, 4, v{vV}
v_add_u32 v{vV}, {KVB}, v{vV}
v_mov_b32 v{vTMP}, 0x40000
v_cndmask_b32 v{vV}, v{vV}, v{vTMP}, vcc
"""
spread(slots, [at_addr], b8, b8 + 5, 32)
zero_o = [I(f"ds_read_b128 {a_(4*e, 4)}, v{vTMP}") for e in range(8)]
for e in range(8): slots[b8 + 6 + 2 * e + (e > 0) * 0].append(zero_o[e])
slots[b8 + 32] = slots[b8 + 32][:1] + list(flat([f"v_lshlrev_b32 v{vK}, 4, v0", f"v_add_u32 v{vK}, {KVB}, v{vK}"])) + KR[0] + VR[0] + slots[b8 + 32][1:]
em(slots)
em([convert(t, o) for t, o in ORD[15:17]], KVD[1][:3], convert(*ORD[17]), KVD[1][3:], stamp())

def q2(h, kt): return Q2 + 8 * h + 2 * (kt % 4)
em("v_cmp_gt_u32 vcc, 32, v0")
for h in range(2):
    b = Q2 + 8 * h
    em(f"""
v_accvgpr_read_b32 v{vTMP}, a{AQR+h}
v_mov_b32 v{b+1}, 0
v_mov_b32 v{b+2}, 0
v_mov_b32 v{b+5}, 0
v_mov_b32 v{b+6}, 0
v_cndmask_b32 v{b}, 0, v{vTMP}, vcc
v_cndmask_b32 v{b+3}, 0, v{vTMP}, vcc
v_cndmask_b32 v{b+4}, v{vTMP}, 0, vcc
v_cndmask_b32 v{b+7}, v{vTMP}, 0, vcc
""")
def qk(h, kt, d, c, ka=None, k2=None):
    ka = ka or a_(AK[kt % 2], 4); k2 = k2 or a_(AK2[(kt // 4) % 2], 2)
    return (I(f"v_mfma_f32_32x32x16_bf16 {v(d,16)}, {ka}, {a_(AQ + 4*h, 4)}, {c}"),
            I(f"v_mfma_f32_32x32x8_bf16 {v(d,16)}, {k2}, {v(q2(h, kt), 2)}, {v(d,16)}"))
def maxtree(s, dst, init=None):
    o = [f"v_max3_f32 v{dst}, v{s}, v{s+1}, {('v%d' % init) if init is not None else 'v%d' % (s+1)}"]
    o += [f"v_max3_f32 v{dst}, v{s+2*e}, v{s+2*e+1}, v{dst}" for e in range(1, 8)]
    return o
def set_c(h, m, tmp):
    return [f"v_mov_b32 v{tmp}, v{m}", "s_nop 1", f"v_permlane32_swap_b32 v{m}, v{tmp}", f"v_max_f32 v{m}, v{m}, v{tmp}"] + \
           [f"v_sub_f32 v{CR[h]+e}, 0, v{m}" for e in range(16)]
vPLM, vPLH, vWOa, vWOb, vPP = vHR, vGA, vSIG, vPOLL, vTMP
bg_addr = f"""
s_lshl_b32 s62, {sI}, 1
s_add_u32 s62, s62, {sTH}
s_mul_i32 s62, s62, {16*R}
s_mul_i32 s63, {sCG}, 9216
s_add_u32 s62, s62, s63
s_lshl_b32 s63, {sW}, 8
s_add_u32 s62, s62, s63
s_add_u32 s62, s62, {WS_P}
s_and_b32 s63, {sCG}, 1
s_lshl_b32 s60, s63, 4
s_xor_b32 s61, s63, 1
s_lshl_b32 s61, s61, 7
v_lshrrev_b32 v{vPLM}, 4, v0
v_mul_u32_u24 v{vPLM}, {R}, v{vPLM}
v_and_b32 v{vPLH}, 15, v0
v_lshl_add_u32 v{vPLM}, v{vPLH}, 4, v{vPLM}
v_add_u32 v{vPLM}, s62, v{vPLM}
s_lshl_b32 s63, s61, 6
v_add_u32 v{vPLH}, s63, v{vPLM}
s_lshl_b32 s63, s60, 6
v_add_u32 v{vPLM}, s63, v{vPLM}
s_mul_i32 s62, {sCG}, 144
s_add_u32 s60, s60, s62
s_add_u32 s61, s61, s62
s_mul_i32 s62, {sW}, {9*1152}
v_lshrrev_b32 v{vWOa}, 5, v0
v_bfe_u32 v{vWOb}, v0, 2, 3
v_mad_u32_u24 v{vWOa}, v{vWOa}, 36, v{vWOb}
v_mul_u32_u24 v{vWOa}, 1152, v{vWOa}
v_add_u32 v{vWOa}, s62, v{vWOa}
v_and_b32 v{vG1}, 3, v0
v_lshl_add_u32 v{vWOb}, v{vG1}, 2, v{vWOa}
v_lshl_add_u32 v{vWOa}, v{vG1}, 4, v{vWOa}
v_add_u32 v{vWOa}, s60, v{vWOa}
v_add_u32 v{vWOb}, s61, v{vWOb}
"""
bga = list(flat([bg_addr]))
em(W(lgkm0=True), qk(0, 0, SB[1], "0"), qk(1, 0, SB[2], "0"), bga[:14], maxtree(SB[1], SB[0]), maxtree(SB[2], SB[0] + 1),
   set_c(0, SB[0], SB[0] + 2), set_c(1, SB[0] + 1, SB[0] + 2), qk(0, 0, SB[0], v(CR[0], 16)), bga[14:])

slots = []
for n in range(128):
    kt, h = divmod(n, 2); s0 = SB[n % 3]
    ex = [I(f"v_exp_f32 v{s0+e}, v{s0+e}") for e in range(16)]
    if n < 127:
        m1, m2 = qk((n + 1) % 2, (n + 1) // 2, SB[(n + 1) % 3], v(CR[(n + 1) % 2], 16))
    else: m1 = m2 = None
    p2 = None
    if n > 0:
        km, hm = divmod(n - 1, 2)
        p2 = I(f"v_smfmac_f32_32x32x32_bf16 {a_(AO[hm],16)}, {a_(AV[km%2] + 4, 4)}, {v(SB[(n-1)%3] + 8, 8)}, v{vIDX}")
    p1 = I(f"v_smfmac_f32_32x32x32_bf16 {a_(AO[h],16)}, {a_(AV[kt%2], 4)}, {v(s0, 8)}, v{vIDX}")
    u = [[m1], [m2], [p2], [p1]]
    if h == 0 and kt < 63:
        u[0] += KR[kt + 1]; u[2] += VR[kt + 1]; u[3].append(W(lgkm=KR[kt + 1]))
    if h == 1 and kt < 63:
        if n % 16 == 13 and n // 16 < 7: u[0] += [W(vm=[KVD[n // 16 + 1][-1][1]], lgkm0=True), I("s_barrier")]
        else: u[0].append(W(lgkm0=True))
    slots.append((u, ex))
def bg(n, pos, pre, op):
    u = slots[n][0]
    pre = list(flat([pre]))
    if pos == 2: u[2] += pre + ([I("s_nop 0")] if getattr(op, "dma", False) and len(pre) else []) + [op]
    else:
        u[2] += pre; u[3].append(op)
events = {}
def sched(pairs, n0, n1):
    for k, pr in enumerate(pairs):
        n = n0 + (k * (n1 - n0)) // len(pairs)
        events.setdefault(n, []).append(pr)
for d in range(2, 8): sched(KVD[d], 16 * (d - 2) + 0, 16 * (d - 2) + 12)
PST = []
for t in range(9):
    for o in range(2):
        for pi in range(2):
            PST.append([I(f"s_mov_b32 {sOS}, {4096*t}") if o == 0 and pi == 0 else None,
                        I(f"buffer_store_dwordx4 {v(packed(t,o) + 4*pi, 4)}, v{vPS0 + o}, {SWS}, {sOS} offen offset:{2048*pi} sc1")])
PST = link(PST); sched(PST, 0, 48)
pflag = I(f"buffer_store_dword v{vONE}, v{vFLG}, {SWS}, 0 offen sc1")
sched([[W(vm=[PST[-1][1]]), pflag]], 54, 55)
WOD = []
for c in range(9):
    if c == 8:
        WOD.append([f"""
s_mul_i32 s62, {sW}, {144*1152}
v_lshrrev_b32 v{vWOa}, 4, v0
v_bfe_u32 v{vWOb}, v0, 2, 1
v_lshl_add_u32 v{vWOa}, v{vWOa}, 1, v{vWOb}
v_bfe_u32 v{vWOb}, v0, 3, 1
v_lshl_add_u32 v{vWOa}, v{vWOa}, 1, v{vWOb}
v_mad_u32_u24 v{vWOa}, v{vWOa}, 9, 8
v_mul_u32_u24 v{vWOa}, 1152, v{vWOa}
v_add_u32 v{vWOa}, s62, v{vWOa}
v_lshl_add_u32 v{vWOb}, v{vG1}, 2, v{vWOa}
v_lshl_add_u32 v{vWOa}, v{vG1}, 4, v{vWOa}
v_add_u32 v{vWOa}, s60, v{vWOa}
""", I(f"v_add_u32 v{vWOb}, s61, v{vWOb}")])
    so = (72 * 1152 * c) if c < 8 else 0
    WOD.append([[I(f"s_mov_b32 {sOQ}, {so}"), I(f"s_add_u32 m0, {sWWO}, {2304*c}")], I(f"buffer_load_dwordx4 v{vWOa}, {SWO}, {sOQ} offen lds")])
    WOD.append([I(f"s_add_u32 m0, {sWWO}, {2304*c + 1024 - 64}"), I(f"buffer_load_dwordx4 v{vWOa}, {SWO}, {sOQ} offen offset:64 lds")])
    WOD.append([I(f"s_add_u32 m0, {sWWO}, {2304*c + 2048}"), I(f"buffer_load_dword v{vWOb}, {SWO}, {sOQ} offen lds")])
WOD = link(WOD); sched(WOD, 40, 68)
TACC = 48; TSEL = 68; TB2 = 76; vG2 = 86; vOP, vOS, vOL, vOLR, vOUT, vOUTH, vWR, vWRH, vTA, vTB = range(87, 97); OF = 100; TW = 172
poll2_t = f"buffer_load_dword v{vTB}, v{vPP}, {SWS}, 0 offen sc1"
poll2 = I(poll2_t)
sched([[f"""
s_lshl_b32 s62, {sI}, 6
s_lshl_b32 s63, {sTH}, 1
s_add_u32 s62, s62, s63
s_lshr_b32 s63, {sCG}, 2
s_add_u32 s63, s63, s62
s_lshl_b32 s63, s63, 7
s_add_u32 s63, s63, {WS_PF}
v_and_b32 v{vTA}, 15, v0
v_lshl_add_u32 v{vPP}, v{vTA}, 9, s63
s_lshr_b32 s63, {sW}, 1
s_add_u32 s63, s63, s62
s_lshl_b32 s63, s63, 7
s_add_u32 s63, s63, {WS_OF}
""", I(f"v_lshl_add_u32 v{vOP}, v{vTA}, 9, s63")]], 57, 58)
sched([[None, poll2]], 66, 67)
sched([[[W(vm=[poll2])], spin_check(poll2_t, f"v_cmp_ne_u32 vcc, 1, v{vTB}")]], 70, 71)
PLD = []
for m in range(4):
    for c in range(9):
        pre = I(f"s_mov_b32 {sOL}, {m*4*R + (4096 if 4 <= c < 8 else 0)}") if c % 4 == 0 else None
        PLD.append([pre, I(f"buffer_load_dwordx4 {a_(APL + 4*(9*m + c), 4)}, v{vPLM if c < 8 else vPLH}, {SWS}, {sOL} offen offset:{1024*(c%4)} sc1")])
PLD = link(PLD); sched(PLD, 71, 124)
gld1 = I(f"buffer_load_dword v{vG1}, v{vTB}, {SWS}, 0 offen sc1"); gld2 = I(f"buffer_load_dword v{vG2}, v{vTB}, {SWS}, 0 offen sc1")
b2l = [I(f"buffer_load_dwordx2 {v(TB2 + 2*t, 2)}, v{vTB}, {SB2}, {'s60' if t < 4 else 's61'} offen offset:{32*(t%4)}") for t in range(5)]
misc = [[f"""
s_lshl_b32 s62, {sI}, 9
s_lshl_b32 s63, {sW}, 7
s_add_u32 s63, s63, s62
s_add_u32 s63, s63, {WS_G}
v_and_b32 v{vTB}, 31, v0
v_lshl_add_u32 v{vTB}, v{vTB}, 2, s63
""", gld1], [f"""
s_lshl_b32 s63, {sTH}, 8
s_add_u32 s62, s62, s63
s_lshl_b32 s63, {sW}, 6
s_add_u32 s62, s62, s63
s_add_u32 s63, s62, {WS_G}
v_lshl_add_u32 v{vTB}, v{vTA}, 2, s63
""", gld2], [f"""
v_lshrrev_b32 v{vTB}, 4, v0
v_lshlrev_b32 v{vTB}, 3, v{vTB}
""", b2l[0]]] + [[None, x] for x in b2l[1:]]
sched(misc, 98, 112)
for n in range(128):
    u, ex = slots[n]
    ev = events.get(n, [])
    for k, (pre, op) in enumerate(ev):
        pre = list(flat([pre])); ops = list(flat([op]))
        dma = getattr(ops[0], "dma", False)
        pos = [3, 2, 0][len(ev) - 1 - k] if len(ev) <= 3 else 3
        tgt = u[pos]
        prev = {3: u[2], 2: u[0], 0: None}[pos]
        simple = all(y.kind == "salu" and not isinstance(y, W) for y in pre)
        if prev is not None and simple and k == 0 and pre and prev[0] is not None:
            for y in reversed(pre): prev.insert(1, y)
            tgt += ops
        else:
            tgt += pre + ops
    em(u[0], ex[0:4], u[1], ex[4:8], u[2], ex[8:12], u[3], ex[12:16])
em("s_nop 0", f"v_smfmac_f32_32x32x32_bf16 {a_(AO[1],16)}, {a_(AV[1] + 4, 4)}, {v(SB[127%3] + 8, 8)}, v{vIDX}")
em(stamp())

em(f"""
s_lshl_b32 s63, {sI}, 2
s_add_u32 s69, s63, {sW}
s_mul_i32 s69, s69, 36864
s_add_u32 s69, s69, {WS_O}
s_lshl_b32 {sOS}, {sJ}, 11
s_add_u32 {sOS}, {sOS}, s69
s_lshl_b32 {sOL}, {sJ}, 8
s_add_u32 {sOL}, {sOL}, s69
s_add_u32 {sOL}, {sOL}, 32768
v_lshlrev_b32 v{vOS}, 4, v0
v_and_b32 v{vOL}, 31, v0
v_lshrrev_b32 v{vOLR}, 5, v0
v_lshlrev_b32 v{vOLR}, 2, v{vOLR}
v_lshl_add_u32 v{vOL}, v{vOL}, 3, v{vOLR}
""")
OV = [SB[0], SB[1]]
em("L_epi:", "s_nop 3")
for h in range(2): em([f"v_accvgpr_read_b32 v{OV[h]+e}, a{AO[h]+e}" for e in range(10)])
lim = f2u(2.0 ** 60) if not OPT["force_fb"] else f2u(0.5)
em(f"""
v_max3_f32 v{SB[2]}, |v{OV[0]}|, |v{OV[0]+1}|, |v{OV[0]+2}|
v_max3_f32 v{SB[2]+1}, |v{OV[1]}|, |v{OV[1]+1}|, |v{OV[1]+2}|
""")
for e in (3, 5, 7):
    for h in range(2): em(f"v_max3_f32 v{SB[2]+h}, |v{OV[h]+e}|, |v{OV[h]+e+1}|, v{SB[2]+h}")
em(f"""
v_max_f32 v{SB[2]}, v{SB[2]}, v{SB[2]+1}
v_mul_f32 v{SB[2]}, {hex(f2u(2.0**-60))}, v{SB[2]}
v_rcp_f32 v{SB[2]+2}, v{OV[0]+9}
v_add_f32 v{SB[2]}, v{SB[2]}, v{OV[0]+9}
v_rcp_f32 v{SB[2]+3}, v{OV[1]+9}
v_add_f32 v{SB[2]}, v{SB[2]}, v{OV[1]+9}
v_cmp_ngt_f32 vcc, {hex(lim)}, v{SB[2]}
""", W(vm=[gld1]), f"""
s_cbranch_vccnz L_fb
L_fbdone:
v_mul_f32 v{SB[2]+2}, v{SB[2]+2}, v{vG1}
v_mul_f32 v{SB[2]+3}, v{SB[2]+3}, v{vG1}
""")
ost = []
for h in range(2):
    em([f"v_mul_f32 v{OV[h]+e}, v{OV[h]+e}, v{SB[2]+2+h}" for e in range(9)])
    em([f"v_cvt_pk_bf16_f32 v{OV[h]+12+e}, v{OV[h]+2*e}, v{OV[h]+2*e+1}" for e in range(4)])
    ost.append(I(f"buffer_store_dwordx4 {v(OV[h]+12, 4)}, v{vOS}, {SWS}, {sOS} offen offset:{1024*h} sc1")); em(ost[-1])
ost.append(I(f"buffer_store_dword v{SB[2]}, v{vOL}, {SWS}, {sOL} offen sc1"))
em(f"v_cvt_pk_bf16_f32 v{SB[2]}, v{OV[0]+8}, v{OV[1]+8}", ost[-1])
em(f"""
s_mov_b32 {sOM}, {WS_OF - WS_PF}
v_and_b32 v{vWR}, 1, v0
v_lshlrev_b32 v{vWR}, 4, v{vWR}
v_mov_b32 v{vWRH}, 0x3f80
v_lshlrev_b32 v{vWRH}, v{vWR}, v{vWRH}
v_lshrrev_b32 v{vWR}, 1, v{vTA}
""")
for e in range(8):
    em(f"v_cmp_eq_u32 vcc, {e}, v{vWR}")
    t, hh = divmod(e, 2) if e < 8 else (0, 0)
    em(f"v_lshlrev_b32 v{TACC + 4*t + 2*hh}, 16, v{TB2 + e}" if e > 0 else [W(vm=b2l), f"v_lshlrev_b32 v{TACC}, 16, v{TB2}"],
       f"v_and_b32 v{TACC + 4*t + 2*hh + 1}, 0xffff0000, v{TB2 + e}")
    em(f"v_cndmask_b32 v{TSEL + e}, 0, v{vWRH}, vcc")
for e in (8, 9):
    em(f"v_lshlrev_b32 v{TACC + 16 + 2*(e-8)}, 16, v{TB2 + e}", f"v_and_b32 v{TACC + 17 + 2*(e-8)}, 0xffff0000, v{TB2 + e}")
em(W(vm=[PLD[-1][1]]), "s_nop 0")
red = []
for t in range(5):
    for m in range(4):
        for c in ((2 * t, 2 * t + 1) if t < 4 else (8,)):
            red.append([I(f"v_mfma_f32_16x16x32_bf16 {v(TACC + 4*t, 4)}, {v(TSEL + 4*(c%2), 4)}, {a_(APL + 4*(9*m + c), 4)}, {v(TACC + 4*t, 4)}")])
tail_addr = f"""
s_lshl_b32 s62, {sTH}, 1
s_add_u32 s62, s62, s63
s_lshr_b32 s69, {sW}, 1
s_add_u32 s62, s62, s69
s_mul_i32 s62, s62, 36864
s_add_u32 s62, s62, {WS_O}
s_and_b32 s69, {sW}, 1
s_lshl_b32 s69, s69, 4
v_add_u32 v{vOL}, s69, v{vTA}
v_lshrrev_b32 v{vTB}, 4, v0
v_lshlrev_b32 v{vOLR}, 3, v{vOL}
v_lshl_add_u32 v{vOLR}, v{vTB}, 10, v{vOLR}
v_add_u32 v{vOLR}, s62, v{vOLR}
v_lshlrev_b32 v{vOL}, 4, v{vOL}
v_lshl_add_u32 v{vOL}, v{vTB}, 9, v{vOL}
v_add_u32 v{vOL}, s62, v{vOL}
s_lshl_b32 s62, {sI}, 1
s_add_u32 s62, s62, {sTH}
s_lshl_b32 s62, s62, 2
s_add_u32 s62, s62, {sW}
s_mul_i32 s62, s62, {16*1152}
v_mul_u32_u24 v{vOUT}, 1152, v{vTA}
v_lshl_add_u32 v{vOUT}, v{vTB}, 3, v{vOUT}
v_add_u32 v{vOUT}, s62, v{vOUT}
v_cmp_gt_u32 vcc, 32, v0
v_mov_b32 v{vOUTH}, {OOB}
v_mul_u32_u24 v{vWR}, {WOR}, v{vTB}
v_cndmask_b32 v{vOUTH}, v{vOUTH}, v{vOUT}, vcc
v_bfe_u32 v{vTB}, v0, 2, 2
v_lshl_add_u32 v{vWRH}, v{vTB}, 4, v{vWR}
v_lshl_add_u32 v{vWR}, v{vTB}, 6, v{vWR}
v_and_b32 v{vTB}, 3, v0
v_lshl_add_u32 v{vWR}, v{vTB}, 3, v{vWR}
v_and_b32 v{vTB}, 1, v0
v_lshl_add_u32 v{vWRH}, v{vTB}, 3, v{vWRH}
v_sub_f32 v{vG2}, 1.0, v{vG2}
"""
spread(red, [tail_addr], 0, 30, 16)
oflag = I(f"buffer_store_dword v{vONE}, v{vFLG}, {SWS}, {sOM} offen sc1")
em(red, W(vm=ost), oflag)
poll3_t = f"buffer_load_dword v{vTB}, v{vOP}, {SWS}, 0 offen sc1"
def wo_frag(n):
    return a_(4 * n, 4) if n < 64 else v(TW + 4 * ((n - 64) % 20), 4)
def wo_read(n):
    c, r = divmod(n, 10); t, s = divmod(r, 2); o = []
    for rho in range(2):
        d = a_(4 * n + 2 * rho, 2) if n < 64 else v(TW + 4 * ((n - 64) % 20) + 2 * rho, 2)
        if t < 4: o.append(I(f"ds_read_b64_tr_b16 {d}, v{vWR} offset:{2304*c + 1024*(t//2) + 512*s + 256*rho + 32*(t%2)}"))
        else: o.append(I(f"ds_read_b64_tr_b16 {d}, v{vWRH} offset:{2304*c + 2048 + 128*s + 64*rho}"))
    return o
WRD = [wo_read(n) for n in range(90)]
em("s_nop 7", [f"v_mul_f32 v{TACC+e}, v{TACC+e}, v{vG2}" for e in range(20)])
for n in range(84):
    em(WRD[n])
    if n % 6 == 5: em(W(lgkm=WRD[n - 3]))
poll3 = I(poll3_t)
em(stamp(), poll3, W(vm=[poll3], lgkm0=True), spin_check(poll3_t, f"v_cmp_ne_u32 vcc, 1, v{vTB}"), stamp())
OLD = []
for ks in range(16):
    pre = I(f"s_mov_b32 {sOL}, {4096*(ks//2)}") if ks % 2 == 0 else None
    OLD.append(I(f"buffer_load_dwordx4 {v(OF + 4*ks, 4)}, v{vOL}, {SWS}, {sOL} offen offset:{2048*(ks%2)} sc1")); em(pre, OLD[-1])
em(f"s_mov_b32 {sOL}, 32768")
for e in range(4):
    OLD.append(I(f"buffer_load_dwordx2 {v(OF + 64 + 2*e, 2)}, v{vOLR}, {SWS}, {sOL} offen offset:{256*e} sc1")); em(OLD[-1])
for c in range(9):
    em(W(vm=[OLD[2 * c + 1] if c < 8 else OLD[-1]], lgkm0=(c == 8)))
    for r in range(10):
        t, s = divmod(r, 2); n = 10 * c + r
        em(f"v_mfma_f32_16x16x32_bf16 {v(TACC + 4*t, 4)}, {wo_frag(n)}, {v(OF + 8*c + 4*s, 4)}, {v(TACC + 4*t, 4)}")
        if 64 <= n < 70: em(WRD[n + 20])
for t in range(5):
    em([f"v_cvt_pk_bf16_f32 v{TACC + 4*t + r}, v{TACC + 4*t + 2*r}, v{TACC + 4*t + 2*r + 1}" for r in range(2)])
    em(f"buffer_store_dwordx2 {v(TACC + 4*t, 2)}, v{vOUT if t < 4 else vOUTH}, {SOUT}, {'s60' if t < 4 else 's61'} offen offset:{32*(t%4)}")
if OPT["stamps"]:
    em("s_waitcnt vmcnt(0)", stamp(), f"v_mov_b32 v1, 0")
    for k in range(nst[0]): em(f"v_writelane_b32 v1, s{84+k}, {k}")
    em(f"""
s_lshl_b32 s62, s2, 2
s_add_u32 s62, s62, {sW}
s_lshl_b32 s62, s62, 6
s_add_u32 s62, s62, {WS_ST}
v_cmp_gt_u32 vcc, 16, v0
v_lshlrev_b32 v2, 2, v0
v_mov_b32 v3, {OOB}
v_cndmask_b32 v2, v3, v2, vcc
buffer_store_dword v1, v2, {SWS}, s62 offen
""")
em("L_end:", "s_endpgm")

FK, FK2, FV, FM = 100, 116, 120, 152
fb = [f"""
L_fb:
v_subrev_u32 v{vK}, {KVB}, v{vK}
v_subrev_u32 v{vK2}, {KVB}, v{vK2}
v_cmp_gt_u32 vcc, 0x40000, v{vV}
v_subrev_u32 v{vV}, {KVB}, v{vV}
v_mov_b32 v{FM}, {OOB}
v_cndmask_b32 v{vV}, v{FM}, v{vV}, vcc
v_mov_b32 v{FM}, 0xff7fffff
v_mov_b32 v{FM+1}, 0xff7fffff
s_mov_b32 s62, {WS_KV}
L_fb1:
s_add_u32 s69, s62, 4096
"""]
fbk = [f"buffer_load_dwordx4 {v(FK + 4*r, 4)}, v{vK}, {SWS}, s62 offen offset:{1024*r} sc1" for r in range(4)] + [f"buffer_load_dwordx2 {v(FK2, 2)}, v{vK2}, {SWS}, s69 offen sc1"]
fb += fbk + ["s_waitcnt vmcnt(0)"]
for r in range(4):
    fb += [qk(0, r, SB[0], "0", v(FK + 4 * r, 4), v(FK2, 2)), qk(1, r, SB[1], "0", v(FK + 4 * r, 4), v(FK2, 2)), "s_nop 15",
           maxtree(SB[0], FM, FM), maxtree(SB[1], FM + 1, FM + 1)]
fb += [f"""
s_add_u32 s62, s62, {CH}
s_cmp_lt_u32 s62, {WS_KV + 16*CH}
s_cbranch_scc1 L_fb1
""", set_c(0, FM, FM + 2), set_c(1, FM + 1, FM + 2), [f"v_accvgpr_write_b32 a{e}, 0" for e in range(32)], f"""
s_mov_b32 s62, {WS_KV}
L_fb2:
s_add_u32 s69, s62, 4096
"""] + fbk + [f"s_add_u32 s69, s62, 4608"]
for r in range(4):
    if r == 2: fb += [f"s_add_u32 s69, s69, 2432"]
    fb += [f"buffer_load_dwordx4 {v(FV + 8*r + 4*e, 4)}, v{vV}, {SWS}, s69 offen offset:{1216*(r%2) + 608*e} sc1" for e in range(2)]
fb += ["s_waitcnt vmcnt(0)"]
for r in range(4):
    fb += [qk(0, r, SB[0], v(CR[0], 16), v(FK + 4 * r, 4), v(FK2, 2)), qk(1, r, SB[1], v(CR[1], 16), v(FK + 4 * r, 4), v(FK2, 2)), "s_nop 15"]
    for h in range(2):
        fb += [[f"v_exp_f32 v{SB[h]+e}, v{SB[h]+e}" for e in range(16)], "s_nop 1"]
        fb += [f"v_smfmac_f32_32x32x32_bf16 {a_(AO[h],16)}, {v(FV + 8*r + 4*e, 4)}, {v(SB[h] + 8*e, 8)}, v{vIDX}" for e in range(2)]
fb += [f"""
s_add_u32 s62, s62, {CH}
s_cmp_lt_u32 s62, {WS_KV + 16*CH}
s_cbranch_scc1 L_fb2
s_nop 15
"""]
for h in range(2): fb += [[f"v_accvgpr_read_b32 v{OV[h]+e}, a{AO[h]+e}" for e in range(10)]]
fb += [f"v_rcp_f32 v{SB[2]+2}, v{OV[0]+9}", f"v_rcp_f32 v{SB[2]+3}, v{OV[1]+9}", "s_nop 1", "s_branch L_fbdone"]
OUTL.extend(flat(fb))

resolve_waits(P)
P2 = check(P)
O2 = check(OUTL)
hdr = open(os.path.join(os.path.dirname(os.path.abspath(__file__)), "..", "cdna_kernels", NAME + ".s.ref")).read().split("; Override launch")[0]
src = hdr + f"""; Generated by gen/gen.py (hand-written generator).
; @launch grid=(256,1,1) block=(256,1,1) lds={LDS_BYTES}
.amdgcn_target "amdgcn-amd-amdhsa--gfx950"
.text
.globl {NAME}_kernel
.p2align 8
.type {NAME}_kernel,@function
{NAME}_kernel:
""" + render(P2) + render(O2) + f"""L_codeend:
    s_endpgm
.section .rodata,"a"
.p2align 6
.amdhsa_kernel {NAME}_kernel
  .amdhsa_next_free_vgpr 512
  .amdhsa_next_free_sgpr 102
  .amdhsa_accum_offset 256
  .amdhsa_group_segment_fixed_size 0
  .amdhsa_kernarg_size 112
  .amdhsa_user_sgpr_count 2
  .amdhsa_user_sgpr_kernarg_segment_ptr 1
  .amdhsa_system_sgpr_workgroup_id_x 1
.end_amdhsa_kernel
"""
open(sys.argv[1], "w").write(src)
print("instrs:", len(P2), len(O2))
```

```python
import sys, math, struct, os
from asm import *

NAME = "gated_mix__grouped_kv_mqa__dense_activation_gelu__prompt"
OPT = dict(stamps=0, force_fb=0, spin=1 << 18)
for a in sys.argv[2:]:
    k, v = a.split("="); OPT[k] = int(v)

def f2u(x): return struct.unpack("<I", struct.pack("<f", x))[0]
def v(a, n=1): return f"v{a}" if n == 1 else f"v[{a}:{a+n-1}]"
def a_(a, n=1): return f"a{a}" if n == 1 else f"a[{a}:{a+n-1}]"
def rg(r, off=0, n=1):
    return (v if r[0] == "v" else a_)(r[1] + off, n)

WS_KV = 0; CH = 9472; DC = 2 * CH
WS_G = 0x28000
WS_PF = 0x30000
WS_OF = 0x50000
WS_ST = 0x70000
WS_O = 0x80000
WS_P = 0x400000; R = 73728
OOB = 0x40000000
WR = 10784; SLOT = 4 * WR; TOP = 3 * SLOT
XB = TOP; BIAS = TOP + 32768; TMP = TOP; HB = TOP + 12288
KVS = [0, 20480, 40960]; KVB = 0
WOR = 20768; WOB = 61440
LDS_BYTES = 163840
SX, SW1, SWQ, SEX, SW2, SWO, SWS, SOUT, SB1, SB2, SGW, SDBG = [f"s[{4+4*k}:{7+4*k}]" for k in range(12)]
sI, sJ, sW, sWB = "s56", "s57", "s58", "s59"
sO1, sOQ, sOE, sOM, sXT = "s64", "s65", "s66", "s67", "s68"
sGB, sQS, sWKV, sWWO, sSP = "s70", "s71", "s72", "s73", "s74"
sTH, sCG, sOS, sOL, sXB = "s75", "s76", "s77", "s78", "s79"
vL = 0
vR2, vW2, vHW, vHR, vGA, vPOLL, vKVD, vSIG, vONE = 1, 2, 3, 4, 5, 6, 7, 8, 9
vPS0, vPS1, vFLG = 10, 11, 12
vIDX, vG1, vTMP = 13, 14, 15
HOWN = [16, 24]; GT = 32
ACCV = 48
PROJ = 48; XR = 72; WRING = 120; GATE = 152
vW1, vWQ, vWQT, vEX, vX, vR1a, vR1b, vR1xa, vR1xb, vTID, vBI = range(176, 187)
vPW, vPW2, vPQ, vPV, vS1, vS2, vS3, vQF, vT0, vT1, vT2 = range(187, 198)
vX2, vXR0, vXR1, vCLR = range(198, 202)
AW = [192, 200, 240]; AHP = [208, 216]; AQ = 224; AQR = 232

def hp(ft, T):
    s, k = divmod(ft, 2)
    base = ("v", 224 + 16 * s) if s < 2 else ("a", 16 * (s - 2))
    return (base[0], base[1] + 8 * k + 4 * T)
ORD = [(t, o) for t in range(9) for o in range(2)]
ATILES = ORD[6:11]
def acc2(t, o):
    n = ORD.index((t, o))
    if (t, o) in ATILES: return ("a", 112 + 16 * (n - 6))
    return ("v", ACCV + 16 * (n if n < 6 else n - 5))
def packed(t, o): return ACCV + 8 * ORD.index((t, o))

P = []
OUTL = []
def em(*x): P.extend(flat(x))
nst = [0]
def stamp(mask=1):
    if not (OPT["stamps"] & mask): return []
    k = nst[0]; nst[0] += 1
    assert k < 16
    return list(flat([f"{'s_memtime' if OPT.get('cyc') else 's_memrealtime'} s[80:81]", "s_waitcnt lgkmcnt(0)", f"s_mov_b32 s{84+k}, s80"]))

def srd_consts():
    sizes = {4: 2359296, 8: 5308416, 12: 663552, 16: 20736, 20: 5308416, 24: 663552, 28: 268435456, 32: 2359296, 36: 9216, 40: 1152, 44: 1152, 48: 256}
    return [f"s_mov_b32 s{b+2}, {n}\ns_mov_b32 s{b+3}, 0x20000" for b, n in sizes.items()]

em(f"""
s_cmp_ge_u32 s2, 256
s_cbranch_scc1 L_end
s_load_dwordx2 s[8:9], s[0:1], 48
s_load_dwordx2 s[4:5], s[0:1], 0
s_load_dwordx2 s[12:13], s[0:1], 8
s_load_dwordx4 s[52:55], s[0:1], 16
s_load_dwordx2 s[36:37], s[0:1], 56
s_load_dwordx2 s[20:21], s[0:1], 64
s_load_dwordx2 s[24:25], s[0:1], 32
s_load_dwordx2 s[28:29], s[0:1], 104
s_load_dwordx2 s[32:33], s[0:1], 88
s_load_dwordx2 s[40:41], s[0:1], 72
s_load_dwordx2 s[44:45], s[0:1], 80
s_load_dwordx2 s[48:49], s[0:1], 96
s_getpc_b64 s[60:61]
L_pc:
v_lshlrev_b32 v1, 7, v0
v_min_u32 v2, L_codeend-L_pc-4, v1
""")
pf0 = I("global_load_dword v3, v2, s[60:61]")
em(pf0, f"""
v_add_u32 v1, 0x8000, v1
v_min_u32 v2, L_codeend-L_pc-4, v1
""")
pf1 = I("global_load_dword v4, v2, s[60:61]")
em(pf1, f"""
v_lshrrev_b32 v1, 6, v0
v_mov_b32 v{vTID}, v0
v_readfirstlane_b32 {sW}, v1
v_and_b32 v0, 63, v0
s_and_b32 {sI}, s2, 1
s_lshl_b32 {sI}, {sI}, 3
s_bfe_u32 s62, s2, 0x30003
s_add_u32 {sI}, {sI}, s62
s_bfe_u32 {sJ}, s2, 0x20001
s_lshl_b32 {sJ}, {sJ}, 2
s_lshr_b32 s62, s2, 6
s_add_u32 {sJ}, {sJ}, s62
s_mul_i32 {sWB}, {sW}, {WR}
""", srd_consts(), f"""
v_lshrrev_b32 v1, 2, v{vTID}
v_and_b32 v2, 3, v{vTID}
s_mul_i32 s62, {sJ}, 576
v_mul_u32_u24 v{vW1}, 9216, v1
v_lshl_add_u32 v{vW1}, v2, 4, v{vW1}
v_add_u32 v{vW1}, s62, v{vW1}
v_lshl_add_u32 v{vBI}, v{vTID}, 1, s62
s_mul_i32 s62, {sJ}, 72
v_mul_u32_u24 v5, 1152, v1
v_add_u32 v5, s62, v5
v_lshl_add_u32 v{vWQ}, v2, 4, v5
v_lshl_add_u32 v{vWQT}, v2, 2, v5
v_add_u32 v{vWQT}, 56, v{vWQT}
s_and_b32 s62, {sJ}, 1
s_lshl_b32 s62, s62, 4
s_cmp_ge_u32 {sJ}, 4
s_cselect_b32 s62, 20, s62
v_mul_u32_u24 v5, 36, v1
v_lshl_add_u32 v5, v2, 2, v5
v_add_u32 v{vEX}, s62, v5
s_lshl_b32 s62, {sI}, 2
s_add_u32 s62, s62, {sW}
s_mul_i32 s62, s62, {32*1152}
v_lshrrev_b32 v2, 4, v0
v_lshrrev_b32 v1, 3, v0
v_mul_u32_u24 v5, 1152, v1
v_add_u32 v5, s62, v5
v_add_u32 v1, 2, v2
v_xor_b32 v1, v1, v0
v_and_b32 v1, 7, v1
v_lshl_add_u32 v{vX}, v1, 4, v5
v_xor_b32 v1, 4, v1
v_lshl_add_u32 v{vX2}, v1, 4, v5
v_add_u32 v{vX2}, {8*1152}, v{vX2}
s_lshl_b32 {sXB}, {sW}, 12
s_mov_b32 {sXT}, {16*1152}
s_lshr_b32 s62, 0x2c, {sJ}
s_waitcnt lgkmcnt(0)
s_bitcmp1_b32 s62, 0
s_cselect_b32 s16, s54, s52
s_cselect_b32 s17, s55, s53
""")
em(stamp(15))
bl0 = I(f"buffer_load_ushort v6, v{vBI}, {SB1}, 0 offen"); bl1 = I(f"buffer_load_ushort v7, v{vBI}, {SB1}, 0 offen offset:512")
em(bl0, bl1)

def p1_loads(c):
    sl = (c % 3) * SLOT; o = []
    so = [I(f"s_mov_b32 {sO1}, {c*64*9216}"), I(f"s_mov_b32 {sOQ}, {c*64*1152}"), I(f"s_mov_b32 {sOE}, {c*64*36}"), None]
    for n in range(4):
        o.append([[so[n], I(f"s_add_u32 m0, {sXB}, {XB + 16384*(c%2) + 1024*n - 128*c}")],
                  I(f"buffer_load_dwordx4 v{vX2 if n%2 else vX}, {SX}, {sXT if n >= 2 else 0} offen offset:{128*c} lds")])
    for n in range(9):
        o.append([I(f"s_add_u32 m0, {sWB}, {sl + 960*n}"), I(f"buffer_load_dwordx4 v{vW1}, {SW1}, {sO1} offen offset:{64*n} lds")])
    o.append([I(f"s_add_u32 m0, {sWB}, {sl + 9216}"), I(f"buffer_load_dwordx4 v{vWQ}, {SWQ}, {sOQ} offen lds")])
    o.append([I(f"s_add_u32 m0, {sWB}, {sl + 10240}"), I(f"buffer_load_dword v{vWQT}, {SWQ}, {sOQ} offen lds")])
    o.append([I(f"s_add_u32 m0, {sWB}, {sl + 10496}"), I(f"buffer_load_dword v{vEX}, {SEX}, {sOE} offen lds")])
    return o
def p2_loads(s):
    sl = (s % 3) * SLOT; o = []
    for n in range(9):
        pre = [I(f"s_add_u32 m0, {sWB}, {sl + 896*n}")]
        if n == 0: pre = [I(f"s_mov_b32 {sO1}, {s*36864}")] + pre
        o.append([pre, I(f"buffer_load_dwordx4 v{vW2}, {SW2}, {sO1} offen offset:{128*n} lds")])
    return o
LOADS = [link(p1_loads(c)) for c in range(9)] + [link(p2_loads(s)) for s in range(9)]
def last(c): return LOADS[c][-1][1]

em(LOADS[0])
em(f"""
v_bfe_u32 v5, v0, 2, 2
v_and_b32 v1, 3, v0
v_mul_u32_u24 v{vR1a}, {WR}, v2
v_lshl_add_u32 v{vR1xa}, v5, 4, v{vR1a}
v_lshl_add_u32 v{vR1a}, v5, 6, v{vR1a}
v_lshl_add_u32 v{vR1a}, v1, 3, v{vR1a}
v_add_u32 v{vR1b}, {2*SLOT}, v{vR1a}
v_lshrrev_b32 v5, 1, v1
v_and_b32 v1, 1, v1
v_lshl_add_u32 v{vR1xa}, v5, 8, v{vR1xa}
v_lshl_add_u32 v{vR1xa}, v1, 3, v{vR1xa}
v_add_u32 v{vR1xa}, 10240, v{vR1xa}
v_add_u32 v{vR1xb}, {2*SLOT}, v{vR1xa}
v_bfe_u32 v5, v0, 1, 3
v_add_u32 v5, 2, v5
v_lshlrev_b32 v1, 1, v2
v_xor_b32 v5, v5, v1
v_and_b32 v5, 7, v5
v_and_b32 v1, 15, v0
v_lshlrev_b32 v1, 7, v1
v_lshl_add_u32 v5, v5, 4, v1
s_add_u32 s62, {sXB}, {XB}
v_add_u32 v{vXR0}, s62, v5
v_xor_b32 v{vXR1}, 16, v{vXR0}
v_lshlrev_b32 v5, 2, v{vTID}
v_add_u32 v5, {BIAS}, v5
v_lshlrev_b32 v2, 4, v2
v_add_u32 v2, {BIAS}, v2
""", W(vm=[bl1]), f"""
v_lshlrev_b32 v6, 16, v6
v_lshlrev_b32 v7, 16, v7
ds_write_b32 v5, v6
ds_write_b32 v5, v7 offset:1024
s_waitcnt lgkmcnt(0)
s_barrier
""")
for ft in range(18):
    em(f"ds_read_b128 {rg(hp(ft, 0), 0, 4)}, v2 offset:{64*ft}")
    if ft == 8: em(W(lgkm0=True))
em(LOADS[1])
em(W(vm=[last(0)], lgkm0=True), "s_barrier", stamp(3))

def p1_reads(c, t):
    sl = c % 3; ring = WRING + 8 * ((21 * c + t) % 4); o = []
    for s in range(2):
        for rho in range(2):
            if t < 20:
                ad = vR1a if sl < 2 else vR1b
                off = (sl % 2) * SLOT + 1024 * (t // 2) + 512 * s + 256 * rho + 32 * (t % 2)
            else:
                ad = vR1xa if sl < 2 else vR1xb
                off = (sl % 2) * SLOT + 128 * s + 64 * rho
            o.append(I(f"ds_read_b64_tr_b16 {v(ring + 4*s + 2*rho, 2)}, v{ad} offset:{off}"))
    return o
def p1_acc(t, T): return hp(t, T) if t < 18 else ("v", PROJ + 8 * (t - 18) + 4 * T)
RD = {(c, t): p1_reads(c, t) for c in range(9) for t in range(21)}
def xreg(c, T, s): return v(XR + 16*(c%2) + 8*T + 4*s, 4)
XRD = {c: [I(f"ds_read_b128 {xreg(c, T, s)}, v{vXR1 if s else vXR0} offset:{16384*(c%2) + 2048*T}") for T in (1, 0) for s in range(2)] for c in range(9)}

def p2_reads(s, t):
    o = []
    for k in range(2):
        for rho in range(2):
            o.append(I(f"ds_read_b64_tr_b16 {a_(AW[t%3] + 4*k + 2*rho, 2)}, v{vR2} offset:{2*WR*k + 512*t + 256*rho}"))
    return o
RD2 = {(s, t): p2_reads(s, t) for s in range(9) for t in range(9)}

gl = [I(f"buffer_load_dwordx4 {v(GATE,4)}, v{vT0}, {SX}, 0 offen"), I(f"buffer_load_dwordx4 {v(GATE+4,4)}, v{vT0}, {SX}, 0 offen offset:16"),
      I(f"buffer_load_dword v{GATE+8}, v{vT0}, {SX}, 0 offen offset:32"),
      I(f"buffer_load_dwordx4 {v(GATE+10,4)}, v{vT1}, {SGW}, 0 offen"), I(f"buffer_load_dwordx4 {v(GATE+14,4)}, v{vT1}, {SGW}, 0 offen offset:16"),
      I(f"buffer_load_dword v{GATE+18}, v{vT1}, {SGW}, 0 offen offset:32")]
fill_c0 = f"""
s_lshl_b32 s62, {sI}, 4
s_add_u32 s62, s62, {sJ}
s_lshl_b32 s63, s62, 3
v_lshrrev_b32 v{vT2}, 5, v{vTID}
v_add_u32 v{vT2}, s63, v{vT2}
v_and_b32 v{vT1}, 31, v0
v_mul_u32_u24 v{vT1}, 36, v{vT1}
v_mul_u32_u24 v{vT0}, 1152, v{vT2}
v_add_u32 v{vT0}, v{vT0}, v{vT1}
s_lshl_b32 s62, s62, 2
s_add_u32 s62, s62, {sW}
s_lshl_b32 s62, s62, 7
s_add_u32 s62, s62, {WS_PF}
v_mov_b32 v{vFLG}, {OOB}
v_mov_b32 v{vONE}, 0
v_writelane_b32 v{vFLG}, s62, 0
s_lshl_b32 s62, {sI}, 13
s_add_u32 s62, s62, {WS_PF}
s_mul_i32 s63, {sW}, {WS_OF - WS_PF}
s_add_u32 s62, s62, s63
s_lshr_b32 s63, {sW}, 1
s_or_b32 s63, s63, {sJ}
s_cmp_eq_u32 s63, 0
s_cselect_b32 s62, s62, {OOB}
s_cselect_b32 s63, 7, 0
v_lshlrev_b32 v{vCLR}, s63, v0
v_add_u32 v{vCLR}, s62, v{vCLR}
"""
clr = [I(f"buffer_store_dword v{vONE}, v{vCLR}, {SWS}, 0 offen sc1")]
g_acc = GATE + 9; g0, g1, g2, g3 = GATE + 19, GATE + 20, GATE + 21, GATE + 22
gate_math = [f"v_mov_b32 v{g_acc}, 0"]
for d in range(9):
    xx = GATE + d; ww = GATE + 10 + d
    gate_math += [f"v_lshlrev_b32 v{g0}, 16, v{xx}", f"v_lshlrev_b32 v{g1}, 16, v{ww}", f"v_and_b32 v{g2}, 0xffff0000, v{xx}", f"v_and_b32 v{g3}, 0xffff0000, v{ww}",
                  f"v_fmac_f32 v{g_acc}, v{g0}, v{g1}", f"v_fmac_f32 v{g_acc}, v{g2}, v{g3}"]
pad2 = lambda a, b: [a, b]
gate_red = [
    f"v_lshlrev_b32 v{vT2}, 2, v{vT2}", f"v_add_u32 v{vT2}, {WS_G}, v{vT2}",
    f"v_add_f32_dpp v{g_acc}, v{g_acc}, v{g_acc} row_shr:1 row_mask:0xf bank_mask:0xf bound_ctrl:1",
    f"v_and_b32 v{g0}, 31, v0", f"v_cmp_eq_u32 vcc, 31, v{g0}",
    f"v_add_f32_dpp v{g_acc}, v{g_acc}, v{g_acc} row_shr:2 row_mask:0xf bank_mask:0xf bound_ctrl:1",
    f"v_mov_b32 v{g1}, {OOB}", f"v_mov_b32 v{vGA}, {hex(f2u(-2*math.sqrt(2/math.pi)*math.log2(math.e)))}",
    f"v_add_f32_dpp v{g_acc}, v{g_acc}, v{g_acc} row_shr:4 row_mask:0xf bank_mask:0xf bound_ctrl:1",
    f"v_cndmask_b32 v{vT2}, v{g1}, v{vT2}, vcc", f"v_mov_b32 v{vIDX}, 0xdddddddd",
    f"v_add_f32_dpp v{g_acc}, v{g_acc}, v{g_acc} row_shr:8 row_mask:0xf bank_mask:0xf bound_ctrl:1",
    f"v_mov_b32 v{vONE}, 1", f"v_mov_b32 v{vSIG}, 0x1000",
    f"v_add_f32_dpp v{g_acc}, v{g_acc}, v{g_acc} row_bcast:15 row_mask:0xa bank_mask:0xf",
    f"v_mul_f32 v{g_acc}, {hex(f2u(-math.log2(math.e)))}, v{g_acc}",
    f"v_exp_f32 v{g_acc}, v{g_acc}", f"s_mov_b32 {sGB}, {hex(f2u(-2*math.sqrt(2/math.pi)*math.log2(math.e)*0.044715))}",
    f"v_add_f32 v{g_acc}, 1.0, v{g_acc}", f"v_rcp_f32 v{g_acc}, v{g_acc}", f"s_mov_b32 {sQS}, {hex(f2u(math.log2(math.e)/math.sqrt(18)))}"]
gst = I(f"buffer_store_dword v{g_acc}, v{vT2}, {SWS}, 0 offen sc1")
fill_p2 = f"""
s_mul_i32 s62, {sJ}, 288
s_lshl_b32 s63, {sW}, 3
s_add_u32 s62, s62, s63
v_bfe_u32 v{vT0}, v0, 2, 3
v_add_u32 v{vT0}, s62, v{vT0}
v_mul_u32_u24 v{vW2}, 1152, v{vT0}
v_lshrrev_b32 v{vT1}, 5, v0
v_lshl_add_u32 v{vW2}, v{vT1}, 6, v{vW2}
v_and_b32 v{vT0}, 3, v0
v_lshl_add_u32 v{vW2}, v{vT0}, 4, v{vW2}
s_and_b32 s62, {sW}, 1
s_mul_i32 s62, s62, 4608
v_mul_u32_u24 v{vR2}, {WR}, v{vT1}
v_add_u32 v{vR2}, s62, v{vR2}
v_bfe_u32 v{vT0}, v0, 2, 2
v_lshl_add_u32 v{vR2}, v{vT0}, 6, v{vR2}
v_bfe_u32 v{vT0}, v0, 4, 1
v_lshl_add_u32 v{vR2}, v{vT0}, 5, v{vR2}
v_and_b32 v{vT0}, 1, v0
v_lshl_add_u32 v{vR2}, v{vT0}, 4, v{vR2}
v_bfe_u32 v{vT0}, v0, 1, 1
v_lshl_add_u32 v{vR2}, v{vT0}, 3, v{vR2}
s_lshl_b32 s62, {sW}, 11
s_add_u32 s62, s62, {HB}
v_lshl_add_u32 v{vHW}, v0, 4, s62
s_xor_b32 s62, {sW}, 1
s_lshl_b32 s62, s62, 11
s_add_u32 s62, s62, {HB}
v_lshl_add_u32 v{vHR}, v0, 4, s62
"""
fill_pe = f"""
s_mul_i32 s62, {sW}, 3072
s_add_u32 s62, s62, {TMP}
v_and_b32 v{vT0}, 15, v0
v_lshrrev_b32 v{vT1}, 4, v0
v_mul_u32_u24 v{vPW2}, 96, v{vT0}
v_add_u32 v{vPW2}, s62, v{vPW2}
v_lshl_add_u32 v{vPW}, v{vT1}, 3, v{vPW2}
v_cmp_gt_u32 vcc, 32, v0
v_xor_b32 v{vT2}, 1, v{vT1}
v_mov_b32 v{vQF}, {sQS}
v_cndmask_b32 v{vT2}, v{vT1}, v{vT2}, vcc
v_cndmask_b32 v{vQF}, 1.0, v{vQF}, vcc
v_lshl_add_u32 v{vPW2}, v{vT2}, 3, v{vPW2}
v_and_b32 v{vT2}, 31, v0
v_mul_u32_u24 v{vPQ}, 96, v{vT2}
v_add_u32 v{vPQ}, s62, v{vPQ}
v_bfe_u32 v{vPV}, v0, 2, 2
v_lshl_add_u32 v{vPV}, v{vT1}, 3, v{vPV}
v_mul_u32_u24 v{vPV}, 96, v{vPV}
v_and_b32 v{vS1}, 3, v0
v_lshl_add_u32 v{vPV}, v{vS1}, 3, v{vPV}
v_add_u32 v{vPV}, s62, v{vPV}
s_mul_i32 s60, {sI}, {CH}
s_lshl_b32 s62, {sW}, 10
s_lshl_b32 s63, {sJ}, 9
s_add_u32 s62, s62, s63
s_add_u32 s62, s62, s60
s_cmp_lt_u32 {sJ}, 2
s_cselect_b32 s62, s62, {OOB}
v_lshl_add_u32 v{vS1}, v{vT2}, 4, s62
s_lshr_b32 s62, {sW}, 1
s_lshl_b32 s62, s62, 8
s_and_b32 s63, {sW}, 1
s_lshl_b32 s63, s63, 2
s_add_u32 s62, s62, s63
s_add_u32 s62, s62, s60
s_add_u32 s62, s62, 4096
s_cmp_eq_u32 {sJ}, 4
s_cselect_b32 s62, s62, {OOB}
v_lshl_add_u32 v{vS2}, v{vT2}, 3, s62
v_mov_b32 v{vT2}, {OOB}
v_cndmask_b32 v{vS1}, v{vT2}, v{vS1}, vcc
v_cndmask_b32 v{vS2}, v{vT2}, v{vS2}, vcc
s_mul_i32 s62, {sW}, 1216
s_add_u32 s62, s62, s60
s_add_u32 s62, s62, {4608 - 128}
s_cmp_eq_u32 {sJ}, 3
s_cselect_b32 s63, 128, 0
s_cmp_eq_u32 {sJ}, 5
s_cselect_b32 s63, 160, s63
s_cselect_b32 s61, 13, 8
s_cselect_b32 s69, 13, 99
s_add_u32 s62, s62, s63
s_lshr_b32 s63, 0x2c, {sJ}
s_bitcmp1_b32 s63, 0
s_cselect_b32 s61, s61, 99
v_mul_u32_u24 v{vS3}, 304, v{vT1}
v_lshl_add_u32 v{vS3}, v{vT0}, 4, v{vS3}
v_add_u32 v{vS3}, s62, v{vS3}
v_cmp_eq_u32 s[82:83], s69, v{vT0}
v_add_u32 v{vT1}, 48, v{vS3}
v_cmp_le_u32 vcc, s61, v{vT0}
v_cndmask_b32 v{vS3}, v{vS3}, v{vT1}, s[82:83]
v_mov_b32 v{vT0}, 0x3f803f80
v_cndmask_b32 v{vS3}, v{vT2}, v{vS3}, vcc
"""
fill_at = f"""
v_lshlrev_b32 v{vKVD}, 4, v{vTID}
s_lshl_b32 {sWKV}, {sW}, 10
s_mul_i32 {sWWO}, {sW}, {WOR}
s_add_u32 {sWWO}, {sWWO}, {WOB}
s_lshl_b32 s62, {sI}, 4
s_cmp_lt_u32 {sJ}, 6
s_cselect_b32 s62, s62, 0x1000
s_cmp_eq_u32 {sW}, 0
s_cselect_b32 s62, s62, 0x1000
v_writelane_b32 v{vSIG}, s62, 0
v_and_b32 v{vG1}, 15, v0
v_lshlrev_b32 v{vG1}, 4, v{vG1}
s_lshr_b32 {sTH}, {sJ}, 3
s_and_b32 {sCG}, {sJ}, 7
s_lshr_b32 s62, {sW}, 1
s_lshl_b32 s63, {sI}, 1
s_add_u32 s62, s62, s63
s_lshl_b32 s62, s62, 4
s_add_u32 s62, s62, {sJ}
s_mul_i32 s62, s62, {R}
s_and_b32 s63, {sW}, 1
s_mul_i32 s63, s63, {36864 + 512}
s_add_u32 s62, s62, s63
s_add_u32 s62, s62, {WS_P}
v_lshrrev_b32 v{vPS0}, 5, v0
v_lshlrev_b32 v{vPS0}, 10, v{vPS0}
v_and_b32 v{vPS1}, 31, v0
v_lshl_add_u32 v{vPS0}, v{vPS1}, 4, v{vPS0}
v_add_u32 v{vPS0}, s62, v{vPS0}
v_xor_b32 v{vPS1}, 512, v{vPS0}
"""

def place(slots, pairs, s0, s1):
    n = len(pairs)
    for k, (pre, op) in enumerate(pairs):
        sidx = s0 + (k * (s1 - s0)) // n
        while len(slots[sidx]) > 1 and slots[sidx][1].kind == "salu" and sidx + 1 < len(slots): sidx += 1
        pre = list(flat([pre]))
        for y in reversed(pre): slots[sidx].insert(1, y)
        if pre and slots[sidx][-1] is pre[-1] and getattr(op, "dma", False) and sidx + 1 < len(slots):
            slots[sidx + 1].append(op)
        else:
            slots[sidx].append(op)

em(XRD[0], RD[0, 0], RD[0, 1], W(lgkm=XRD[0]), RD[0, 2], W(lgkm=RD[0, 0]))
def put(slots, k, pre, op):
    pre = list(flat([pre])); j = k - 1; rest = []
    for y in reversed(pre):
        while j >= 0 and not any(z.kind == "vmem" for z in slots[j]) and len(slots[j]) > 1 and slots[j][1].kind == "salu": j -= 1
        if j >= max(0, k - 4) and not any(z.kind == "vmem" for z in slots[j]): slots[j].insert(1, y)
        else: rest.insert(0, y)
    slots[k - 1] += rest
    slots[k].append(op)
for c in range(9):
    slots = []
    for t in range(21):
        ring = WRING + 8 * ((21 * c + t) % 4)
        for T in (1, 0):
            for s in range(2):
                d = p1_acc(t, T)
                cc = rg(d, 0, 4)
                if c == 0 and s == 0: cc = rg(p1_acc(t, 0), 0, 4) if t < 18 else "0"
                slots.append([I(f"v_mfma_f32_16x16x32_bf16 {rg(d,0,4)}, {v(ring + 4*s, 4)}, {xreg(c, T, s)}, {cc}")])
    tail = []
    if c < 8: tail = RD[c + 1, 0] + RD[c + 1, 1] + RD[c + 1, 2]
    else: tail = RD2[0, 0] + RD2[0, 1]
    for t in range(21):
        b = 4 * t
        if t < 18:
            slots[b + 3].append(W(lgkm=RD[c, t + 1]))
            slots[b] += RD[c, t + 3][:2]; slots[b + 1] += RD[c, t + 3][2:]
        elif t == 18:
            slots[b].append(W(vm=[last(c + 1)]))
            if c < 8: slots[b] += XRD[c + 1][:2]; slots[b + 1] += XRD[c + 1][2:]
            slots[b + 3] += [W(lgkm=RD[c, 20]), I("s_barrier")] + stamp(2)
        elif t == 19:
            for m in range(4): slots[b + m] += tail[2 * m:2 * m + 2]
        elif t == 20 and c < 8:
            slots[b] += tail[8:10]; slots[b + 1] += tail[10:12]
            slots[b + 3].append(W(lgkm=RD[c + 1, 0]))
    pairs = list(LOADS[c + 2])
    extra = []
    if c == 1: extra = gl + clr
    if c == 5: extra = [gst]
    for k, op in enumerate(extra): put(slots, 4 * k + 3, None, op)
    for k, (pre, op) in enumerate(pairs):
        put(slots, 4 * ((k * 18) // len(pairs) if len(pairs) < 12 else k) + 2, pre, op)
    fl = {0: fill_c0, 2: fill_p2, 3: gate_math, 4: gate_red, 5: fill_at, 6: fill_pe}.get(c)
    if fl: spread(slots, [fl], 2 if c != 5 else 4, 72, 16)
    em(slots)
em(stamp())

def gelu(s):
    o = []; H = HOWN[s % 2]; wr = []
    groups = [(k, T) for k in range(2) for T in range(2)]
    for gi, (k, T) in enumerate(groups):
        src = hp(2 * s + k, T)
        t = [GT + 4 + e for e in range(4)]
        if src[0] == "a":
            u = [GT + e for e in range(4)]
            o += [f"v_accvgpr_read_b32 v{u[e]}, a{src[1]+e}" for e in range(4)]
        else: u = [src[1] + e for e in range(4)]
        o += [f"v_mul_f32 v{t[e]}, v{u[e]}, v{u[e]}" for e in range(4)]
        o += [f"v_fma_f32 v{t[e]}, v{t[e]}, {sGB}, v{vGA}" for e in range(4)]
        o += [f"v_mul_f32 v{t[e]}, v{t[e]}, v{u[e]}" for e in range(4)]
        o += [f"v_exp_f32 v{t[e]}, v{t[e]}" for e in range(4)]
        o += [f"v_add_f32 v{t[e]}, 1.0, v{t[e]}" for e in range(4)]
        o += [f"v_rcp_f32 v{t[e]}, v{t[e]}" for e in range(4)]
        o += [f"v_mul_f32 v{t[e]}, v{t[e]}, v{u[e]}" for e in range(4)]
        o += [f"v_cvt_pk_bf16_f32 v{H + 4*k + 2*T + r}, v{t[2*r]}, v{t[2*r+1]}" for r in range(2)]
        if T == 1:
            w = I(f"ds_write_b128 v{vHW}, {v(H + 4*k, 4)} offset:{8192*(s%2) + 1024*k}")
            sw = [f"v_permlane16_swap_b32 v{H+4*k+r}, v{H+4*k+2+r}" for r in range(2)] + [w]
            wr.append(w)
            o.append(("late", sw))
    res = []; pend = None; cnt = 0
    for x in o:
        if isinstance(x, tuple): pend = x[1]; cnt = 0; continue
        res.append(x)
        if pend:
            cnt += 1
            if cnt == 4: res += pend; pend = None
    if pend: res += ["s_nop 1"] + pend
    return list(flat(res))

g0s = gelu(0)
pe = []
for t in range(3):
    for T in range(2):
        b = PROJ + 8 * t + 4 * T
        pe += [f"v_mul_f32 v{b+e}, {sQS if t < 2 else 'v%d' % vQF}, v{b+e}" for e in range(4)]
        pe += [f"v_cvt_pk_bf16_f32 v{b+r}, v{b+2*r}, v{b+2*r+1}" for r in range(2)]
        pe += [f"ds_write_b64 v{vPW if t < 2 else vPW2}, {v(b, 2)} offset:{1536*T + 32*t}"]
em(g0s[:30], pe)
em(f"v_lshrrev_b32 v{vT1}, 5, v0", f"v_lshl_add_u32 v{vT1}, v{vT1}, 4, v{vPQ}", g0s[30:60], W(lgkm0=True))
D1 = XR; D2 = XR + 4
em(f"""
ds_read_b128 {v(D1,4)}, v{vPQ} offset:80
ds_read_b64_tr_b16 {v(D2,2)}, v{vPV} offset:64
ds_read_b64_tr_b16 {v(D2+2,2)}, v{vPV} offset:{64 + 4*96}
ds_read_b128 {a_(AQ,4)}, v{vT1}
ds_read_b128 {a_(AQ+4,4)}, v{vT1} offset:36
ds_read_b32 a{AQR}, v{vPQ} offset:32
ds_read_b32 a{AQR+1}, v{vPQ} offset:68
""", g0s[60:90], W(lgkm0=True))
em([f"v_cndmask_b32 v{D2+e}, v{D2+e}, v{vT0}, s[82:83]" for e in range(4)])
kvst = [I(f"buffer_store_dwordx4 {v(D1,4)}, v{vS1}, {SWS}, 0 offen sc1"), I(f"buffer_store_dword v{D1+3}, v{vS2}, {SWS}, 0 offen sc1"),
        I(f"buffer_store_dwordx4 {v(D2,4)}, v{vS3}, {SWS}, 0 offen sc1")]
em(kvst, g0s[90:], W(lgkm0=True), "s_barrier")
def h_reads(s):
    o = [I(f"ds_read_b128 {a_(AHP[s%2] + 4*k, 4)}, v{vHR} offset:{8192*(s%2) + 1024*k}") for k in range(2)]
    return o
HR = {s: h_reads(s) for s in range(9)}
em(HR[0], stamp(7))

nspin = [0]
def spin_check(load_text, cmp_text):
    k = nspin[0]; nspin[0] += 1
    OUTL.extend(flat([f"""
L_spin{k}:
s_mov_b32 {sSP}, {OPT['spin']}
L_spin{k}_l:
s_sleep 2
{load_text}
s_sub_u32 {sSP}, {sSP}, 1
s_waitcnt vmcnt(0)
s_cbranch_scc1 L_back{k}
{cmp_text}
s_nop 1
s_cbranch_vccnz L_spin{k}_l
s_branch L_back{k}
"""]))
    return list(flat([cmp_text, "s_nop 0", f"s_cbranch_vccnz L_spin{k}", f"L_back{k}:"]))

def kv_dma(d):
    o = []
    for n in range(5):
        o.append([[I(f"s_mov_b32 {sOM}, {WS_KV + d*DC + 4096*n}"), I(f"s_add_u32 m0, {sWKV}, {KVS[d%3] + 4096*n}")],
                  I(f"buffer_load_dwordx4 v{vKVD}, {SWS}, {sOM} offen sc1 lds")])
    return o
KVD = {d: link(kv_dma(d)) for d in range(8)}
sig1 = I(f"buffer_atomic_add v{vONE}, v{vSIG}, {SDBG}, 0 offen sc1")
poll1_t = f"buffer_load_dword v{vPOLL}, v{vG1}, {SDBG}, 0 offen sc1"
poll1 = I(poll1_t)

def convert(t, o):
    src = acc2(t, o); d = packed(t, o); r = []
    if src[0] == "v":
        return [f"v_cvt_pk_bf16_f32 v{d+e}, v{src[1]+2*e}, v{src[1]+2*e+1}" for e in range(8)]
    for h in range(2):
        r += [f"v_accvgpr_read_b32 v{GT+e}, a{src[1]+8*h+e}" for e in range(8)]
        r += [f"v_cvt_pk_bf16_f32 v{d+4*h+e}, v{GT+2*e}, v{GT+2*e+1}" for e in range(4)]
    return r

slots = []
for s in range(9):
    for t in range(9):
        wf = AW[t % 3]
        for o in range(2):
            for k in range(2):
                d = rg(acc2(t, o), 0, 16)
                b = v(HOWN[s % 2] + 4 * k, 4) if o == 0 else a_(AHP[s % 2] + 4 * k, 4)
                slots.append([I(f"v_mfma_f32_32x32x16_bf16 {d}, {a_(wf + 4*k, 4)}, {b}, {'0' if s == 0 and k == 0 else d}")])
BP = 29
for s in range(9):
    for t in range(9):
        b = 36 * s + 4 * t
        nx = (s, t + 2) if t < 7 else (s + 1, t - 7)
        n1 = (s, t + 1) if t < 8 else (s + 1, 0)
        if n1[0] < 9 and (s, t) != (0, 0) and t != 7: slots[b + 3].append(W(lgkm=RD2[n1]))
        if t == 0: slots[b + 1].append(W(lgkm=HR[s]))
        if nx[0] < 9:
            o = 2 if t == 7 else 0
            slots[b + o] += RD2[nx][:2]; slots[b + o + 1] += RD2[nx][2:]
            if t == 8: slots[b + 2] += HR[s + 1]
    pos = [2, 6, 10, 14, 18, 22, 26, 28, 35]
    if s <= 6:
        for k, (pre, op) in enumerate(LOADS[9 + s + 2]): put(slots, 36 * s + pos[k], pre, op)
    if s >= 7:
        for k, (pre, op) in enumerate(KVD[s - 7]): put(slots, 36 * s + 4 * k + 2, pre, op)
put(slots, 36 * 2 + 3, None, sig1)
put(slots, 36 * 6 + 3, None, poll1)
for s in range(8):
    spread(slots, gelu(s + 1), max(36 * s - (36 - BP - 1), 0), 36 * s + BP - 1, 32)
for s in range(9):
    b = 36 * s + BP
    vm = [last(9 + s + 1)] if s < 8 else [KVD[0][-1][1]]
    if s == 1: vm += kvst + clr + [gst]
    if s == 6: vm += [poll1]
    ex = []
    if s < 8: ex.append(I(f"v_add_u32 v{vR2}, {(SLOT if (s + 1) % 3 else -2 * SLOT) & 0xffffffff}, v{vR2}"))
    if s == 6: ex += spin_check(poll1_t, f"v_cmp_ne_u32 vcc, 6, v{vPOLL}")
    slots[b] = slots[b][:1] + [W(vm=vm, lgkm0=True), I("s_barrier")] + ex + stamp(4) + slots[b][1:]
b8 = 36 * 8
for n, (t, o) in enumerate(ORD[:15]):
    s0 = b8 + 2 * n + 5
    spread(slots, convert(t, o), s0, min(s0 + 2, b8 + 36), 32)
vK, vK2, vV = vR2, vW2, vHW
AK = [32, 36]; AK2 = [40, 42]; AV = [44, 52]; AO = [0, 16]; APL = 64
SB = [192, 208, 224]; CR = [240, 16]; Q2 = 32
def kv_off(kt):
    d, r = divmod(kt, 8)
    return KVS[d % 3] - KVB + (r // 4) * CH, r % 4
def k_read(kt):
    base, r = kv_off(kt); o = [I(f"ds_read_b128 {a_(AK[kt%2], 4)}, v{vK} offset:{base + 1024*r}")]
    if r == 0: o.append(I(f"ds_read_b64 {a_(AK2[(kt//4)%2], 2)}, v{vK2} offset:{base + 4096}"))
    return o
def v_read(kt):
    base, r = kv_off(kt)
    return [I(f"ds_read_b128 {a_(AV[kt%2] + 4*e, 4)}, v{vV} offset:{base + 4608 + 1216*r + 608*e}") for e in range(2)]
KR = {kt: k_read(kt) for kt in range(64)}; VR = {kt: v_read(kt) for kt in range(64)}
at_addr = f"""
v_lshlrev_b32 v{vK2}, 3, v0
v_add_u32 v{vK2}, {KVB}, v{vK2}
v_bfe_u32 v{vHR}, v0, 3, 2
v_and_b32 v{vTMP}, 3, v0
v_lshl_add_u32 v{vHR}, v{vHR}, 2, v{vTMP}
v_bfe_u32 v{vTMP}, v0, 2, 1
v_cmp_eq_u32 vcc, 9, v{vHR}
v_mad_u32_u24 v{vV}, v{vTMP}, 9, v{vHR}
v_lshrrev_b32 v{vTMP}, 5, v0
v_cndmask_b32 v{vV}, v{vV}, 18, vcc
v_cmp_lt_u32 vcc, 9, v{vHR}
v_mad_u32_u24 v{vV}, v{vTMP}, 19, v{vV}
v_lshlrev_b32 v{vV}, 4, v{vV}
v_add_u32 v{vV}, {KVB}, v{vV}
v_mov_b32 v{vTMP}, 0x40000
v_cndmask_b32 v{vV}, v{vV}, v{vTMP}, vcc
"""
spread(slots, [at_addr], b8, b8 + 5, 32)
zero_o = [I(f"ds_read_b128 {a_(4*e, 4)}, v{vTMP}") for e in range(8)]
for e in range(8): slots[b8 + 6 + 2 * e + (e > 0) * 0].append(zero_o[e])
slots[b8 + 32] = slots[b8 + 32][:1] + list(flat([f"v_lshlrev_b32 v{vK}, 4, v0", f"v_add_u32 v{vK}, {KVB}, v{vK}"])) + KR[0] + VR[0] + slots[b8 + 32][1:]
em(slots)
em([convert(t, o) for t, o in ORD[15:18]], stamp(13))

def q2(h, kt): return Q2 + 8 * h + 2 * (kt % 4)
em("v_cmp_gt_u32 vcc, 32, v0")
for h in range(2):
    b = Q2 + 8 * h
    em(f"""
v_accvgpr_read_b32 v{vTMP}, a{AQR+h}
v_mov_b32 v{b+1}, 0
v_mov_b32 v{b+2}, 0
v_mov_b32 v{b+5}, 0
v_mov_b32 v{b+6}, 0
v_cndmask_b32 v{b}, 0, v{vTMP}, vcc
v_cndmask_b32 v{b+3}, 0, v{vTMP}, vcc
v_cndmask_b32 v{b+4}, v{vTMP}, 0, vcc
v_cndmask_b32 v{b+7}, v{vTMP}, 0, vcc
""")
def qk(h, kt, d, c, ka=None, k2=None):
    ka = ka or a_(AK[kt % 2], 4); k2 = k2 or a_(AK2[(kt // 4) % 2], 2)
    return (I(f"v_mfma_f32_32x32x16_bf16 {v(d,16)}, {ka}, {a_(AQ + 4*h, 4)}, {c}"),
            I(f"v_mfma_f32_32x32x8_bf16 {v(d,16)}, {k2}, {v(q2(h, kt), 2)}, {v(d,16)}"))
def maxtree(s, dst, init=None):
    o = [f"v_max3_f32 v{dst}, v{s}, v{s+1}, {('v%d' % init) if init is not None else 'v%d' % (s+1)}"]
    o += [f"v_max3_f32 v{dst}, v{s+2*e}, v{s+2*e+1}, v{dst}" for e in range(1, 8)]
    return o
def set_c(h, m, tmp):
    return [f"v_mov_b32 v{tmp}, v{m}", "s_nop 1", f"v_permlane32_swap_b32 v{m}, v{tmp}", f"v_max_f32 v{m}, v{m}, v{tmp}"] + \
           [f"v_sub_f32 v{CR[h]+e}, 0, v{m}" for e in range(16)]
vPLM, vPLH, vWOa, vWOb, vPP = vHR, vGA, vSIG, vPOLL, vTMP
bg_addr = f"""
s_lshl_b32 s62, {sI}, 1
s_add_u32 s62, s62, {sTH}
s_mul_i32 s62, s62, {16*R}
s_mul_i32 s63, {sCG}, 9216
s_add_u32 s62, s62, s63
s_lshl_b32 s63, {sW}, 8
s_add_u32 s62, s62, s63
s_add_u32 s62, s62, {WS_P}
s_and_b32 s63, {sCG}, 1
s_lshl_b32 s60, s63, 4
s_xor_b32 s61, s63, 1
s_lshl_b32 s61, s61, 7
v_lshrrev_b32 v{vPLM}, 4, v0
v_mul_u32_u24 v{vPLM}, {R}, v{vPLM}
v_and_b32 v{vPLH}, 15, v0
v_lshl_add_u32 v{vPLM}, v{vPLH}, 4, v{vPLM}
v_add_u32 v{vPLM}, s62, v{vPLM}
s_lshl_b32 s63, s61, 6
v_add_u32 v{vPLH}, s63, v{vPLM}
s_lshl_b32 s63, s60, 6
v_add_u32 v{vPLM}, s63, v{vPLM}
s_mul_i32 s62, {sCG}, 144
s_add_u32 s60, s60, s62
s_add_u32 s61, s61, s62
s_mul_i32 s62, {sW}, {9*1152}
v_lshrrev_b32 v{vWOa}, 5, v0
v_bfe_u32 v{vWOb}, v0, 2, 3
v_mad_u32_u24 v{vWOa}, v{vWOa}, 36, v{vWOb}
v_mul_u32_u24 v{vWOa}, 1152, v{vWOa}
v_add_u32 v{vWOa}, s62, v{vWOa}
v_and_b32 v{vG1}, 3, v0
v_lshl_add_u32 v{vWOb}, v{vG1}, 2, v{vWOa}
v_lshl_add_u32 v{vWOa}, v{vG1}, 4, v{vWOa}
v_add_u32 v{vWOa}, s60, v{vWOa}
v_add_u32 v{vWOb}, s61, v{vWOb}
"""
bga = list(flat([bg_addr]))
em(W(lgkm0=True), qk(0, 0, SB[1], "0"), qk(1, 0, SB[2], "0"), bga[:14], maxtree(SB[1], SB[0]), maxtree(SB[2], SB[0] + 1),
   set_c(0, SB[0], SB[0] + 2), set_c(1, SB[0] + 1, SB[0] + 2), qk(0, 0, SB[0], v(CR[0], 16)), bga[14:])

slots = []
for n in range(128):
    kt, h = divmod(n, 2); s0 = SB[n % 3]
    ex = [I(f"v_exp_f32 v{s0+e}, v{s0+e}") for e in range(16)]
    if n < 127:
        m1, m2 = qk((n + 1) % 2, (n + 1) // 2, SB[(n + 1) % 3], v(CR[(n + 1) % 2], 16))
    else: m1 = m2 = None
    p2 = None
    if n > 0:
        km, hm = divmod(n - 1, 2)
        p2 = I(f"v_smfmac_f32_32x32x32_bf16 {a_(AO[hm],16)}, {a_(AV[km%2] + 4, 4)}, {v(SB[(n-1)%3] + 8, 8)}, v{vIDX}")
    p1 = I(f"v_smfmac_f32_32x32x32_bf16 {a_(AO[h],16)}, {a_(AV[kt%2], 4)}, {v(s0, 8)}, v{vIDX}")
    u = [[m1], [m2], [p2], [p1]]
    if h == 0 and kt < 63:
        u[0] += KR[kt + 1]; u[2] += VR[kt + 1]; u[3].append(W(lgkm=KR[kt + 1]))
    if h == 1 and kt < 63:
        if n % 16 == 13 and n // 16 < 7: u[3] += [W(vm=[KVD[n // 16 + 1][-1][1]], lgkm0=True), I("s_barrier")]
        else: u[3].append(W(lgkm0=True))
    slots.append((u, ex))
def bg(n, pos, pre, op):
    u = slots[n][0]
    pre = list(flat([pre]))
    if pos == 2: u[2] += pre + ([I("s_nop 0")] if getattr(op, "dma", False) and len(pre) else []) + [op]
    else:
        u[2] += pre; u[3].append(op)
events = {}
def sched(pairs, n0, n1):
    for k, pr in enumerate(pairs):
        n = n0 + (k * (n1 - n0)) // len(pairs)
        events.setdefault(n, []).append(pr)
for d in range(2, 8): sched(KVD[d], 16 * (d - 2) + 0, 16 * (d - 2) + 12)
PST = []
for t in range(9):
    for o in range(2):
        for pi in range(2):
            PST.append([I(f"s_mov_b32 {sOS}, {4096*t}") if o == 0 and pi == 0 else None,
                        I(f"buffer_store_dwordx4 {v(packed(t,o) + 4*pi, 4)}, v{vPS0 + o}, {SWS}, {sOS} offen offset:{2048*pi} sc1")])
PST = link(PST); sched(PST, 0, 48)
pflag = I(f"buffer_store_dword v{vONE}, v{vFLG}, {SWS}, 0 offen sc1")
sched([[W(vm=[PST[-1][1]]), pflag]], 54, 55)
WOD = []
for c in range(9):
    if c == 8:
        WOD.append([f"""
s_mul_i32 s62, {sW}, {144*1152}
v_lshrrev_b32 v{vWOa}, 4, v0
v_bfe_u32 v{vWOb}, v0, 2, 1
v_lshl_add_u32 v{vWOa}, v{vWOa}, 1, v{vWOb}
v_bfe_u32 v{vWOb}, v0, 3, 1
v_lshl_add_u32 v{vWOa}, v{vWOa}, 1, v{vWOb}
v_mad_u32_u24 v{vWOa}, v{vWOa}, 9, 8
v_mul_u32_u24 v{vWOa}, 1152, v{vWOa}
v_add_u32 v{vWOa}, s62, v{vWOa}
v_lshl_add_u32 v{vWOb}, v{vG1}, 2, v{vWOa}
v_lshl_add_u32 v{vWOa}, v{vG1}, 4, v{vWOa}
v_add_u32 v{vWOa}, s60, v{vWOa}
""", I(f"v_add_u32 v{vWOb}, s61, v{vWOb}")])
    so = (72 * 1152 * c) if c < 8 else 0
    WOD.append([[I(f"s_mov_b32 {sOQ}, {so}"), I(f"s_add_u32 m0, {sWWO}, {2304*c}")], I(f"buffer_load_dwordx4 v{vWOa}, {SWO}, {sOQ} offen lds")])
    WOD.append([I(f"s_add_u32 m0, {sWWO}, {2304*c + 1024 - 64}"), I(f"buffer_load_dwordx4 v{vWOa}, {SWO}, {sOQ} offen offset:64 lds")])
    WOD.append([I(f"s_add_u32 m0, {sWWO}, {2304*c + 2048}"), I(f"buffer_load_dword v{vWOb}, {SWO}, {sOQ} offen lds")])
WOD = link(WOD); sched(WOD, 40, 68)
TACC = 48; TSEL = 68; TB2 = 76; vG2 = 86; vOP, vOS, vOL, vOLR, vOUT, vOUTH, vWR, vWRH, vTA, vTB = range(87, 97); OF = 100; TW = 172
poll2_t = f"buffer_load_dword v{vTB}, v{vPP}, {SWS}, 0 offen sc1"
poll2 = I(poll2_t)
sched([[f"""
s_lshl_b32 s62, {sI}, 6
s_lshl_b32 s63, {sTH}, 1
s_add_u32 s62, s62, s63
s_lshr_b32 s63, {sCG}, 2
s_add_u32 s63, s63, s62
s_lshl_b32 s63, s63, 7
s_add_u32 s63, s63, {WS_PF}
v_and_b32 v{vTA}, 15, v0
v_lshl_add_u32 v{vPP}, v{vTA}, 9, s63
s_lshr_b32 s63, {sW}, 1
s_add_u32 s63, s63, s62
s_lshl_b32 s63, s63, 7
s_add_u32 s63, s63, {WS_OF}
""", I(f"v_lshl_add_u32 v{vOP}, v{vTA}, 9, s63")]], 57, 58)
sched([[None, poll2]], 66, 67)
sched([[[W(vm=[poll2])], spin_check(poll2_t, f"v_cmp_ne_u32 vcc, 1, v{vTB}")]], 70, 71)
PLD = []
for m in range(4):
    for c in range(9):
        pre = I(f"s_mov_b32 {sOL}, {m*4*R + (4096 if 4 <= c < 8 else 0)}") if c % 4 == 0 else None
        PLD.append([pre, I(f"buffer_load_dwordx4 {a_(APL + 4*(9*m + c), 4)}, v{vPLM if c < 8 else vPLH}, {SWS}, {sOL} offen offset:{1024*(c%4)} sc1")])
PLD = link(PLD); sched(PLD, 71, 124)
gld1 = I(f"buffer_load_dword v{vG1}, v{vTB}, {SWS}, 0 offen sc1"); gld2 = I(f"buffer_load_dword v{vG2}, v{vTB}, {SWS}, 0 offen sc1")
b2l = [I(f"buffer_load_dwordx2 {v(TB2 + 2*t, 2)}, v{vTB}, {SB2}, {'s60' if t < 4 else 's61'} offen offset:{32*(t%4)}") for t in range(5)]
misc = [[f"""
s_lshl_b32 s62, {sI}, 9
s_lshl_b32 s63, {sW}, 7
s_add_u32 s63, s63, s62
s_add_u32 s63, s63, {WS_G}
v_and_b32 v{vTB}, 31, v0
v_lshl_add_u32 v{vTB}, v{vTB}, 2, s63
""", gld1], [f"""
s_lshl_b32 s63, {sTH}, 8
s_add_u32 s62, s62, s63
s_lshl_b32 s63, {sW}, 6
s_add_u32 s62, s62, s63
s_add_u32 s63, s62, {WS_G}
v_lshl_add_u32 v{vTB}, v{vTA}, 2, s63
""", gld2], [f"""
v_lshrrev_b32 v{vTB}, 4, v0
v_lshlrev_b32 v{vTB}, 3, v{vTB}
""", b2l[0]]] + [[None, x] for x in b2l[1:]]
sched(misc, 98, 112)
for n in range(128):
    u, ex = slots[n]
    ev = events.get(n, [])
    for k, (pre, op) in enumerate(ev):
        pre = list(flat([pre])); ops = list(flat([op]))
        dma = getattr(ops[0], "dma", False)
        pos = [3, 2, 0][len(ev) - 1 - k] if len(ev) <= 3 else 3
        tgt = u[pos]
        prev = {3: u[2], 2: u[0], 0: None}[pos]
        simple = all(y.kind == "salu" and not isinstance(y, W) for y in pre)
        if prev is not None and simple and k == 0 and pre and prev[0] is not None:
            for y in reversed(pre): prev.insert(1, y)
            tgt += ops
        else:
            tgt += pre + ops
    if n in (1, 13, 29, 45, 53, 55, 61, 69, 71, 77, 93, 109): u[0] += stamp(8)
    em(u[0], ex[0:4], u[1], ex[4:8], u[2], ex[8:12], u[3], ex[12:16])
em("s_nop 0", f"v_smfmac_f32_32x32x32_bf16 {a_(AO[1],16)}, {a_(AV[1] + 4, 4)}, {v(SB[127%3] + 8, 8)}, v{vIDX}")
em(stamp(9))

em(f"""
s_lshl_b32 s63, {sI}, 2
s_add_u32 s69, s63, {sW}
s_mul_i32 s69, s69, 36864
s_add_u32 s69, s69, {WS_O}
s_lshl_b32 {sOS}, {sJ}, 11
s_add_u32 {sOS}, {sOS}, s69
s_lshl_b32 {sOL}, {sJ}, 8
s_add_u32 {sOL}, {sOL}, s69
s_add_u32 {sOL}, {sOL}, 32768
v_lshlrev_b32 v{vOS}, 4, v0
v_and_b32 v{vOL}, 31, v0
v_lshrrev_b32 v{vOLR}, 5, v0
v_lshlrev_b32 v{vOLR}, 2, v{vOLR}
v_lshl_add_u32 v{vOL}, v{vOL}, 3, v{vOLR}
""")
OV = [SB[0], SB[1]]
em("L_epi:", "s_nop 3")
for h in range(2): em([f"v_accvgpr_read_b32 v{OV[h]+e}, a{AO[h]+e}" for e in range(10)])
lim = f2u(2.0 ** 60) if not OPT["force_fb"] else f2u(0.5)
em(f"""
v_max3_f32 v{SB[2]}, |v{OV[0]}|, |v{OV[0]+1}|, |v{OV[0]+2}|
v_max3_f32 v{SB[2]+1}, |v{OV[1]}|, |v{OV[1]+1}|, |v{OV[1]+2}|
""")
for e in (3, 5, 7):
    for h in range(2): em(f"v_max3_f32 v{SB[2]+h}, |v{OV[h]+e}|, |v{OV[h]+e+1}|, v{SB[2]+h}")
em(f"""
v_max_f32 v{SB[2]}, v{SB[2]}, v{SB[2]+1}
v_mul_f32 v{SB[2]}, {hex(f2u(2.0**-60))}, v{SB[2]}
v_rcp_f32 v{SB[2]+2}, v{OV[0]+9}
v_add_f32 v{SB[2]}, v{SB[2]}, v{OV[0]+9}
v_rcp_f32 v{SB[2]+3}, v{OV[1]+9}
v_add_f32 v{SB[2]}, v{SB[2]}, v{OV[1]+9}
v_cmp_ngt_f32 vcc, {hex(lim)}, v{SB[2]}
""", W(vm=[gld1]), f"""
s_cbranch_vccnz L_fb
L_fbdone:
v_mul_f32 v{SB[2]+2}, v{SB[2]+2}, v{vG1}
v_mul_f32 v{SB[2]+3}, v{SB[2]+3}, v{vG1}
""")
ost = []
for h in range(2):
    em([f"v_mul_f32 v{OV[h]+e}, v{OV[h]+e}, v{SB[2]+2+h}" for e in range(9)])
    em([f"v_cvt_pk_bf16_f32 v{OV[h]+12+e}, v{OV[h]+2*e}, v{OV[h]+2*e+1}" for e in range(4)])
    ost.append(I(f"buffer_store_dwordx4 {v(OV[h]+12, 4)}, v{vOS}, {SWS}, {sOS} offen offset:{1024*h} sc1")); em(ost[-1])
ost.append(I(f"buffer_store_dword v{SB[2]}, v{vOL}, {SWS}, {sOL} offen sc1"))
em(f"v_cvt_pk_bf16_f32 v{SB[2]}, v{OV[0]+8}, v{OV[1]+8}", ost[-1])
em(f"""
s_mov_b32 {sOM}, {WS_OF - WS_PF}
v_and_b32 v{vWR}, 1, v0
v_lshlrev_b32 v{vWR}, 4, v{vWR}
v_mov_b32 v{vWRH}, 0x3f80
v_lshlrev_b32 v{vWRH}, v{vWR}, v{vWRH}
v_lshrrev_b32 v{vWR}, 1, v{vTA}
""")
for e in range(8):
    em(f"v_cmp_eq_u32 vcc, {e}, v{vWR}")
    t, hh = divmod(e, 2) if e < 8 else (0, 0)
    em(f"v_lshlrev_b32 v{TACC + 4*t + 2*hh}, 16, v{TB2 + e}" if e > 0 else [W(vm=b2l), f"v_lshlrev_b32 v{TACC}, 16, v{TB2}"],
       f"v_and_b32 v{TACC + 4*t + 2*hh + 1}, 0xffff0000, v{TB2 + e}")
    em(f"v_cndmask_b32 v{TSEL + e}, 0, v{vWRH}, vcc")
for e in (8, 9):
    em(f"v_lshlrev_b32 v{TACC + 16 + 2*(e-8)}, 16, v{TB2 + e}", f"v_and_b32 v{TACC + 17 + 2*(e-8)}, 0xffff0000, v{TB2 + e}")
em(W(vm=[PLD[-1][1]]), "s_nop 0")
red = []
for t in range(5):
    for m in range(4):
        for c in ((2 * t, 2 * t + 1) if t < 4 else (8,)):
            red.append([I(f"v_mfma_f32_16x16x32_bf16 {v(TACC + 4*t, 4)}, {v(TSEL + 4*(c%2), 4)}, {a_(APL + 4*(9*m + c), 4)}, {v(TACC + 4*t, 4)}")])
tail_addr = f"""
s_lshl_b32 s62, {sTH}, 1
s_add_u32 s62, s62, s63
s_lshr_b32 s69, {sW}, 1
s_add_u32 s62, s62, s69
s_mul_i32 s62, s62, 36864
s_add_u32 s62, s62, {WS_O}
s_and_b32 s69, {sW}, 1
s_lshl_b32 s69, s69, 4
v_add_u32 v{vOL}, s69, v{vTA}
v_lshrrev_b32 v{vTB}, 4, v0
v_lshlrev_b32 v{vOLR}, 3, v{vOL}
v_lshl_add_u32 v{vOLR}, v{vTB}, 10, v{vOLR}
v_add_u32 v{vOLR}, s62, v{vOLR}
v_lshlrev_b32 v{vOL}, 4, v{vOL}
v_lshl_add_u32 v{vOL}, v{vTB}, 9, v{vOL}
v_add_u32 v{vOL}, s62, v{vOL}
s_lshl_b32 s62, {sI}, 1
s_add_u32 s62, s62, {sTH}
s_lshl_b32 s62, s62, 2
s_add_u32 s62, s62, {sW}
s_mul_i32 s62, s62, {16*1152}
v_mul_u32_u24 v{vOUT}, 1152, v{vTA}
v_lshl_add_u32 v{vOUT}, v{vTB}, 3, v{vOUT}
v_add_u32 v{vOUT}, s62, v{vOUT}
v_cmp_gt_u32 vcc, 32, v0
v_mov_b32 v{vOUTH}, {OOB}
v_mul_u32_u24 v{vWR}, {WOR}, v{vTB}
v_add_u32 v{vWR}, {WOB}, v{vWR}
v_cndmask_b32 v{vOUTH}, v{vOUTH}, v{vOUT}, vcc
v_bfe_u32 v{vTB}, v0, 2, 2
v_lshl_add_u32 v{vWRH}, v{vTB}, 4, v{vWR}
v_lshl_add_u32 v{vWR}, v{vTB}, 6, v{vWR}
v_and_b32 v{vTB}, 3, v0
v_lshl_add_u32 v{vWR}, v{vTB}, 3, v{vWR}
v_and_b32 v{vTB}, 1, v0
v_lshl_add_u32 v{vWRH}, v{vTB}, 3, v{vWRH}
v_sub_f32 v{vG2}, 1.0, v{vG2}
"""
spread(red, [tail_addr], 0, 30, 16)
oflag = I(f"buffer_store_dword v{vONE}, v{vFLG}, {SWS}, {sOM} offen sc1")
em(red, W(vm=ost), oflag)
poll3_t = f"buffer_load_dword v{vTB}, v{vOP}, {SWS}, 0 offen sc1"
def wo_frag(n):
    return a_(4 * n, 4) if n < 64 else v(TW + 4 * ((n - 64) % 20), 4)
def wo_read(n):
    c, r = divmod(n, 10); t, s = divmod(r, 2); o = []
    for rho in range(2):
        d = a_(4 * n + 2 * rho, 2) if n < 64 else v(TW + 4 * ((n - 64) % 20) + 2 * rho, 2)
        if t < 4: o.append(I(f"ds_read_b64_tr_b16 {d}, v{vWR} offset:{2304*c + 1024*(t//2) + 512*s + 256*rho + 32*(t%2)}"))
        else: o.append(I(f"ds_read_b64_tr_b16 {d}, v{vWRH} offset:{2304*c + 2048 + 128*s + 64*rho}"))
    return o
WRD = [wo_read(n) for n in range(90)]
em("s_nop 7", [f"v_mul_f32 v{TACC+e}, v{TACC+e}, v{vG2}" for e in range(20)])
for n in range(84):
    em(WRD[n])
    if n % 6 == 5: em(W(lgkm=WRD[n - 3]))
poll3 = I(poll3_t)
em(stamp(), poll3, W(vm=[poll3], lgkm0=True), spin_check(poll3_t, f"v_cmp_ne_u32 vcc, 1, v{vTB}"), stamp())
OLD = []
for ks in range(16):
    pre = I(f"s_mov_b32 {sOL}, {4096*(ks//2)}") if ks % 2 == 0 else None
    OLD.append(I(f"buffer_load_dwordx4 {v(OF + 4*ks, 4)}, v{vOL}, {SWS}, {sOL} offen offset:{2048*(ks%2)} sc1")); em(pre, OLD[-1])
em(f"s_mov_b32 {sOL}, 32768")
for e in range(4):
    OLD.append(I(f"buffer_load_dwordx2 {v(OF + 64 + 2*e, 2)}, v{vOLR}, {SWS}, {sOL} offen offset:{256*e} sc1")); em(OLD[-1])
for c in range(9):
    em(W(vm=[OLD[2 * c + 1] if c < 8 else OLD[-1]], lgkm0=(c == 8)))
    for r in range(10):
        t, s = divmod(r, 2); n = 10 * c + r
        em(f"v_mfma_f32_16x16x32_bf16 {v(TACC + 4*t, 4)}, {wo_frag(n)}, {v(OF + 8*c + 4*s, 4)}, {v(TACC + 4*t, 4)}")
        if 64 <= n < 70: em(WRD[n + 20])
for t in range(5):
    em([f"v_cvt_pk_bf16_f32 v{TACC + 4*t + r}, v{TACC + 4*t + 2*r}, v{TACC + 4*t + 2*r + 1}" for r in range(2)])
    em(f"buffer_store_dwordx2 {v(TACC + 4*t, 2)}, v{vOUT if t < 4 else vOUTH}, {SOUT}, {'s60' if t < 4 else 's61'} offen offset:{32*(t%4)}")
if OPT["stamps"]:
    em("s_waitcnt vmcnt(0)", stamp(15), f"v_mov_b32 v1, 0")
    for k in range(nst[0]): em(f"v_writelane_b32 v1, s{84+k}, {k}")
    em(f"""
s_lshl_b32 s62, s2, 2
s_add_u32 s62, s62, {sW}
s_lshl_b32 s62, s62, 6
s_add_u32 s62, s62, {WS_ST}
v_cmp_gt_u32 vcc, 16, v0
v_lshlrev_b32 v2, 2, v0
v_mov_b32 v3, {OOB}
v_cndmask_b32 v2, v3, v2, vcc
buffer_store_dword v1, v2, {SWS}, s62 offen
""")
em("L_end:", "s_endpgm")

FK, FK2, FV, FM = 100, 116, 120, 152
fb = [f"""
L_fb:
v_subrev_u32 v{vK}, {KVB}, v{vK}
v_subrev_u32 v{vK2}, {KVB}, v{vK2}
v_cmp_gt_u32 vcc, 0x40000, v{vV}
v_subrev_u32 v{vV}, {KVB}, v{vV}
v_mov_b32 v{FM}, {OOB}
v_cndmask_b32 v{vV}, v{FM}, v{vV}, vcc
v_mov_b32 v{FM}, 0xff7fffff
v_mov_b32 v{FM+1}, 0xff7fffff
s_mov_b32 s62, {WS_KV}
L_fb1:
s_add_u32 s69, s62, 4096
"""]
fbk = [f"buffer_load_dwordx4 {v(FK + 4*r, 4)}, v{vK}, {SWS}, s62 offen offset:{1024*r} sc1" for r in range(4)] + [f"buffer_load_dwordx2 {v(FK2, 2)}, v{vK2}, {SWS}, s69 offen sc1"]
fb += fbk + ["s_waitcnt vmcnt(0)"]
for r in range(4):
    fb += [qk(0, r, SB[0], "0", v(FK + 4 * r, 4), v(FK2, 2)), qk(1, r, SB[1], "0", v(FK + 4 * r, 4), v(FK2, 2)), "s_nop 15",
           maxtree(SB[0], FM, FM), maxtree(SB[1], FM + 1, FM + 1)]
fb += [f"""
s_add_u32 s62, s62, {CH}
s_cmp_lt_u32 s62, {WS_KV + 16*CH}
s_cbranch_scc1 L_fb1
""", set_c(0, FM, FM + 2), set_c(1, FM + 1, FM + 2), [f"v_accvgpr_write_b32 a{e}, 0" for e in range(32)], f"""
s_mov_b32 s62, {WS_KV}
L_fb2:
s_add_u32 s69, s62, 4096
"""] + fbk + [f"s_add_u32 s69, s62, 4608"]
for r in range(4):
    if r == 2: fb += [f"s_add_u32 s69, s69, 2432"]
    fb += [f"buffer_load_dwordx4 {v(FV + 8*r + 4*e, 4)}, v{vV}, {SWS}, s69 offen offset:{1216*(r%2) + 608*e} sc1" for e in range(2)]
fb += ["s_waitcnt vmcnt(0)"]
for r in range(4):
    fb += [qk(0, r, SB[0], v(CR[0], 16), v(FK + 4 * r, 4), v(FK2, 2)), qk(1, r, SB[1], v(CR[1], 16), v(FK + 4 * r, 4), v(FK2, 2)), "s_nop 15"]
    for h in range(2):
        fb += [[f"v_exp_f32 v{SB[h]+e}, v{SB[h]+e}" for e in range(16)], "s_nop 1"]
        fb += [f"v_smfmac_f32_32x32x32_bf16 {a_(AO[h],16)}, {v(FV + 8*r + 4*e, 4)}, {v(SB[h] + 8*e, 8)}, v{vIDX}" for e in range(2)]
fb += [f"""
s_add_u32 s62, s62, {CH}
s_cmp_lt_u32 s62, {WS_KV + 16*CH}
s_cbranch_scc1 L_fb2
s_nop 15
"""]
for h in range(2): fb += [[f"v_accvgpr_read_b32 v{OV[h]+e}, a{AO[h]+e}" for e in range(10)]]
fb += [f"v_rcp_f32 v{SB[2]+2}, v{OV[0]+9}", f"v_rcp_f32 v{SB[2]+3}, v{OV[1]+9}", "s_nop 1", "s_branch L_fbdone"]
OUTL.extend(flat(fb))

resolve_waits(P)
P2 = check(P)
O2 = check(OUTL)
hdr = open(os.path.join(os.path.dirname(os.path.abspath(__file__)), "..", "cdna_kernels", NAME + ".s.ref")).read().split("; Override launch")[0]
src = hdr + f"""; Generated by gen/gen.py (hand-written generator).
; @launch grid=(256,1,1) block=(256,1,1) lds={LDS_BYTES}
.amdgcn_target "amdgcn-amd-amdhsa--gfx950"
.text
.globl {NAME}_kernel
.p2align 8
.type {NAME}_kernel,@function
{NAME}_kernel:
""" + render(P2) + render(O2) + f"""L_codeend:
    s_endpgm
.section .rodata,"a"
.p2align 6
.amdhsa_kernel {NAME}_kernel
  .amdhsa_next_free_vgpr 512
  .amdhsa_next_free_sgpr 102
  .amdhsa_accum_offset 256
  .amdhsa_group_segment_fixed_size 0
  .amdhsa_kernarg_size 112
  .amdhsa_user_sgpr_count 2
  .amdhsa_user_sgpr_kernarg_segment_ptr 1
  .amdhsa_system_sgpr_workgroup_id_x 1
.end_amdhsa_kernel
"""
open(sys.argv[1], "w").write(src)
print("instrs:", len(P2), len(O2))
```

```python
import sys, math, struct, os
from asm import *

NAME = "gated_mix__grouped_kv_mqa__dense_activation_gelu__prompt"
OPT = dict(stamps=0, force_fb=0, spin=1 << 18)
for a in sys.argv[2:]:
    k, v = a.split("="); OPT[k] = int(v)

def f2u(x): return struct.unpack("<I", struct.pack("<f", x))[0]
def v(a, n=1): return f"v{a}" if n == 1 else f"v[{a}:{a+n-1}]"
def a_(a, n=1): return f"a{a}" if n == 1 else f"a[{a}:{a+n-1}]"
def rg(r, off=0, n=1):
    return (v if r[0] == "v" else a_)(r[1] + off, n)

WS_KV = 0; CH = 9472; DC = 2 * CH
WS_G = 0x28000
WS_PF = 0x30000
WS_OF = 0x50000
WS_ST = 0x70000
WS_O = 0x80000
WS_P = 0x400000; R = 73728
OOB = 0x40000000
WR = 10784; SLOT = 4 * WR; TOP = 3 * SLOT
XB = TOP; BIAS = TOP + 32768; TMP = TOP; HB = TOP + 12288
KVS = [0, 20480, 40960]; KVB = 0
WOR = 20768; WOB = 61440
LDS_BYTES = 163840
SX, SW1, SWQ, SEX, SW2, SWO, SWS, SOUT, SB1, SB2, SGW, SDBG = [f"s[{4+4*k}:{7+4*k}]" for k in range(12)]
sI, sJ, sW, sWB = "s56", "s57", "s58", "s59"
sO1, sOQ, sOE, sOM, sXT = "s64", "s65", "s66", "s67", "s68"
sGB, sQS, sWKV, sWWO, sSP = "s70", "s71", "s72", "s73", "s74"
sTH, sCG, sOS, sOL, sXB = "s75", "s76", "s77", "s78", "s79"
vL = 0
vR2, vW2, vHW, vHR, vGA, vPOLL, vKVD, vSIG, vONE = 1, 2, 3, 4, 5, 6, 7, 8, 9
vPS0, vPS1, vFLG = 10, 11, 12
vIDX, vG1, vTMP = 13, 14, 15
HOWN = [16, 24]; GT = 32
ACCV = 48
PROJ = 48; XR = 72; WRING = 120; GATE = 152
vW1, vWQ, vWQT, vEX, vX, vR1a, vR1b, vR1xa, vR1xb, vTID, vBI = range(176, 187)
vPW, vPW2, vPQ, vPV, vS1, vS2, vS3, vQF, vT0, vT1, vT2 = range(187, 198)
vX2, vXR0, vXR1, vCLR = range(198, 202)
AW = [192, 200, 240]; AHP = [208, 216]; AQ = 224; AQR = 232

def hp(ft, T):
    s, k = divmod(ft, 2)
    base = ("v", 224 + 16 * s) if s < 2 else ("a", 16 * (s - 2))
    return (base[0], base[1] + 8 * k + 4 * T)
ORD = [(t, o) for t in range(9) for o in range(2)]
ATILES = ORD[6:11]
def acc2(t, o):
    n = ORD.index((t, o))
    if (t, o) in ATILES: return ("a", 112 + 16 * (n - 6))
    return ("v", ACCV + 16 * (n if n < 6 else n - 5))
def packed(t, o): return ACCV + 8 * ORD.index((t, o))

P = []
OUTL = []
def em(*x): P.extend(flat(x))
nst = [0]
def stamp(mask=1):
    if not (OPT["stamps"] & mask): return []
    k = nst[0]; nst[0] += 1
    assert k < 16
    return list(flat([f"{'s_memtime' if OPT.get('cyc') else 's_memrealtime'} s[80:81]", "s_waitcnt lgkmcnt(0)", f"s_mov_b32 s{84+k}, s80"]))

def srd_consts():
    sizes = {4: 2359296, 8: 5308416, 12: 663552, 16: 20736, 20: 5308416, 24: 663552, 28: 268435456, 32: 2359296, 36: 9216, 40: 1152, 44: 1152, 48: 256}
    return [f"s_mov_b32 s{b+2}, {n}\ns_mov_b32 s{b+3}, 0x20000" for b, n in sizes.items()]

em(f"""
s_cmp_ge_u32 s2, 256
s_cbranch_scc1 L_end
s_load_dwordx2 s[8:9], s[0:1], 48
s_load_dwordx2 s[4:5], s[0:1], 0
s_load_dwordx2 s[12:13], s[0:1], 8
s_load_dwordx4 s[52:55], s[0:1], 16
s_load_dwordx2 s[36:37], s[0:1], 56
s_load_dwordx2 s[20:21], s[0:1], 64
s_load_dwordx2 s[24:25], s[0:1], 32
s_load_dwordx2 s[28:29], s[0:1], 104
s_load_dwordx2 s[32:33], s[0:1], 88
s_load_dwordx2 s[40:41], s[0:1], 72
s_load_dwordx2 s[44:45], s[0:1], 80
s_load_dwordx2 s[48:49], s[0:1], 96
s_getpc_b64 s[60:61]
L_pc:
v_lshlrev_b32 v1, 7, v0
v_min_u32 v2, L_codeend-L_pc-4, v1
""")
pf0 = I("global_load_dword v3, v2, s[60:61]")
em(pf0, f"""
v_add_u32 v1, 0x8000, v1
v_min_u32 v2, L_codeend-L_pc-4, v1
""")
pf1 = I("global_load_dword v4, v2, s[60:61]")
em(pf1, f"""
v_lshrrev_b32 v1, 6, v0
v_mov_b32 v{vTID}, v0
v_readfirstlane_b32 {sW}, v1
v_and_b32 v0, 63, v0
s_and_b32 {sI}, s2, 1
s_lshl_b32 {sI}, {sI}, 3
s_bfe_u32 s62, s2, 0x30003
s_add_u32 {sI}, {sI}, s62
s_bfe_u32 {sJ}, s2, 0x20001
s_lshl_b32 {sJ}, {sJ}, 2
s_lshr_b32 s62, s2, 6
s_add_u32 {sJ}, {sJ}, s62
s_mul_i32 {sWB}, {sW}, {WR}
""", srd_consts(), f"""
v_lshrrev_b32 v1, 2, v{vTID}
v_and_b32 v2, 3, v{vTID}
s_mul_i32 s62, {sJ}, 576
v_mul_u32_u24 v{vW1}, 9216, v1
v_lshl_add_u32 v{vW1}, v2, 4, v{vW1}
v_add_u32 v{vW1}, s62, v{vW1}
v_lshl_add_u32 v{vBI}, v{vTID}, 1, s62
s_mul_i32 s62, {sJ}, 72
v_mul_u32_u24 v5, 1152, v1
v_add_u32 v5, s62, v5
v_lshl_add_u32 v{vWQ}, v2, 4, v5
v_lshl_add_u32 v{vWQT}, v2, 2, v5
v_add_u32 v{vWQT}, 56, v{vWQT}
s_and_b32 s62, {sJ}, 1
s_lshl_b32 s62, s62, 4
s_cmp_ge_u32 {sJ}, 4
s_cselect_b32 s62, 20, s62
v_mul_u32_u24 v5, 36, v1
v_lshl_add_u32 v5, v2, 2, v5
v_add_u32 v{vEX}, s62, v5
s_lshl_b32 s62, {sI}, 2
s_add_u32 s62, s62, {sW}
s_mul_i32 s62, s62, {32*1152}
v_lshrrev_b32 v2, 4, v0
v_lshrrev_b32 v1, 3, v0
v_mul_u32_u24 v5, 1152, v1
v_add_u32 v5, s62, v5
v_add_u32 v1, 2, v2
v_xor_b32 v1, v1, v0
v_and_b32 v1, 7, v1
v_lshl_add_u32 v{vX}, v1, 4, v5
v_xor_b32 v1, 4, v1
v_lshl_add_u32 v{vX2}, v1, 4, v5
v_add_u32 v{vX2}, {8*1152}, v{vX2}
s_lshl_b32 {sXB}, {sW}, 12
s_mov_b32 {sXT}, {16*1152}
s_lshr_b32 s62, 0x2c, {sJ}
s_waitcnt lgkmcnt(0)
s_bitcmp1_b32 s62, 0
s_cselect_b32 s16, s54, s52
s_cselect_b32 s17, s55, s53
""")
em(stamp(15))
bl0 = I(f"buffer_load_ushort v6, v{vBI}, {SB1}, 0 offen"); bl1 = I(f"buffer_load_ushort v7, v{vBI}, {SB1}, 0 offen offset:512")
em(bl0, bl1)

def p1_loads(c):
    sl = (c % 3) * SLOT; o = []
    so = [I(f"s_mov_b32 {sO1}, {c*64*9216}"), I(f"s_mov_b32 {sOQ}, {c*64*1152}"), I(f"s_mov_b32 {sOE}, {c*64*36}"), None]
    for n in range(4):
        o.append([[so[n], I(f"s_add_u32 m0, {sXB}, {XB + 16384*(c%2) + 1024*n - 128*c}")],
                  I(f"buffer_load_dwordx4 v{vX2 if n%2 else vX}, {SX}, {sXT if n >= 2 else 0} offen offset:{128*c} lds")])
    for n in range(9):
        o.append([I(f"s_add_u32 m0, {sWB}, {sl + 960*n}"), I(f"buffer_load_dwordx4 v{vW1}, {SW1}, {sO1} offen offset:{64*n} lds")])
    o.append([I(f"s_add_u32 m0, {sWB}, {sl + 9216}"), I(f"buffer_load_dwordx4 v{vWQ}, {SWQ}, {sOQ} offen lds")])
    o.append([I(f"s_add_u32 m0, {sWB}, {sl + 10240}"), I(f"buffer_load_dword v{vWQT}, {SWQ}, {sOQ} offen lds")])
    o.append([I(f"s_add_u32 m0, {sWB}, {sl + 10496}"), I(f"buffer_load_dword v{vEX}, {SEX}, {sOE} offen lds")])
    return o
def p2_loads(s):
    sl = (s % 3) * SLOT; o = []
    for n in range(9):
        pre = [I(f"s_add_u32 m0, {sWB}, {sl + 896*n}")]
        if n == 0: pre = [I(f"s_mov_b32 {sO1}, {s*36864}")] + pre
        o.append([pre, I(f"buffer_load_dwordx4 v{vW2}, {SW2}, {sO1} offen offset:{128*n} lds")])
    return o
LOADS = [link(p1_loads(c)) for c in range(9)] + [link(p2_loads(s)) for s in range(9)]
def last(c): return LOADS[c][-1][1]

em(LOADS[0])
em(f"""
v_bfe_u32 v5, v0, 2, 2
v_and_b32 v1, 3, v0
v_mul_u32_u24 v{vR1a}, {WR}, v2
v_lshl_add_u32 v{vR1xa}, v5, 4, v{vR1a}
v_lshl_add_u32 v{vR1a}, v5, 6, v{vR1a}
v_lshl_add_u32 v{vR1a}, v1, 3, v{vR1a}
v_add_u32 v{vR1b}, {2*SLOT}, v{vR1a}
v_lshrrev_b32 v5, 1, v1
v_and_b32 v1, 1, v1
v_lshl_add_u32 v{vR1xa}, v5, 8, v{vR1xa}
v_lshl_add_u32 v{vR1xa}, v1, 3, v{vR1xa}
v_add_u32 v{vR1xa}, 10240, v{vR1xa}
v_add_u32 v{vR1xb}, {2*SLOT}, v{vR1xa}
v_bfe_u32 v5, v0, 1, 3
v_add_u32 v5, 2, v5
v_lshlrev_b32 v1, 1, v2
v_xor_b32 v5, v5, v1
v_and_b32 v5, 7, v5
v_and_b32 v1, 15, v0
v_lshlrev_b32 v1, 7, v1
v_lshl_add_u32 v5, v5, 4, v1
s_add_u32 s62, {sXB}, {XB}
v_add_u32 v{vXR0}, s62, v5
v_xor_b32 v{vXR1}, 16, v{vXR0}
v_lshlrev_b32 v5, 2, v{vTID}
v_add_u32 v5, {BIAS}, v5
v_lshlrev_b32 v2, 4, v2
v_add_u32 v2, {BIAS}, v2
""", W(vm=[bl1]), f"""
v_lshlrev_b32 v6, 16, v6
v_lshlrev_b32 v7, 16, v7
ds_write_b32 v5, v6
ds_write_b32 v5, v7 offset:1024
s_waitcnt lgkmcnt(0)
s_barrier
""")
for ft in range(18):
    em(f"ds_read_b128 {rg(hp(ft, 0), 0, 4)}, v2 offset:{64*ft}")
    if ft == 8: em(W(lgkm0=True))
em(LOADS[1])
em(W(vm=[last(0)], lgkm0=True), "s_barrier", stamp(3))

def p1_reads(c, t):
    sl = c % 3; ring = WRING + 8 * ((21 * c + t) % 4); o = []
    for s in range(2):
        for rho in range(2):
            if t < 20:
                ad = vR1a if sl < 2 else vR1b
                off = (sl % 2) * SLOT + 1024 * (t // 2) + 512 * s + 256 * rho + 32 * (t % 2)
            else:
                ad = vR1xa if sl < 2 else vR1xb
                off = (sl % 2) * SLOT + 128 * s + 64 * rho
            o.append(I(f"ds_read_b64_tr_b16 {v(ring + 4*s + 2*rho, 2)}, v{ad} offset:{off}"))
    return o
def p1_acc(t, T): return hp(t, T) if t < 18 else ("v", PROJ + 8 * (t - 18) + 4 * T)
RD = {(c, t): p1_reads(c, t) for c in range(9) for t in range(21)}
def xreg(c, T, s): return v(XR + 16*(c%2) + 8*T + 4*s, 4)
XRD = {c: [I(f"ds_read_b128 {xreg(c, T, s)}, v{vXR1 if s else vXR0} offset:{16384*(c%2) + 2048*T}") for T in (1, 0) for s in range(2)] for c in range(9)}

def p2_reads(s, t):
    o = []
    for k in range(2):
        for rho in range(2):
            o.append(I(f"ds_read_b64_tr_b16 {a_(AW[t%3] + 4*k + 2*rho, 2)}, v{vR2} offset:{2*WR*k + 512*t + 256*rho}"))
    return o
RD2 = {(s, t): p2_reads(s, t) for s in range(9) for t in range(9)}

gl = [I(f"buffer_load_dwordx4 {v(GATE,4)}, v{vT0}, {SX}, 0 offen"), I(f"buffer_load_dwordx4 {v(GATE+4,4)}, v{vT0}, {SX}, 0 offen offset:16"),
      I(f"buffer_load_dword v{GATE+8}, v{vT0}, {SX}, 0 offen offset:32"),
      I(f"buffer_load_dwordx4 {v(GATE+10,4)}, v{vT1}, {SGW}, 0 offen"), I(f"buffer_load_dwordx4 {v(GATE+14,4)}, v{vT1}, {SGW}, 0 offen offset:16"),
      I(f"buffer_load_dword v{GATE+18}, v{vT1}, {SGW}, 0 offen offset:32")]
fill_c0 = f"""
s_lshl_b32 s62, {sI}, 4
s_add_u32 s62, s62, {sJ}
s_lshl_b32 s63, s62, 3
v_lshrrev_b32 v{vT2}, 5, v{vTID}
v_add_u32 v{vT2}, s63, v{vT2}
v_and_b32 v{vT1}, 31, v0
v_mul_u32_u24 v{vT1}, 36, v{vT1}
v_mul_u32_u24 v{vT0}, 1152, v{vT2}
v_add_u32 v{vT0}, v{vT0}, v{vT1}
s_lshl_b32 s62, s62, 2
s_add_u32 s62, s62, {sW}
s_lshl_b32 s62, s62, 7
s_add_u32 s62, s62, {WS_PF}
v_mov_b32 v{vFLG}, {OOB}
v_mov_b32 v{vONE}, 0
v_writelane_b32 v{vFLG}, s62, 0
s_lshl_b32 s62, {sI}, 13
s_add_u32 s62, s62, {WS_PF}
s_mul_i32 s63, {sW}, {WS_OF - WS_PF}
s_add_u32 s62, s62, s63
s_lshr_b32 s63, {sW}, 1
s_or_b32 s63, s63, {sJ}
s_cmp_eq_u32 s63, 0
s_cselect_b32 s62, s62, {OOB}
s_cselect_b32 s63, 7, 0
v_lshlrev_b32 v{vCLR}, s63, v0
v_add_u32 v{vCLR}, s62, v{vCLR}
"""
clr = [I(f"buffer_store_dword v{vONE}, v{vCLR}, {SWS}, 0 offen sc1")]
g_acc = GATE + 9; g0, g1, g2, g3 = GATE + 19, GATE + 20, GATE + 21, GATE + 22
gate_math = [f"v_mov_b32 v{g_acc}, 0"]
for d in range(9):
    xx = GATE + d; ww = GATE + 10 + d
    gate_math += [f"v_lshlrev_b32 v{g0}, 16, v{xx}", f"v_lshlrev_b32 v{g1}, 16, v{ww}", f"v_and_b32 v{g2}, 0xffff0000, v{xx}", f"v_and_b32 v{g3}, 0xffff0000, v{ww}",
                  f"v_fmac_f32 v{g_acc}, v{g0}, v{g1}", f"v_fmac_f32 v{g_acc}, v{g2}, v{g3}"]
pad2 = lambda a, b: [a, b]
gate_red = [
    f"v_lshlrev_b32 v{vT2}, 2, v{vT2}", f"v_add_u32 v{vT2}, {WS_G}, v{vT2}",
    f"v_add_f32_dpp v{g_acc}, v{g_acc}, v{g_acc} row_shr:1 row_mask:0xf bank_mask:0xf bound_ctrl:1",
    f"v_and_b32 v{g0}, 31, v0", f"v_cmp_eq_u32 vcc, 31, v{g0}",
    f"v_add_f32_dpp v{g_acc}, v{g_acc}, v{g_acc} row_shr:2 row_mask:0xf bank_mask:0xf bound_ctrl:1",
    f"v_mov_b32 v{g1}, {OOB}", f"v_mov_b32 v{vGA}, {hex(f2u(-2*math.sqrt(2/math.pi)*math.log2(math.e)))}",
    f"v_add_f32_dpp v{g_acc}, v{g_acc}, v{g_acc} row_shr:4 row_mask:0xf bank_mask:0xf bound_ctrl:1",
    f"v_cndmask_b32 v{vT2}, v{g1}, v{vT2}, vcc", f"v_mov_b32 v{vIDX}, 0xdddddddd",
    f"v_add_f32_dpp v{g_acc}, v{g_acc}, v{g_acc} row_shr:8 row_mask:0xf bank_mask:0xf bound_ctrl:1",
    f"v_mov_b32 v{vONE}, 1", f"v_mov_b32 v{vSIG}, 0x1000",
    f"v_add_f32_dpp v{g_acc}, v{g_acc}, v{g_acc} row_bcast:15 row_mask:0xa bank_mask:0xf",
    f"v_mul_f32 v{g_acc}, {hex(f2u(-math.log2(math.e)))}, v{g_acc}",
    f"v_exp_f32 v{g_acc}, v{g_acc}", f"s_mov_b32 {sGB}, {hex(f2u(-2*math.sqrt(2/math.pi)*math.log2(math.e)*0.044715))}",
    f"v_add_f32 v{g_acc}, 1.0, v{g_acc}", f"v_rcp_f32 v{g_acc}, v{g_acc}", f"s_mov_b32 {sQS}, {hex(f2u(math.log2(math.e)/math.sqrt(18)))}"]
gst = I(f"buffer_store_dword v{g_acc}, v{vT2}, {SWS}, 0 offen sc1")
fill_p2 = f"""
s_mul_i32 s62, {sJ}, 288
s_lshl_b32 s63, {sW}, 3
s_add_u32 s62, s62, s63
v_bfe_u32 v{vT0}, v0, 2, 3
v_add_u32 v{vT0}, s62, v{vT0}
v_mul_u32_u24 v{vW2}, 1152, v{vT0}
v_lshrrev_b32 v{vT1}, 5, v0
v_lshl_add_u32 v{vW2}, v{vT1}, 6, v{vW2}
v_and_b32 v{vT0}, 3, v0
v_lshl_add_u32 v{vW2}, v{vT0}, 4, v{vW2}
s_and_b32 s62, {sW}, 1
s_mul_i32 s62, s62, 4608
v_mul_u32_u24 v{vR2}, {WR}, v{vT1}
v_add_u32 v{vR2}, s62, v{vR2}
v_bfe_u32 v{vT0}, v0, 2, 2
v_lshl_add_u32 v{vR2}, v{vT0}, 6, v{vR2}
v_bfe_u32 v{vT0}, v0, 4, 1
v_lshl_add_u32 v{vR2}, v{vT0}, 5, v{vR2}
v_and_b32 v{vT0}, 1, v0
v_lshl_add_u32 v{vR2}, v{vT0}, 4, v{vR2}
v_bfe_u32 v{vT0}, v0, 1, 1
v_lshl_add_u32 v{vR2}, v{vT0}, 3, v{vR2}
s_lshl_b32 s62, {sW}, 11
s_add_u32 s62, s62, {HB}
v_lshl_add_u32 v{vHW}, v0, 4, s62
s_xor_b32 s62, {sW}, 1
s_lshl_b32 s62, s62, 11
s_add_u32 s62, s62, {HB}
v_lshl_add_u32 v{vHR}, v0, 4, s62
"""
fill_pe = f"""
s_mul_i32 s62, {sW}, 3072
s_add_u32 s62, s62, {TMP}
v_and_b32 v{vT0}, 15, v0
v_lshrrev_b32 v{vT1}, 4, v0
v_mul_u32_u24 v{vPW2}, 96, v{vT0}
v_add_u32 v{vPW2}, s62, v{vPW2}
v_lshl_add_u32 v{vPW}, v{vT1}, 3, v{vPW2}
v_cmp_gt_u32 vcc, 32, v0
v_xor_b32 v{vT2}, 1, v{vT1}
v_mov_b32 v{vQF}, {sQS}
v_cndmask_b32 v{vT2}, v{vT1}, v{vT2}, vcc
v_cndmask_b32 v{vQF}, 1.0, v{vQF}, vcc
v_lshl_add_u32 v{vPW2}, v{vT2}, 3, v{vPW2}
v_and_b32 v{vT2}, 31, v0
v_mul_u32_u24 v{vPQ}, 96, v{vT2}
v_add_u32 v{vPQ}, s62, v{vPQ}
v_bfe_u32 v{vPV}, v0, 2, 2
v_lshl_add_u32 v{vPV}, v{vT1}, 3, v{vPV}
v_mul_u32_u24 v{vPV}, 96, v{vPV}
v_and_b32 v{vS1}, 3, v0
v_lshl_add_u32 v{vPV}, v{vS1}, 3, v{vPV}
v_add_u32 v{vPV}, s62, v{vPV}
s_mul_i32 s60, {sI}, {CH}
s_lshl_b32 s62, {sW}, 10
s_lshl_b32 s63, {sJ}, 9
s_add_u32 s62, s62, s63
s_add_u32 s62, s62, s60
s_cmp_lt_u32 {sJ}, 2
s_cselect_b32 s62, s62, {OOB}
v_lshl_add_u32 v{vS1}, v{vT2}, 4, s62
s_lshr_b32 s62, {sW}, 1
s_lshl_b32 s62, s62, 8
s_and_b32 s63, {sW}, 1
s_lshl_b32 s63, s63, 2
s_add_u32 s62, s62, s63
s_add_u32 s62, s62, s60
s_add_u32 s62, s62, 4096
s_cmp_eq_u32 {sJ}, 4
s_cselect_b32 s62, s62, {OOB}
v_lshl_add_u32 v{vS2}, v{vT2}, 3, s62
v_mov_b32 v{vT2}, {OOB}
v_cndmask_b32 v{vS1}, v{vT2}, v{vS1}, vcc
v_cndmask_b32 v{vS2}, v{vT2}, v{vS2}, vcc
s_mul_i32 s62, {sW}, 1216
s_add_u32 s62, s62, s60
s_add_u32 s62, s62, {4608 - 128}
s_cmp_eq_u32 {sJ}, 3
s_cselect_b32 s63, 128, 0
s_cmp_eq_u32 {sJ}, 5
s_cselect_b32 s63, 160, s63
s_cselect_b32 s61, 13, 8
s_cselect_b32 s69, 13, 99
s_add_u32 s62, s62, s63
s_lshr_b32 s63, 0x2c, {sJ}
s_bitcmp1_b32 s63, 0
s_cselect_b32 s61, s61, 99
v_mul_u32_u24 v{vS3}, 304, v{vT1}
v_lshl_add_u32 v{vS3}, v{vT0}, 4, v{vS3}
v_add_u32 v{vS3}, s62, v{vS3}
v_cmp_eq_u32 s[82:83], s69, v{vT0}
v_add_u32 v{vT1}, 48, v{vS3}
v_cmp_le_u32 vcc, s61, v{vT0}
v_cndmask_b32 v{vS3}, v{vS3}, v{vT1}, s[82:83]
v_mov_b32 v{vT0}, 0x3f803f80
v_cndmask_b32 v{vS3}, v{vT2}, v{vS3}, vcc
"""
fill_at = f"""
v_lshlrev_b32 v{vKVD}, 4, v{vTID}
s_lshl_b32 {sWKV}, {sW}, 10
s_mul_i32 {sWWO}, {sW}, {WOR}
s_add_u32 {sWWO}, {sWWO}, {WOB}
s_lshl_b32 s62, {sI}, 4
s_cmp_lt_u32 {sJ}, 6
s_cselect_b32 s62, s62, 0x1000
s_cmp_eq_u32 {sW}, 0
s_cselect_b32 s62, s62, 0x1000
v_writelane_b32 v{vSIG}, s62, 0
v_and_b32 v{vG1}, 15, v0
v_lshlrev_b32 v{vG1}, 4, v{vG1}
s_lshr_b32 {sTH}, {sJ}, 3
s_and_b32 {sCG}, {sJ}, 7
s_lshr_b32 s62, {sW}, 1
s_lshl_b32 s63, {sI}, 1
s_add_u32 s62, s62, s63
s_lshl_b32 s62, s62, 4
s_add_u32 s62, s62, {sJ}
s_mul_i32 s62, s62, {R}
s_and_b32 s63, {sW}, 1
s_mul_i32 s63, s63, {36864 + 512}
s_add_u32 s62, s62, s63
s_add_u32 s62, s62, {WS_P}
v_lshrrev_b32 v{vPS0}, 5, v0
v_lshlrev_b32 v{vPS0}, 10, v{vPS0}
v_and_b32 v{vPS1}, 31, v0
v_lshl_add_u32 v{vPS0}, v{vPS1}, 4, v{vPS0}
v_add_u32 v{vPS0}, s62, v{vPS0}
v_xor_b32 v{vPS1}, 512, v{vPS0}
"""

def place(slots, pairs, s0, s1):
    n = len(pairs)
    for k, (pre, op) in enumerate(pairs):
        sidx = s0 + (k * (s1 - s0)) // n
        while len(slots[sidx]) > 1 and slots[sidx][1].kind == "salu" and sidx + 1 < len(slots): sidx += 1
        pre = list(flat([pre]))
        for y in reversed(pre): slots[sidx].insert(1, y)
        if pre and slots[sidx][-1] is pre[-1] and getattr(op, "dma", False) and sidx + 1 < len(slots):
            slots[sidx + 1].append(op)
        else:
            slots[sidx].append(op)

em(XRD[0], RD[0, 0], RD[0, 1], W(lgkm=XRD[0]), RD[0, 2], W(lgkm=RD[0, 0]))
def put(slots, k, pre, op):
    pre = list(flat([pre])); j = k - 1; rest = []
    for y in reversed(pre):
        while j >= 0 and not any(z.kind == "vmem" for z in slots[j]) and len(slots[j]) > 1 and slots[j][1].kind == "salu": j -= 1
        if j >= max(0, k - 4) and not any(z.kind == "vmem" for z in slots[j]): slots[j].insert(1, y)
        else: rest.insert(0, y)
    slots[k - 1] += rest
    slots[k].append(op)
for c in range(9):
    slots = []
    for t in range(21):
        ring = WRING + 8 * ((21 * c + t) % 4)
        for T in (1, 0):
            for s in range(2):
                d = p1_acc(t, T)
                cc = rg(d, 0, 4)
                if c == 0 and s == 0: cc = rg(p1_acc(t, 0), 0, 4) if t < 18 else "0"
                slots.append([I(f"v_mfma_f32_16x16x32_bf16 {rg(d,0,4)}, {v(ring + 4*s, 4)}, {xreg(c, T, s)}, {cc}")])
    tail = []
    if c < 8: tail = RD[c + 1, 0] + RD[c + 1, 1] + RD[c + 1, 2]
    else: tail = RD2[0, 0] + RD2[0, 1]
    for t in range(21):
        b = 4 * t
        if t < 18:
            slots[b + 3].append(W(lgkm=RD[c, t + 1]))
            slots[b] += RD[c, t + 3][:2]; slots[b + 1] += RD[c, t + 3][2:]
        elif t == 18:
            slots[b].append(W(vm=[last(c + 1)]))
            if c < 8: slots[b] += XRD[c + 1][:2]; slots[b + 1] += XRD[c + 1][2:]
            slots[b + 3] += [W(lgkm=RD[c, 20]), I("s_barrier")] + stamp(2)
        elif t == 19:
            for m in range(4): slots[b + m] += tail[2 * m:2 * m + 2]
        elif t == 20 and c < 8:
            slots[b] += tail[8:10]; slots[b + 1] += tail[10:12]
            slots[b + 3].append(W(lgkm=RD[c + 1, 0]))
    pairs = list(LOADS[c + 2])
    extra = []
    if c == 1: extra = gl + clr
    if c == 5: extra = [gst]
    for k, op in enumerate(extra): put(slots, 4 * k + 3, None, op)
    for k, (pre, op) in enumerate(pairs):
        put(slots, 4 * ((k * 18) // len(pairs) if len(pairs) < 12 else k) + 2, pre, op)
    fl = {0: fill_c0, 2: fill_p2, 3: gate_math, 4: gate_red, 5: fill_at, 6: fill_pe}.get(c)
    if fl: spread(slots, [fl], 2 if c != 5 else 4, 72, 16)
    em(slots)
em(stamp())

def gelu(s):
    o = []; H = HOWN[s % 2]; wr = []
    groups = [(k, T) for k in range(2) for T in range(2)]
    for gi, (k, T) in enumerate(groups):
        src = hp(2 * s + k, T)
        t = [GT + 4 + e for e in range(4)]
        if src[0] == "a":
            u = [GT + e for e in range(4)]
            o += [f"v_accvgpr_read_b32 v{u[e]}, a{src[1]+e}" for e in range(4)]
        else: u = [src[1] + e for e in range(4)]
        o += [f"v_mul_f32 v{t[e]}, v{u[e]}, v{u[e]}" for e in range(4)]
        o += [f"v_fma_f32 v{t[e]}, v{t[e]}, {sGB}, v{vGA}" for e in range(4)]
        o += [f"v_mul_f32 v{t[e]}, v{t[e]}, v{u[e]}" for e in range(4)]
        o += [f"v_exp_f32 v{t[e]}, v{t[e]}" for e in range(4)]
        o += [f"v_add_f32 v{t[e]}, 1.0, v{t[e]}" for e in range(4)]
        o += [f"v_rcp_f32 v{t[e]}, v{t[e]}" for e in range(4)]
        o += [f"v_mul_f32 v{t[e]}, v{t[e]}, v{u[e]}" for e in range(4)]
        o += [f"v_cvt_pk_bf16_f32 v{H + 4*k + 2*T + r}, v{t[2*r]}, v{t[2*r+1]}" for r in range(2)]
        if T == 1:
            w = I(f"ds_write_b128 v{vHW}, {v(H + 4*k, 4)} offset:{8192*(s%2) + 1024*k}")
            sw = [f"v_permlane16_swap_b32 v{H+4*k+r}, v{H+4*k+2+r}" for r in range(2)] + [w]
            wr.append(w)
            o.append(("late", sw))
    res = []; pend = None; cnt = 0
    for x in o:
        if isinstance(x, tuple): pend = x[1]; cnt = 0; continue
        res.append(x)
        if pend:
            cnt += 1
            if cnt == 4: res += pend; pend = None
    if pend: res += ["s_nop 1"] + pend
    return list(flat(res))

g0s = gelu(0)
pe = []
for t in range(3):
    for T in range(2):
        b = PROJ + 8 * t + 4 * T
        pe += [f"v_mul_f32 v{b+e}, {sQS if t < 2 else 'v%d' % vQF}, v{b+e}" for e in range(4)]
        pe += [f"v_cvt_pk_bf16_f32 v{b+r}, v{b+2*r}, v{b+2*r+1}" for r in range(2)]
        pe += [f"ds_write_b64 v{vPW if t < 2 else vPW2}, {v(b, 2)} offset:{1536*T + 32*t}"]
em(g0s[:30], pe)
em(f"v_lshrrev_b32 v{vT1}, 5, v0", f"v_lshl_add_u32 v{vT1}, v{vT1}, 4, v{vPQ}", g0s[30:60], W(lgkm0=True))
D1 = XR; D2 = XR + 4
em(f"""
ds_read_b128 {v(D1,4)}, v{vPQ} offset:80
ds_read_b64_tr_b16 {v(D2,2)}, v{vPV} offset:64
ds_read_b64_tr_b16 {v(D2+2,2)}, v{vPV} offset:{64 + 4*96}
ds_read_b128 {a_(AQ,4)}, v{vT1}
ds_read_b128 {a_(AQ+4,4)}, v{vT1} offset:36
ds_read_b32 a{AQR}, v{vPQ} offset:32
ds_read_b32 a{AQR+1}, v{vPQ} offset:68
""", g0s[60:90], W(lgkm0=True))
em([f"v_cndmask_b32 v{D2+e}, v{D2+e}, v{vT0}, s[82:83]" for e in range(4)])
kvst = [I(f"buffer_store_dwordx4 {v(D1,4)}, v{vS1}, {SWS}, 0 offen sc1"), I(f"buffer_store_dword v{D1+3}, v{vS2}, {SWS}, 0 offen sc1"),
        I(f"buffer_store_dwordx4 {v(D2,4)}, v{vS3}, {SWS}, 0 offen sc1")]
em(kvst, g0s[90:], W(lgkm0=True), "s_barrier")
def h_reads(s):
    o = [I(f"ds_read_b128 {a_(AHP[s%2] + 4*k, 4)}, v{vHR} offset:{8192*(s%2) + 1024*k}") for k in range(2)]
    return o
HR = {s: h_reads(s) for s in range(9)}
em(HR[0], stamp(7))

nspin = [0]
def spin_check(load_text, cmp_text):
    k = nspin[0]; nspin[0] += 1
    OUTL.extend(flat([f"""
L_spin{k}:
s_mov_b32 {sSP}, {OPT['spin']}
L_spin{k}_l:
s_sleep 2
{load_text}
s_sub_u32 {sSP}, {sSP}, 1
s_waitcnt vmcnt(0)
s_cbranch_scc1 L_back{k}
{cmp_text}
s_nop 1
s_cbranch_vccnz L_spin{k}_l
s_branch L_back{k}
"""]))
    return list(flat([cmp_text, "s_nop 0", f"s_cbranch_vccnz L_spin{k}", f"L_back{k}:"]))

def kv_dma(d):
    o = []
    for n in range(5):
        o.append([[I(f"s_mov_b32 {sOM}, {WS_KV + d*DC + 4096*n}"), I(f"s_add_u32 m0, {sWKV}, {KVS[d%3] + 4096*n}")],
                  I(f"buffer_load_dwordx4 v{vKVD}, {SWS}, {sOM} offen sc1 lds")])
    return o
KVD = {d: link(kv_dma(d)) for d in range(8)}
sig1 = I(f"buffer_atomic_add v{vONE}, v{vSIG}, {SDBG}, 0 offen sc1")
poll1_t = f"buffer_load_dword v{vPOLL}, v{vG1}, {SDBG}, 0 offen sc1"
poll1 = I(poll1_t)

def convert(t, o):
    src = acc2(t, o); d = packed(t, o); r = []
    if src[0] == "v":
        return [f"v_cvt_pk_bf16_f32 v{d+e}, v{src[1]+2*e}, v{src[1]+2*e+1}" for e in range(8)]
    for h in range(2):
        r += [f"v_accvgpr_read_b32 v{GT+e}, a{src[1]+8*h+e}" for e in range(8)]
        r += [f"v_cvt_pk_bf16_f32 v{d+4*h+e}, v{GT+2*e}, v{GT+2*e+1}" for e in range(4)]
    return r

slots = []
for s in range(9):
    for t in range(9):
        wf = AW[t % 3]
        for o in range(2):
            for k in range(2):
                d = rg(acc2(t, o), 0, 16)
                b = v(HOWN[s % 2] + 4 * k, 4) if o == 0 else a_(AHP[s % 2] + 4 * k, 4)
                slots.append([I(f"v_mfma_f32_32x32x16_bf16 {d}, {a_(wf + 4*k, 4)}, {b}, {'0' if s == 0 and k == 0 else d}")])
BP = 29
for s in range(9):
    for t in range(9):
        b = 36 * s + 4 * t
        nx = (s, t + 2) if t < 7 else (s + 1, t - 7)
        n1 = (s, t + 1) if t < 8 else (s + 1, 0)
        if n1[0] < 9 and (s, t) != (0, 0) and t != 7: slots[b + 3].append(W(lgkm=RD2[n1]))
        if t == 0: slots[b + 1].append(W(lgkm=HR[s]))
        if nx[0] < 9:
            o = 2 if t == 7 else 0
            slots[b + o] += RD2[nx][:2]; slots[b + o + 1] += RD2[nx][2:]
            if t == 8: slots[b + 2] += HR[s + 1]
    pos = [2, 6, 10, 14, 18, 22, 26, 28, 35]
    if s <= 6:
        for k, (pre, op) in enumerate(LOADS[9 + s + 2]): put(slots, 36 * s + pos[k], pre, op)
    if s >= 7:
        for k, (pre, op) in enumerate(KVD[s - 7]): put(slots, 36 * s + 4 * k + 2, pre, op)
put(slots, 36 * 2 + 3, None, sig1)
put(slots, 36 * 6 + 3, None, poll1)
for s in range(8):
    spread(slots, gelu(s + 1), max(36 * s - (36 - BP - 1), 0), 36 * s + BP - 1, 32)
for s in range(9):
    b = 36 * s + BP
    vm = [last(9 + s + 1)] if s < 8 else [KVD[0][-1][1]]
    if s == 1: vm += kvst + clr + [gst]
    if s == 6: vm += [poll1]
    ex = []
    if s < 8: ex.append(I(f"v_add_u32 v{vR2}, {(SLOT if (s + 1) % 3 else -2 * SLOT) & 0xffffffff}, v{vR2}"))
    if s == 6: ex += spin_check(poll1_t, f"v_cmp_gt_u32 vcc, 6, v{vPOLL}")
    slots[b] = slots[b][:1] + [W(vm=vm, lgkm0=True), I("s_barrier")] + ex + stamp(4) + slots[b][1:]
b8 = 36 * 8
for n, (t, o) in enumerate(ORD[:15]):
    s0 = b8 + 2 * n + 5
    spread(slots, convert(t, o), s0, min(s0 + 2, b8 + 36), 32)
vK, vK2, vV = vR2, vW2, vHW
AK = [32, 36]; AK2 = [40, 42]; AV = [44, 52]; AO = [0, 16]; APL = 64
SB = [192, 208, 224]; CR = [240, 16]; Q2 = 32
def kv_off(kt):
    d, r = divmod(kt, 8)
    return KVS[d % 3] - KVB + (r // 4) * CH, r % 4
def k_read(kt):
    base, r = kv_off(kt); o = [I(f"ds_read_b128 {a_(AK[kt%2], 4)}, v{vK} offset:{base + 1024*r}")]
    if r == 0: o.append(I(f"ds_read_b64 {a_(AK2[(kt//4)%2], 2)}, v{vK2} offset:{base + 4096}"))
    return o
def v_read(kt):
    base, r = kv_off(kt)
    return [I(f"ds_read_b128 {a_(AV[kt%2] + 4*e, 4)}, v{vV} offset:{base + 4608 + 1216*r + 608*e}") for e in range(2)]
KR = {kt: k_read(kt) for kt in range(64)}; VR = {kt: v_read(kt) for kt in range(64)}
at_addr = f"""
v_lshlrev_b32 v{vK2}, 3, v0
v_add_u32 v{vK2}, {KVB}, v{vK2}
v_bfe_u32 v{vHR}, v0, 3, 2
v_and_b32 v{vTMP}, 3, v0
v_lshl_add_u32 v{vHR}, v{vHR}, 2, v{vTMP}
v_bfe_u32 v{vTMP}, v0, 2, 1
v_cmp_eq_u32 vcc, 9, v{vHR}
v_mad_u32_u24 v{vV}, v{vTMP}, 9, v{vHR}
v_lshrrev_b32 v{vTMP}, 5, v0
v_cndmask_b32 v{vV}, v{vV}, 18, vcc
v_cmp_lt_u32 vcc, 9, v{vHR}
v_mad_u32_u24 v{vV}, v{vTMP}, 19, v{vV}
v_lshlrev_b32 v{vV}, 4, v{vV}
v_add_u32 v{vV}, {KVB}, v{vV}
v_mov_b32 v{vTMP}, 0x40000
v_cndmask_b32 v{vV}, v{vV}, v{vTMP}, vcc
"""
spread(slots, [at_addr], b8, b8 + 5, 32)
zero_o = [I(f"ds_read_b128 {a_(4*e, 4)}, v{vTMP}") for e in range(8)]
for e in range(8): slots[b8 + 6 + 2 * e + (e > 0) * 0].append(zero_o[e])
slots[b8 + 32] = slots[b8 + 32][:1] + list(flat([f"v_lshlrev_b32 v{vK}, 4, v0", f"v_add_u32 v{vK}, {KVB}, v{vK}"])) + KR[0] + VR[0] + slots[b8 + 32][1:]
em(slots)
em([convert(t, o) for t, o in ORD[15:18]], stamp(13))

def q2(h, kt): return Q2 + 8 * h + 2 * (kt % 4)
em("v_cmp_gt_u32 vcc, 32, v0")
for h in range(2):
    b = Q2 + 8 * h
    em(f"""
v_accvgpr_read_b32 v{vTMP}, a{AQR+h}
v_mov_b32 v{b+1}, 0
v_mov_b32 v{b+2}, 0
v_mov_b32 v{b+5}, 0
v_mov_b32 v{b+6}, 0
v_cndmask_b32 v{b}, 0, v{vTMP}, vcc
v_cndmask_b32 v{b+3}, 0, v{vTMP}, vcc
v_cndmask_b32 v{b+4}, v{vTMP}, 0, vcc
v_cndmask_b32 v{b+7}, v{vTMP}, 0, vcc
""")
def qk(h, kt, d, c, ka=None, k2=None):
    ka = ka or a_(AK[kt % 2], 4); k2 = k2 or a_(AK2[(kt // 4) % 2], 2)
    return (I(f"v_mfma_f32_32x32x16_bf16 {v(d,16)}, {ka}, {a_(AQ + 4*h, 4)}, {c}"),
            I(f"v_mfma_f32_32x32x8_bf16 {v(d,16)}, {k2}, {v(q2(h, kt), 2)}, {v(d,16)}"))
def maxtree(s, dst, init=None):
    o = [f"v_max3_f32 v{dst}, v{s}, v{s+1}, {('v%d' % init) if init is not None else 'v%d' % (s+1)}"]
    o += [f"v_max3_f32 v{dst}, v{s+2*e}, v{s+2*e+1}, v{dst}" for e in range(1, 8)]
    return o
def set_c(h, m, tmp):
    return [f"v_mov_b32 v{tmp}, v{m}", "s_nop 1", f"v_permlane32_swap_b32 v{m}, v{tmp}", f"v_max_f32 v{m}, v{m}, v{tmp}"] + \
           [f"v_sub_f32 v{CR[h]+e}, 0, v{m}" for e in range(16)]
vPLM, vPLH, vWOa, vWOb, vPP = vHR, vGA, vSIG, vPOLL, vTMP
bg_addr = f"""
s_lshl_b32 s62, {sI}, 1
s_add_u32 s62, s62, {sTH}
s_mul_i32 s62, s62, {16*R}
s_mul_i32 s63, {sCG}, 9216
s_add_u32 s62, s62, s63
s_lshl_b32 s63, {sW}, 8
s_add_u32 s62, s62, s63
s_add_u32 s62, s62, {WS_P}
s_and_b32 s63, {sCG}, 1
s_lshl_b32 s60, s63, 4
s_xor_b32 s61, s63, 1
s_lshl_b32 s61, s61, 7
v_lshrrev_b32 v{vPLM}, 4, v0
v_mul_u32_u24 v{vPLM}, {R}, v{vPLM}
v_and_b32 v{vPLH}, 15, v0
v_lshl_add_u32 v{vPLM}, v{vPLH}, 4, v{vPLM}
v_add_u32 v{vPLM}, s62, v{vPLM}
s_lshl_b32 s63, s61, 6
v_add_u32 v{vPLH}, s63, v{vPLM}
s_lshl_b32 s63, s60, 6
v_add_u32 v{vPLM}, s63, v{vPLM}
s_mul_i32 s62, {sCG}, 144
s_add_u32 s60, s60, s62
s_add_u32 s61, s61, s62
s_mul_i32 s62, {sW}, {9*1152}
v_lshrrev_b32 v{vWOa}, 5, v0
v_bfe_u32 v{vWOb}, v0, 2, 3
v_mad_u32_u24 v{vWOa}, v{vWOa}, 36, v{vWOb}
v_mul_u32_u24 v{vWOa}, 1152, v{vWOa}
v_add_u32 v{vWOa}, s62, v{vWOa}
v_and_b32 v{vG1}, 3, v0
v_lshl_add_u32 v{vWOb}, v{vG1}, 2, v{vWOa}
v_lshl_add_u32 v{vWOa}, v{vG1}, 4, v{vWOa}
v_add_u32 v{vWOa}, s60, v{vWOa}
v_add_u32 v{vWOb}, s61, v{vWOb}
"""
bga = list(flat([bg_addr]))
em(W(lgkm0=True), qk(0, 0, SB[1], "0"), qk(1, 0, SB[2], "0"), bga[:14], maxtree(SB[1], SB[0]), maxtree(SB[2], SB[0] + 1),
   set_c(0, SB[0], SB[0] + 2), set_c(1, SB[0] + 1, SB[0] + 2), qk(0, 0, SB[0], v(CR[0], 16)), bga[14:])

slots = []
for n in range(128):
    kt, h = divmod(n, 2); s0 = SB[n % 3]
    ex = [I(f"v_exp_f32 v{s0+e}, v{s0+e}") for e in range(16)]
    if n < 127:
        m1, m2 = qk((n + 1) % 2, (n + 1) // 2, SB[(n + 1) % 3], v(CR[(n + 1) % 2], 16))
    else: m1 = m2 = None
    p2 = None
    if n > 0:
        km, hm = divmod(n - 1, 2)
        p2 = I(f"v_smfmac_f32_32x32x32_bf16 {a_(AO[hm],16)}, {a_(AV[km%2] + 4, 4)}, {v(SB[(n-1)%3] + 8, 8)}, v{vIDX}")
    p1 = I(f"v_smfmac_f32_32x32x32_bf16 {a_(AO[h],16)}, {a_(AV[kt%2], 4)}, {v(s0, 8)}, v{vIDX}")
    u = [[m1], [m2], [p2], [p1]]
    if h == 0 and kt < 63:
        u[0] += KR[kt + 1]; u[2] += VR[kt + 1]; u[3].append(W(lgkm=KR[kt + 1]))
    if h == 1 and kt < 63:
        if n % 16 == 13 and n // 16 < 7: u[3] += [W(vm=[KVD[n // 16 + 1][-1][1]], lgkm0=True), I("s_barrier")]
        else: u[3].append(W(lgkm0=True))
    slots.append((u, ex))
def bg(n, pos, pre, op):
    u = slots[n][0]
    pre = list(flat([pre]))
    if pos == 2: u[2] += pre + ([I("s_nop 0")] if getattr(op, "dma", False) and len(pre) else []) + [op]
    else:
        u[2] += pre; u[3].append(op)
events = {}
def sched(pairs, n0, n1):
    for k, pr in enumerate(pairs):
        n = n0 + (k * (n1 - n0)) // len(pairs)
        events.setdefault(n, []).append(pr)
for d in range(2, 8): sched(KVD[d], 16 * (d - 2) + 0, 16 * (d - 2) + 12)
PST = []
for t in range(9):
    for o in range(2):
        for pi in range(2):
            PST.append([I(f"s_mov_b32 {sOS}, {4096*t}") if o == 0 and pi == 0 else None,
                        I(f"buffer_store_dwordx4 {v(packed(t,o) + 4*pi, 4)}, v{vPS0 + o}, {SWS}, {sOS} offen offset:{2048*pi} sc1")])
PST = link(PST); sched(PST, 0, 48)
pflag = I(f"buffer_store_dword v{vONE}, v{vFLG}, {SWS}, 0 offen sc1")
sched([[W(vm=[PST[-1][1]]), pflag]], 54, 55)
WOD = []
for c in range(9):
    if c == 8:
        WOD.append([f"""
s_mul_i32 s62, {sW}, {144*1152}
v_lshrrev_b32 v{vWOa}, 4, v0
v_bfe_u32 v{vWOb}, v0, 2, 1
v_lshl_add_u32 v{vWOa}, v{vWOa}, 1, v{vWOb}
v_bfe_u32 v{vWOb}, v0, 3, 1
v_lshl_add_u32 v{vWOa}, v{vWOa}, 1, v{vWOb}
v_mad_u32_u24 v{vWOa}, v{vWOa}, 9, 8
v_mul_u32_u24 v{vWOa}, 1152, v{vWOa}
v_add_u32 v{vWOa}, s62, v{vWOa}
v_lshl_add_u32 v{vWOb}, v{vG1}, 2, v{vWOa}
v_lshl_add_u32 v{vWOa}, v{vG1}, 4, v{vWOa}
v_add_u32 v{vWOa}, s60, v{vWOa}
""", I(f"v_add_u32 v{vWOb}, s61, v{vWOb}")])
    so = (72 * 1152 * c) if c < 8 else 0
    WOD.append([[I(f"s_mov_b32 {sOQ}, {so}"), I(f"s_add_u32 m0, {sWWO}, {2304*c}")], I(f"buffer_load_dwordx4 v{vWOa}, {SWO}, {sOQ} offen lds")])
    WOD.append([I(f"s_add_u32 m0, {sWWO}, {2304*c + 1024 - 64}"), I(f"buffer_load_dwordx4 v{vWOa}, {SWO}, {sOQ} offen offset:64 lds")])
    WOD.append([I(f"s_add_u32 m0, {sWWO}, {2304*c + 2048}"), I(f"buffer_load_dword v{vWOb}, {SWO}, {sOQ} offen lds")])
WOD = link(WOD); sched(WOD, 40, 68)
TACC = 48; TSEL = 68; TB2 = 76; vG2 = 86; vOP, vOS, vOL, vOLR, vOUT, vOUTH, vWR, vWRH, vTA, vTB = range(87, 97); OF = 100; TW = 172
poll2_t = f"buffer_load_dword v{vTB}, v{vPP}, {SWS}, 0 offen sc1"
poll2 = I(poll2_t)
sched([[f"""
s_lshl_b32 s62, {sI}, 6
s_lshl_b32 s63, {sTH}, 1
s_add_u32 s62, s62, s63
s_lshr_b32 s63, {sCG}, 2
s_add_u32 s63, s63, s62
s_lshl_b32 s63, s63, 7
s_add_u32 s63, s63, {WS_PF}
v_and_b32 v{vTA}, 15, v0
v_lshl_add_u32 v{vPP}, v{vTA}, 9, s63
s_lshr_b32 s63, {sW}, 1
s_add_u32 s63, s63, s62
s_lshl_b32 s63, s63, 7
s_add_u32 s63, s63, {WS_OF}
""", I(f"v_lshl_add_u32 v{vOP}, v{vTA}, 9, s63")]], 57, 58)
sched([[None, poll2]], 66, 67)
sched([[[W(vm=[poll2])], spin_check(poll2_t, f"v_cmp_ne_u32 vcc, 1, v{vTB}")]], 70, 71)
PLD = []
for m in range(4):
    for c in range(9):
        pre = I(f"s_mov_b32 {sOL}, {m*4*R + (4096 if 4 <= c < 8 else 0)}") if c % 4 == 0 else None
        PLD.append([pre, I(f"buffer_load_dwordx4 {a_(APL + 4*(9*m + c), 4)}, v{vPLM if c < 8 else vPLH}, {SWS}, {sOL} offen offset:{1024*(c%4)} sc1")])
PLD = link(PLD); sched(PLD, 71, 124)
gld1 = I(f"buffer_load_dword v{vG1}, v{vTB}, {SWS}, 0 offen sc1"); gld2 = I(f"buffer_load_dword v{vG2}, v{vTB}, {SWS}, 0 offen sc1")
b2l = [I(f"buffer_load_dwordx2 {v(TB2 + 2*t, 2)}, v{vTB}, {SB2}, {'s60' if t < 4 else 's61'} offen offset:{32*(t%4)}") for t in range(5)]
misc = [[f"""
s_lshl_b32 s62, {sI}, 9
s_lshl_b32 s63, {sW}, 7
s_add_u32 s63, s63, s62
s_add_u32 s63, s63, {WS_G}
v_and_b32 v{vTB}, 31, v0
v_lshl_add_u32 v{vTB}, v{vTB}, 2, s63
""", gld1], [f"""
s_lshl_b32 s63, {sTH}, 8
s_add_u32 s62, s62, s63
s_lshl_b32 s63, {sW}, 6
s_add_u32 s62, s62, s63
s_add_u32 s63, s62, {WS_G}
v_lshl_add_u32 v{vTB}, v{vTA}, 2, s63
""", gld2], [f"""
v_lshrrev_b32 v{vTB}, 4, v0
v_lshlrev_b32 v{vTB}, 3, v{vTB}
""", b2l[0]]] + [[None, x] for x in b2l[1:]]
sched(misc, 98, 112)
for n in range(128):
    u, ex = slots[n]
    ev = events.get(n, [])
    for k, (pre, op) in enumerate(ev):
        pre = list(flat([pre])); ops = list(flat([op]))
        dma = getattr(ops[0], "dma", False)
        pos = [3, 2, 0][len(ev) - 1 - k] if len(ev) <= 3 else 3
        tgt = u[pos]
        prev = {3: u[2], 2: u[0], 0: None}[pos]
        simple = all(y.kind == "salu" and not isinstance(y, W) for y in pre)
        if prev is not None and simple and k == 0 and pre and prev[0] is not None:
            for y in reversed(pre): prev.insert(1, y)
            tgt += ops
        else:
            tgt += pre + ops
    if n in (1, 13, 29, 45, 53, 55, 61, 69, 71, 77, 93, 109): u[0] += stamp(8)
    em(u[0], ex[0:4], u[1], ex[4:8], u[2], ex[8:12], u[3], ex[12:16])
em("s_nop 0", f"v_smfmac_f32_32x32x32_bf16 {a_(AO[1],16)}, {a_(AV[1] + 4, 4)}, {v(SB[127%3] + 8, 8)}, v{vIDX}")
em(stamp(9))

em(f"""
s_lshl_b32 s63, {sI}, 2
s_add_u32 s69, s63, {sW}
s_mul_i32 s69, s69, 36864
s_add_u32 s69, s69, {WS_O}
s_lshl_b32 {sOS}, {sJ}, 11
s_add_u32 {sOS}, {sOS}, s69
s_lshl_b32 {sOL}, {sJ}, 8
s_add_u32 {sOL}, {sOL}, s69
s_add_u32 {sOL}, {sOL}, 32768
v_lshlrev_b32 v{vOS}, 4, v0
v_and_b32 v{vOL}, 31, v0
v_lshrrev_b32 v{vOLR}, 5, v0
v_lshlrev_b32 v{vOLR}, 2, v{vOLR}
v_lshl_add_u32 v{vOL}, v{vOL}, 3, v{vOLR}
""")
OV = [SB[0], SB[1]]
em("L_epi:", "s_nop 3")
for h in range(2): em([f"v_accvgpr_read_b32 v{OV[h]+e}, a{AO[h]+e}" for e in range(10)])
lim = f2u(2.0 ** 60) if not OPT["force_fb"] else f2u(0.5)
em(f"""
v_max3_f32 v{SB[2]}, |v{OV[0]}|, |v{OV[0]+1}|, |v{OV[0]+2}|
v_max3_f32 v{SB[2]+1}, |v{OV[1]}|, |v{OV[1]+1}|, |v{OV[1]+2}|
""")
for e in (3, 5, 7):
    for h in range(2): em(f"v_max3_f32 v{SB[2]+h}, |v{OV[h]+e}|, |v{OV[h]+e+1}|, v{SB[2]+h}")
em(f"""
v_max_f32 v{SB[2]}, v{SB[2]}, v{SB[2]+1}
v_mul_f32 v{SB[2]}, {hex(f2u(2.0**-60))}, v{SB[2]}
v_rcp_f32 v{SB[2]+2}, v{OV[0]+9}
v_add_f32 v{SB[2]}, v{SB[2]}, v{OV[0]+9}
v_rcp_f32 v{SB[2]+3}, v{OV[1]+9}
v_add_f32 v{SB[2]}, v{SB[2]}, v{OV[1]+9}
v_cmp_ngt_f32 vcc, {hex(lim)}, v{SB[2]}
""", W(vm=[gld1]), f"""
s_cbranch_vccnz L_fb
L_fbdone:
v_mul_f32 v{SB[2]+2}, v{SB[2]+2}, v{vG1}
v_mul_f32 v{SB[2]+3}, v{SB[2]+3}, v{vG1}
""")
ost = []
for h in range(2):
    em([f"v_mul_f32 v{OV[h]+e}, v{OV[h]+e}, v{SB[2]+2+h}" for e in range(9)])
    em([f"v_cvt_pk_bf16_f32 v{OV[h]+12+e}, v{OV[h]+2*e}, v{OV[h]+2*e+1}" for e in range(4)])
    ost.append(I(f"buffer_store_dwordx4 {v(OV[h]+12, 4)}, v{vOS}, {SWS}, {sOS} offen offset:{1024*h} sc1")); em(ost[-1])
ost.append(I(f"buffer_store_dword v{SB[2]}, v{vOL}, {SWS}, {sOL} offen sc1"))
em(f"v_cvt_pk_bf16_f32 v{SB[2]}, v{OV[0]+8}, v{OV[1]+8}", ost[-1])
em(f"""
s_mov_b32 {sOM}, {WS_OF - WS_PF}
v_and_b32 v{vWR}, 1, v0
v_lshlrev_b32 v{vWR}, 4, v{vWR}
v_mov_b32 v{vWRH}, 0x3f80
v_lshlrev_b32 v{vWRH}, v{vWR}, v{vWRH}
v_lshrrev_b32 v{vWR}, 1, v{vTA}
""")
for e in range(8):
    em(f"v_cmp_eq_u32 vcc, {e}, v{vWR}")
    t, hh = divmod(e, 2) if e < 8 else (0, 0)
    em(f"v_lshlrev_b32 v{TACC + 4*t + 2*hh}, 16, v{TB2 + e}" if e > 0 else [W(vm=b2l), f"v_lshlrev_b32 v{TACC}, 16, v{TB2}"],
       f"v_and_b32 v{TACC + 4*t + 2*hh + 1}, 0xffff0000, v{TB2 + e}")
    em(f"v_cndmask_b32 v{TSEL + e}, 0, v{vWRH}, vcc")
for e in (8, 9):
    em(f"v_lshlrev_b32 v{TACC + 16 + 2*(e-8)}, 16, v{TB2 + e}", f"v_and_b32 v{TACC + 17 + 2*(e-8)}, 0xffff0000, v{TB2 + e}")
em(W(vm=[PLD[-1][1]]), "s_nop 0")
red = []
for t in range(5):
    for m in range(4):
        for c in ((2 * t, 2 * t + 1) if t < 4 else (8,)):
            red.append([I(f"v_mfma_f32_16x16x32_bf16 {v(TACC + 4*t, 4)}, {v(TSEL + 4*(c%2), 4)}, {a_(APL + 4*(9*m + c), 4)}, {v(TACC + 4*t, 4)}")])
tail_addr = f"""
s_lshl_b32 s62, {sTH}, 1
s_add_u32 s62, s62, s63
s_lshr_b32 s69, {sW}, 1
s_add_u32 s62, s62, s69
s_mul_i32 s62, s62, 36864
s_add_u32 s62, s62, {WS_O}
s_and_b32 s69, {sW}, 1
s_lshl_b32 s69, s69, 4
v_add_u32 v{vOL}, s69, v{vTA}
v_lshrrev_b32 v{vTB}, 4, v0
v_lshlrev_b32 v{vOLR}, 3, v{vOL}
v_lshl_add_u32 v{vOLR}, v{vTB}, 10, v{vOLR}
v_add_u32 v{vOLR}, s62, v{vOLR}
v_lshlrev_b32 v{vOL}, 4, v{vOL}
v_lshl_add_u32 v{vOL}, v{vTB}, 9, v{vOL}
v_add_u32 v{vOL}, s62, v{vOL}
s_lshl_b32 s62, {sI}, 1
s_add_u32 s62, s62, {sTH}
s_lshl_b32 s62, s62, 2
s_add_u32 s62, s62, {sW}
s_mul_i32 s62, s62, {16*1152}
v_mul_u32_u24 v{vOUT}, 1152, v{vTA}
v_lshl_add_u32 v{vOUT}, v{vTB}, 3, v{vOUT}
v_add_u32 v{vOUT}, s62, v{vOUT}
v_cmp_gt_u32 vcc, 32, v0
v_mov_b32 v{vOUTH}, {OOB}
v_mul_u32_u24 v{vWR}, {WOR}, v{vTB}
v_add_u32 v{vWR}, {WOB}, v{vWR}
v_cndmask_b32 v{vOUTH}, v{vOUTH}, v{vOUT}, vcc
v_bfe_u32 v{vTB}, v0, 2, 2
v_lshl_add_u32 v{vWRH}, v{vTB}, 4, v{vWR}
v_lshl_add_u32 v{vWR}, v{vTB}, 6, v{vWR}
v_and_b32 v{vTB}, 3, v0
v_lshl_add_u32 v{vWR}, v{vTB}, 3, v{vWR}
v_and_b32 v{vTB}, 1, v0
v_lshl_add_u32 v{vWRH}, v{vTB}, 3, v{vWRH}
v_sub_f32 v{vG2}, 1.0, v{vG2}
"""
spread(red, [tail_addr], 0, 30, 16)
oflag = I(f"buffer_store_dword v{vONE}, v{vFLG}, {SWS}, {sOM} offen sc1")
em(red, W(vm=ost), oflag)
poll3_t = f"buffer_load_dword v{vTB}, v{vOP}, {SWS}, 0 offen sc1"
def wo_frag(n):
    return a_(4 * n, 4) if n < 64 else v(TW + 4 * ((n - 64) % 20), 4)
def wo_read(n):
    c, r = divmod(n, 10); t, s = divmod(r, 2); o = []
    for rho in range(2):
        d = a_(4 * n + 2 * rho, 2) if n < 64 else v(TW + 4 * ((n - 64) % 20) + 2 * rho, 2)
        if t < 4: o.append(I(f"ds_read_b64_tr_b16 {d}, v{vWR} offset:{2304*c + 1024*(t//2) + 512*s + 256*rho + 32*(t%2)}"))
        else: o.append(I(f"ds_read_b64_tr_b16 {d}, v{vWRH} offset:{2304*c + 2048 + 128*s + 64*rho}"))
    return o
WRD = [wo_read(n) for n in range(90)]
em("s_nop 7", [f"v_mul_f32 v{TACC+e}, v{TACC+e}, v{vG2}" for e in range(20)])
for n in range(84):
    em(WRD[n])
    if n % 6 == 5: em(W(lgkm=WRD[n - 3]))
poll3 = I(poll3_t)
em(stamp(), poll3, W(vm=[poll3], lgkm0=True), spin_check(poll3_t, f"v_cmp_ne_u32 vcc, 1, v{vTB}"), stamp())
OLD = []
for ks in range(16):
    pre = I(f"s_mov_b32 {sOL}, {4096*(ks//2)}") if ks % 2 == 0 else None
    OLD.append(I(f"buffer_load_dwordx4 {v(OF + 4*ks, 4)}, v{vOL}, {SWS}, {sOL} offen offset:{2048*(ks%2)} sc1")); em(pre, OLD[-1])
em(f"s_mov_b32 {sOL}, 32768")
for e in range(4):
    OLD.append(I(f"buffer_load_dwordx2 {v(OF + 64 + 2*e, 2)}, v{vOLR}, {SWS}, {sOL} offen offset:{256*e} sc1")); em(OLD[-1])
for c in range(9):
    em(W(vm=[OLD[2 * c + 1] if c < 8 else OLD[-1]], lgkm0=(c == 8)))
    for r in range(10):
        t, s = divmod(r, 2); n = 10 * c + r
        em(f"v_mfma_f32_16x16x32_bf16 {v(TACC + 4*t, 4)}, {wo_frag(n)}, {v(OF + 8*c + 4*s, 4)}, {v(TACC + 4*t, 4)}")
        if 64 <= n < 70: em(WRD[n + 20])
for t in range(5):
    em([f"v_cvt_pk_bf16_f32 v{TACC + 4*t + r}, v{TACC + 4*t + 2*r}, v{TACC + 4*t + 2*r + 1}" for r in range(2)])
    em(f"buffer_store_dwordx2 {v(TACC + 4*t, 2)}, v{vOUT if t < 4 else vOUTH}, {SOUT}, {'s60' if t < 4 else 's61'} offen offset:{32*(t%4)}")
if OPT["stamps"]:
    em("s_waitcnt vmcnt(0)", stamp(15), f"v_mov_b32 v1, 0")
    for k in range(nst[0]): em(f"v_writelane_b32 v1, s{84+k}, {k}")
    em(f"""
s_lshl_b32 s62, s2, 2
s_add_u32 s62, s62, {sW}
s_lshl_b32 s62, s62, 6
s_add_u32 s62, s62, {WS_ST}
v_cmp_gt_u32 vcc, 16, v0
v_lshlrev_b32 v2, 2, v0
v_mov_b32 v3, {OOB}
v_cndmask_b32 v2, v3, v2, vcc
buffer_store_dword v1, v2, {SWS}, s62 offen
""")
    if OPT.get("dbgout"):
        em(f"""
v_subrev_u32 v1, s84, v1
v_add_u32 v2, -1, v0
v_mul_u32_u24 v3, 0x5556, v2
v_lshrrev_b32 v3, 16, v3
v_add_u32 v2, v0, v3
v_lshlrev_b32 v2, 2, v2
v_cmp_eq_u32 vcc, 0, v0
v_mov_b32 v3, 0x1000
s_lshl_b32 s62, s2, 2
s_add_u32 s62, s62, {sW}
s_cmp_eq_u32 s62, {OPT['dbgout']}
s_cselect_b32 s62, 0, 0x1000
v_cndmask_b32 v2, v2, v3, vcc
v_cmp_lt_u32 vcc, 12, v0
s_nop 1
v_cndmask_b32 v2, v2, v3, vcc
buffer_store_dword v1, v2, {SDBG}, s62 offen
""")
em("L_end:", "s_endpgm")

FK, FK2, FV, FM = 100, 116, 120, 152
fb = [f"""
L_fb:
v_subrev_u32 v{vK}, {KVB}, v{vK}
v_subrev_u32 v{vK2}, {KVB}, v{vK2}
v_cmp_gt_u32 vcc, 0x40000, v{vV}
v_subrev_u32 v{vV}, {KVB}, v{vV}
v_mov_b32 v{FM}, {OOB}
v_cndmask_b32 v{vV}, v{FM}, v{vV}, vcc
v_mov_b32 v{FM}, 0xff7fffff
v_mov_b32 v{FM+1}, 0xff7fffff
s_mov_b32 s62, {WS_KV}
L_fb1:
s_add_u32 s69, s62, 4096
"""]
fbk = [f"buffer_load_dwordx4 {v(FK + 4*r, 4)}, v{vK}, {SWS}, s62 offen offset:{1024*r} sc1" for r in range(4)] + [f"buffer_load_dwordx2 {v(FK2, 2)}, v{vK2}, {SWS}, s69 offen sc1"]
fb += fbk + ["s_waitcnt vmcnt(0)"]
for r in range(4):
    fb += [qk(0, r, SB[0], "0", v(FK + 4 * r, 4), v(FK2, 2)), qk(1, r, SB[1], "0", v(FK + 4 * r, 4), v(FK2, 2)), "s_nop 15",
           maxtree(SB[0], FM, FM), maxtree(SB[1], FM + 1, FM + 1)]
fb += [f"""
s_add_u32 s62, s62, {CH}
s_cmp_lt_u32 s62, {WS_KV + 16*CH}
s_cbranch_scc1 L_fb1
""", set_c(0, FM, FM + 2), set_c(1, FM + 1, FM + 2), [f"v_accvgpr_write_b32 a{e}, 0" for e in range(32)], f"""
s_mov_b32 s62, {WS_KV}
L_fb2:
s_add_u32 s69, s62, 4096
"""] + fbk + [f"s_add_u32 s69, s62, 4608"]
for r in range(4):
    if r == 2: fb += [f"s_add_u32 s69, s69, 2432"]
    fb += [f"buffer_load_dwordx4 {v(FV + 8*r + 4*e, 4)}, v{vV}, {SWS}, s69 offen offset:{1216*(r%2) + 608*e} sc1" for e in range(2)]
fb += ["s_waitcnt vmcnt(0)"]
for r in range(4):
    fb += [qk(0, r, SB[0], v(CR[0], 16), v(FK + 4 * r, 4), v(FK2, 2)), qk(1, r, SB[1], v(CR[1], 16), v(FK + 4 * r, 4), v(FK2, 2)), "s_nop 15"]
    for h in range(2):
        fb += [[f"v_exp_f32 v{SB[h]+e}, v{SB[h]+e}" for e in range(16)], "s_nop 1"]
        fb += [f"v_smfmac_f32_32x32x32_bf16 {a_(AO[h],16)}, {v(FV + 8*r + 4*e, 4)}, {v(SB[h] + 8*e, 8)}, v{vIDX}" for e in range(2)]
fb += [f"""
s_add_u32 s62, s62, {CH}
s_cmp_lt_u32 s62, {WS_KV + 16*CH}
s_cbranch_scc1 L_fb2
s_nop 15
"""]
for h in range(2): fb += [[f"v_accvgpr_read_b32 v{OV[h]+e}, a{AO[h]+e}" for e in range(10)]]
fb += [f"v_rcp_f32 v{SB[2]+2}, v{OV[0]+9}", f"v_rcp_f32 v{SB[2]+3}, v{OV[1]+9}", "s_nop 1", "s_branch L_fbdone"]
OUTL.extend(flat(fb))

resolve_waits(P)
P2 = check(P)
if OPT.get("x_nodma"): P2 = [x for x in P2 if not (getattr(x, "dma", False) and SW2 in x.text)]
if OPT.get("x_nodma1"): P2 = [x for x in P2 if not (getattr(x, "dma", False) and (SW1 in x.text or SX in x.text or SWQ in x.text or SEX in x.text))]
if OPT.get("x_nogelu"): P2 = [x for x in P2 if not (x.kind in ("valu", "trans") and x.wr and x.wr[0][0] == "v" and 32 <= x.wr[0][1] < 40 and "cndmask" not in x.mn and "mov" not in x.mn)]
if OPT.get("x_nobar"): P2 = [x for x in P2 if x.mn != "s_barrier"]
if OPT.get("x_notr"): P2 = [x for x in P2 if x.mn != "ds_read_b64_tr_b16"]
O2 = check(OUTL)
hdr = open(os.path.join(os.path.dirname(os.path.abspath(__file__)), "..", "cdna_kernels", NAME + ".s.ref")).read().split("; Override launch")[0]
src = hdr + f"""; Generated by gen/gen.py (hand-written generator).
; @launch grid=(256,1,1) block=(256,1,1) lds={LDS_BYTES}
.amdgcn_target "amdgcn-amd-amdhsa--gfx950"
.text
.globl {NAME}_kernel
.p2align 8
.type {NAME}_kernel,@function
{NAME}_kernel:
""" + render(P2) + render(O2) + f"""L_codeend:
    s_endpgm
.section .rodata,"a"
.p2align 6
.amdhsa_kernel {NAME}_kernel
  .amdhsa_next_free_vgpr 512
  .amdhsa_next_free_sgpr 102
  .amdhsa_accum_offset 256
  .amdhsa_group_segment_fixed_size 0
  .amdhsa_kernarg_size 112
  .amdhsa_user_sgpr_count 2
  .amdhsa_user_sgpr_kernarg_segment_ptr 1
  .amdhsa_system_sgpr_workgroup_id_x 1
.end_amdhsa_kernel
"""
open(sys.argv[1], "w").write(src)
print("instrs:", len(P2), len(O2))
```

```python
import sys, math, struct, os
from asm import *

NAME = "gated_mix__grouped_kv_mqa__dense_activation_gelu__prompt"
OPT = dict(stamps=0, force_fb=0, spin=1 << 18)
for a in sys.argv[2:]:
    k, v = a.split("="); OPT[k] = int(v)

def f2u(x): return struct.unpack("<I", struct.pack("<f", x))[0]
def v(a, n=1): return f"v{a}" if n == 1 else f"v[{a}:{a+n-1}]"
def a_(a, n=1): return f"a{a}" if n == 1 else f"a[{a}:{a+n-1}]"
def rg(r, off=0, n=1):
    return (v if r[0] == "v" else a_)(r[1] + off, n)

WS_KV = 0; CH = 9472; DC = 2 * CH
WS_G = 0x28000
WS_PF = 0x30000
WS_OF = 0x50000
WS_ST = 0x70000
WS_O = 0x80000
WS_P = 0x400000; R = 73728
OOB = 0x40000000
WR = 10784; SLOT = 4 * WR; TOP = 3 * SLOT
XB = TOP; BIAS = TOP + 32768; TMP = TOP; HB = TOP + 12288
KVS = [0, 20480, 40960]; KVB = 0
WOR = 20768; WOB = 61440
LDS_BYTES = 163840
SX, SW1, SWQ, SEX, SW2, SWO, SWS, SOUT, SB1, SB2, SGW, SDBG = [f"s[{4+4*k}:{7+4*k}]" for k in range(12)]
sI, sJ, sW, sWB = "s56", "s57", "s58", "s59"
sO1, sOQ, sOE, sOM, sXT = "s64", "s65", "s66", "s67", "s68"
sGB, sQS, sWKV, sWWO, sSP = "s70", "s71", "s72", "s73", "s74"
sTH, sCG, sOS, sOL, sXB = "s75", "s76", "s77", "s78", "s79"
vL = 0
vR2, vW2, vHW, vHR, vGA, vPOLL, vKVD, vSIG, vONE = 1, 2, 3, 4, 5, 6, 7, 8, 9
vPS0, vPS1, vFLG = 10, 11, 12
vIDX, vG1, vTMP = 13, 14, 15
HOWN = [16, 24]; GT = 32
ACCV = 48
PROJ = 48; XR = 72; WRING = 120; GATE = 152
vW1, vWQ, vWQT, vEX, vX, vR1a, vR1b, vR1xa, vR1xb, vTID, vBI = range(176, 187)
vPW, vPW2, vPQ, vPV, vS1, vS2, vS3, vQF, vT0, vT1, vT2 = range(187, 198)
vX2, vXR0, vXR1, vCLR = range(198, 202)
AW = [192, 200, 240]; AHP = [208, 216]; AQ = 224; AQR = 232

def hp(ft, T):
    s, k = divmod(ft, 2)
    base = ("v", 224 + 16 * s) if s < 2 else ("a", 16 * (s - 2))
    return (base[0], base[1] + 8 * k + 4 * T)
ORD = [(t, o) for t in range(9) for o in range(2)]
ATILES = ORD[6:11]
def acc2(t, o):
    n = ORD.index((t, o))
    if (t, o) in ATILES: return ("a", 112 + 16 * (n - 6))
    return ("v", ACCV + 16 * (n if n < 6 else n - 5))
def packed(t, o): return ACCV + 8 * ORD.index((t, o))

P = []
OUTL = []
def em(*x): P.extend(flat(x))
nst = [0]
def stamp(mask=1):
    if not (OPT["stamps"] & mask): return []
    k = nst[0]; nst[0] += 1
    assert k < 16
    return list(flat([f"{'s_memtime' if OPT.get('cyc') else 's_memrealtime'} s[80:81]", "s_waitcnt lgkmcnt(0)", f"s_mov_b32 s{84+k}, s80"]))

def srd_consts():
    sizes = {4: 2359296, 8: 5308416, 12: 663552, 16: 20736, 20: 5308416, 24: 663552, 28: 268435456, 32: 2359296, 36: 9216, 40: 1152, 44: 1152, 48: 256}
    return [f"s_mov_b32 s{b+2}, {n}\ns_mov_b32 s{b+3}, 0x20000" for b, n in sizes.items()]

if OPT.get("st0"): em("s_memrealtime s[100:101]")
em(f"""
s_cmp_ge_u32 s2, 256
s_cbranch_scc1 L_end
s_load_dwordx2 s[8:9], s[0:1], 48
s_load_dwordx2 s[4:5], s[0:1], 0
s_load_dwordx2 s[12:13], s[0:1], 8
s_load_dwordx4 s[52:55], s[0:1], 16
s_load_dwordx2 s[36:37], s[0:1], 56
s_load_dwordx2 s[20:21], s[0:1], 64
s_load_dwordx2 s[24:25], s[0:1], 32
s_load_dwordx2 s[28:29], s[0:1], 104
s_load_dwordx2 s[32:33], s[0:1], 88
s_load_dwordx2 s[40:41], s[0:1], 72
s_load_dwordx2 s[44:45], s[0:1], 80
s_load_dwordx2 s[48:49], s[0:1], 96
s_getpc_b64 s[60:61]
L_pc:
v_lshlrev_b32 v1, 7, v0
v_min_u32 v2, L_codeend-L_pc-4, v1
""")
pf0 = I("global_load_dword v3, v2, s[60:61]")
em(pf0, f"""
v_add_u32 v1, 0x8000, v1
v_min_u32 v2, L_codeend-L_pc-4, v1
""")
pf1 = I("global_load_dword v4, v2, s[60:61]")
em(pf1, f"""
v_lshrrev_b32 v1, 6, v0
v_mov_b32 v{vTID}, v0
v_readfirstlane_b32 {sW}, v1
v_and_b32 v0, 63, v0
s_and_b32 {sI}, s2, 1
s_lshl_b32 {sI}, {sI}, 3
s_bfe_u32 s62, s2, 0x30003
s_add_u32 {sI}, {sI}, s62
s_bfe_u32 {sJ}, s2, 0x20001
s_lshl_b32 {sJ}, {sJ}, 2
s_lshr_b32 s62, s2, 6
s_add_u32 {sJ}, {sJ}, s62
s_mul_i32 {sWB}, {sW}, {WR}
""", srd_consts(), f"""
v_lshrrev_b32 v1, 2, v{vTID}
v_and_b32 v2, 3, v{vTID}
s_mul_i32 s62, {sJ}, 576
v_mul_u32_u24 v{vW1}, 9216, v1
v_lshl_add_u32 v{vW1}, v2, 4, v{vW1}
v_add_u32 v{vW1}, s62, v{vW1}
v_lshl_add_u32 v{vBI}, v{vTID}, 1, s62
s_mul_i32 s62, {sJ}, 72
v_mul_u32_u24 v5, 1152, v1
v_add_u32 v5, s62, v5
v_lshl_add_u32 v{vWQ}, v2, 4, v5
v_lshl_add_u32 v{vWQT}, v2, 2, v5
v_add_u32 v{vWQT}, 56, v{vWQT}
s_and_b32 s62, {sJ}, 1
s_lshl_b32 s62, s62, 4
s_cmp_ge_u32 {sJ}, 4
s_cselect_b32 s62, 20, s62
v_mul_u32_u24 v5, 36, v1
v_lshl_add_u32 v5, v2, 2, v5
v_add_u32 v{vEX}, s62, v5
s_lshl_b32 s62, {sI}, 2
s_add_u32 s62, s62, {sW}
s_mul_i32 s62, s62, {32*1152}
v_lshrrev_b32 v2, 4, v0
v_lshrrev_b32 v1, 3, v0
v_mul_u32_u24 v5, 1152, v1
v_add_u32 v5, s62, v5
v_add_u32 v1, 2, v2
v_xor_b32 v1, v1, v0
v_and_b32 v1, 7, v1
v_lshl_add_u32 v{vX}, v1, 4, v5
v_xor_b32 v1, 4, v1
v_lshl_add_u32 v{vX2}, v1, 4, v5
v_add_u32 v{vX2}, {8*1152}, v{vX2}
s_lshl_b32 {sXB}, {sW}, 12
s_mov_b32 {sXT}, {16*1152}
s_lshr_b32 s62, 0x2c, {sJ}
s_waitcnt lgkmcnt(0)
s_bitcmp1_b32 s62, 0
s_cselect_b32 s16, s54, s52
s_cselect_b32 s17, s55, s53
""")
em(stamp(15))
bl0 = I(f"buffer_load_ushort v6, v{vBI}, {SB1}, 0 offen"); bl1 = I(f"buffer_load_ushort v7, v{vBI}, {SB1}, 0 offen offset:512")
em(bl0, bl1)

def p1_loads(c):
    sl = (c % 3) * SLOT; o = []
    so = [I(f"s_mov_b32 {sO1}, {c*64*9216}"), I(f"s_mov_b32 {sOQ}, {c*64*1152}"), I(f"s_mov_b32 {sOE}, {c*64*36}"), None]
    for n in range(4):
        o.append([[so[n], I(f"s_add_u32 m0, {sXB}, {XB + 16384*(c%2) + 1024*n - 128*c}")],
                  I(f"buffer_load_dwordx4 v{vX2 if n%2 else vX}, {SX}, {sXT if n >= 2 else 0} offen offset:{128*c} lds")])
    for n in range(9):
        o.append([I(f"s_add_u32 m0, {sWB}, {sl + 960*n}"), I(f"buffer_load_dwordx4 v{vW1}, {SW1}, {sO1} offen offset:{64*n} lds")])
    o.append([I(f"s_add_u32 m0, {sWB}, {sl + 9216}"), I(f"buffer_load_dwordx4 v{vWQ}, {SWQ}, {sOQ} offen lds")])
    o.append([I(f"s_add_u32 m0, {sWB}, {sl + 10240}"), I(f"buffer_load_dword v{vWQT}, {SWQ}, {sOQ} offen lds")])
    o.append([I(f"s_add_u32 m0, {sWB}, {sl + 10496}"), I(f"buffer_load_dword v{vEX}, {SEX}, {sOE} offen lds")])
    return o
def p2_loads(s):
    sl = (s % 3) * SLOT; o = []
    for n in range(9):
        pre = [I(f"s_add_u32 m0, {sWB}, {sl + 896*n}")]
        if n == 0: pre = [I(f"s_mov_b32 {sO1}, {s*36864}")] + pre
        o.append([pre, I(f"buffer_load_dwordx4 v{vW2}, {SW2}, {sO1} offen offset:{128*n} lds")])
    return o
LOADS = [link(p1_loads(c)) for c in range(9)] + [link(p2_loads(s)) for s in range(9)]
def last(c): return LOADS[c][-1][1]

em(LOADS[0])
em(f"""
v_bfe_u32 v5, v0, 2, 2
v_and_b32 v1, 3, v0
v_mul_u32_u24 v{vR1a}, {WR}, v2
v_lshl_add_u32 v{vR1xa}, v5, 4, v{vR1a}
v_lshl_add_u32 v{vR1a}, v5, 6, v{vR1a}
v_lshl_add_u32 v{vR1a}, v1, 3, v{vR1a}
v_add_u32 v{vR1b}, {2*SLOT}, v{vR1a}
v_lshrrev_b32 v5, 1, v1
v_and_b32 v1, 1, v1
v_lshl_add_u32 v{vR1xa}, v5, 8, v{vR1xa}
v_lshl_add_u32 v{vR1xa}, v1, 3, v{vR1xa}
v_add_u32 v{vR1xa}, 10240, v{vR1xa}
v_add_u32 v{vR1xb}, {2*SLOT}, v{vR1xa}
v_bfe_u32 v5, v0, 1, 3
v_add_u32 v5, 2, v5
v_lshlrev_b32 v1, 1, v2
v_xor_b32 v5, v5, v1
v_and_b32 v5, 7, v5
v_and_b32 v1, 15, v0
v_lshlrev_b32 v1, 7, v1
v_lshl_add_u32 v5, v5, 4, v1
s_add_u32 s62, {sXB}, {XB}
v_add_u32 v{vXR0}, s62, v5
v_xor_b32 v{vXR1}, 16, v{vXR0}
v_lshlrev_b32 v5, 2, v{vTID}
v_add_u32 v5, {BIAS}, v5
v_lshlrev_b32 v2, 4, v2
v_add_u32 v2, {BIAS}, v2
""", W(vm=[bl1]), f"""
v_lshlrev_b32 v6, 16, v6
v_lshlrev_b32 v7, 16, v7
ds_write_b32 v5, v6
ds_write_b32 v5, v7 offset:1024
s_waitcnt lgkmcnt(0)
s_barrier
""")
for ft in range(18):
    em(f"ds_read_b128 {rg(hp(ft, 0), 0, 4)}, v2 offset:{64*ft}")
    if ft == 8: em(W(lgkm0=True))
em(LOADS[1])
em(W(vm=[last(0)], lgkm0=True), "s_barrier", stamp(3))

def p1_reads(c, t):
    sl = c % 3; ring = WRING + 8 * ((21 * c + t) % 4); o = []
    for s in range(2):
        for rho in range(2):
            if t < 20:
                ad = vR1a if sl < 2 else vR1b
                off = (sl % 2) * SLOT + 1024 * (t // 2) + 512 * s + 256 * rho + 32 * (t % 2)
            else:
                ad = vR1xa if sl < 2 else vR1xb
                off = (sl % 2) * SLOT + 128 * s + 64 * rho
            o.append(I(f"ds_read_b64_tr_b16 {v(ring + 4*s + 2*rho, 2)}, v{ad} offset:{off}"))
    return o
def p1_acc(t, T): return hp(t, T) if t < 18 else ("v", PROJ + 8 * (t - 18) + 4 * T)
RD = {(c, t): p1_reads(c, t) for c in range(9) for t in range(21)}
def xreg(c, T, s): return v(XR + 16*(c%2) + 8*T + 4*s, 4)
XRD = {c: [I(f"ds_read_b128 {xreg(c, T, s)}, v{vXR1 if s else vXR0} offset:{16384*(c%2) + 2048*T}") for T in (1, 0) for s in range(2)] for c in range(9)}

def p2_reads(s, t):
    o = []
    for k in range(2):
        for rho in range(2):
            o.append(I(f"ds_read_b64_tr_b16 {a_(AW[t%3] + 4*k + 2*rho, 2)}, v{vR2} offset:{2*WR*k + 512*t + 256*rho}"))
    return o
RD2 = {(s, t): p2_reads(s, t) for s in range(9) for t in range(9)}

gl = [I(f"buffer_load_dwordx4 {v(GATE,4)}, v{vT0}, {SX}, 0 offen"), I(f"buffer_load_dwordx4 {v(GATE+4,4)}, v{vT0}, {SX}, 0 offen offset:16"),
      I(f"buffer_load_dword v{GATE+8}, v{vT0}, {SX}, 0 offen offset:32"),
      I(f"buffer_load_dwordx4 {v(GATE+10,4)}, v{vT1}, {SGW}, 0 offen"), I(f"buffer_load_dwordx4 {v(GATE+14,4)}, v{vT1}, {SGW}, 0 offen offset:16"),
      I(f"buffer_load_dword v{GATE+18}, v{vT1}, {SGW}, 0 offen offset:32")]
fill_c0 = f"""
s_lshl_b32 s62, {sI}, 4
s_add_u32 s62, s62, {sJ}
s_lshl_b32 s63, s62, 3
v_lshrrev_b32 v{vT2}, 5, v{vTID}
v_add_u32 v{vT2}, s63, v{vT2}
v_and_b32 v{vT1}, 31, v0
v_mul_u32_u24 v{vT1}, 36, v{vT1}
v_mul_u32_u24 v{vT0}, 1152, v{vT2}
v_add_u32 v{vT0}, v{vT0}, v{vT1}
s_lshl_b32 s62, s62, 2
s_add_u32 s62, s62, {sW}
s_lshl_b32 s62, s62, 7
s_add_u32 s62, s62, {WS_PF}
v_mov_b32 v{vFLG}, {OOB}
v_mov_b32 v{vONE}, 0
v_writelane_b32 v{vFLG}, s62, 0
s_lshl_b32 s62, {sI}, 13
s_add_u32 s62, s62, {WS_PF}
s_mul_i32 s63, {sW}, {WS_OF - WS_PF}
s_add_u32 s62, s62, s63
s_lshr_b32 s63, {sW}, 1
s_or_b32 s63, s63, {sJ}
s_cmp_eq_u32 s63, 0
s_cselect_b32 s62, s62, {OOB}
s_cselect_b32 s63, 7, 0
v_lshlrev_b32 v{vCLR}, s63, v0
v_add_u32 v{vCLR}, s62, v{vCLR}
"""
clr = [I(f"buffer_store_dword v{vONE}, v{vCLR}, {SWS}, 0 offen sc1")]
g_acc = GATE + 9; g0, g1, g2, g3 = GATE + 19, GATE + 20, GATE + 21, GATE + 22
gate_math = [f"v_mov_b32 v{g_acc}, 0"]
for d in range(9):
    xx = GATE + d; ww = GATE + 10 + d
    gate_math += [f"v_lshlrev_b32 v{g0}, 16, v{xx}", f"v_lshlrev_b32 v{g1}, 16, v{ww}", f"v_and_b32 v{g2}, 0xffff0000, v{xx}", f"v_and_b32 v{g3}, 0xffff0000, v{ww}",
                  f"v_fmac_f32 v{g_acc}, v{g0}, v{g1}", f"v_fmac_f32 v{g_acc}, v{g2}, v{g3}"]
pad2 = lambda a, b: [a, b]
gate_red = [
    f"v_lshlrev_b32 v{vT2}, 2, v{vT2}", f"v_add_u32 v{vT2}, {WS_G}, v{vT2}",
    f"v_add_f32_dpp v{g_acc}, v{g_acc}, v{g_acc} row_shr:1 row_mask:0xf bank_mask:0xf bound_ctrl:1",
    f"v_and_b32 v{g0}, 31, v0", f"v_cmp_eq_u32 vcc, 31, v{g0}",
    f"v_add_f32_dpp v{g_acc}, v{g_acc}, v{g_acc} row_shr:2 row_mask:0xf bank_mask:0xf bound_ctrl:1",
    f"v_mov_b32 v{g1}, {OOB}", f"v_mov_b32 v{vGA}, {hex(f2u(-2*math.sqrt(2/math.pi)*math.log2(math.e)))}",
    f"v_add_f32_dpp v{g_acc}, v{g_acc}, v{g_acc} row_shr:4 row_mask:0xf bank_mask:0xf bound_ctrl:1",
    f"v_cndmask_b32 v{vT2}, v{g1}, v{vT2}, vcc", f"v_mov_b32 v{vIDX}, 0xdddddddd",
    f"v_add_f32_dpp v{g_acc}, v{g_acc}, v{g_acc} row_shr:8 row_mask:0xf bank_mask:0xf bound_ctrl:1",
    f"v_mov_b32 v{vONE}, 1", f"v_mov_b32 v{vSIG}, 0x1000",
    f"v_add_f32_dpp v{g_acc}, v{g_acc}, v{g_acc} row_bcast:15 row_mask:0xa bank_mask:0xf",
    f"v_mul_f32 v{g_acc}, {hex(f2u(-math.log2(math.e)))}, v{g_acc}",
    f"v_exp_f32 v{g_acc}, v{g_acc}", f"s_mov_b32 {sGB}, {hex(f2u(-2*math.sqrt(2/math.pi)*math.log2(math.e)*0.044715))}",
    f"v_add_f32 v{g_acc}, 1.0, v{g_acc}", f"v_rcp_f32 v{g_acc}, v{g_acc}", f"s_mov_b32 {sQS}, {hex(f2u(math.log2(math.e)/math.sqrt(18)))}"]
gst = I(f"buffer_store_dword v{g_acc}, v{vT2}, {SWS}, 0 offen sc1")
fill_p2 = f"""
s_mul_i32 s62, {sJ}, 288
s_lshl_b32 s63, {sW}, 3
s_add_u32 s62, s62, s63
v_bfe_u32 v{vT0}, v0, 2, 3
v_add_u32 v{vT0}, s62, v{vT0}
v_mul_u32_u24 v{vW2}, 1152, v{vT0}
v_lshrrev_b32 v{vT1}, 5, v0
v_lshl_add_u32 v{vW2}, v{vT1}, 6, v{vW2}
v_and_b32 v{vT0}, 3, v0
v_lshl_add_u32 v{vW2}, v{vT0}, 4, v{vW2}
s_and_b32 s62, {sW}, 1
s_mul_i32 s62, s62, 4608
v_mul_u32_u24 v{vR2}, {WR}, v{vT1}
v_add_u32 v{vR2}, s62, v{vR2}
v_bfe_u32 v{vT0}, v0, 2, 2
v_lshl_add_u32 v{vR2}, v{vT0}, 6, v{vR2}
v_bfe_u32 v{vT0}, v0, 4, 1
v_lshl_add_u32 v{vR2}, v{vT0}, 5, v{vR2}
v_and_b32 v{vT0}, 1, v0
v_lshl_add_u32 v{vR2}, v{vT0}, 4, v{vR2}
v_bfe_u32 v{vT0}, v0, 1, 1
v_lshl_add_u32 v{vR2}, v{vT0}, 3, v{vR2}
s_lshl_b32 s62, {sW}, 11
s_add_u32 s62, s62, {HB}
v_lshl_add_u32 v{vHW}, v0, 4, s62
s_xor_b32 s62, {sW}, 1
s_lshl_b32 s62, s62, 11
s_add_u32 s62, s62, {HB}
v_lshl_add_u32 v{vHR}, v0, 4, s62
"""
fill_pe = f"""
s_mul_i32 s62, {sW}, 3072
s_add_u32 s62, s62, {TMP}
v_and_b32 v{vT0}, 15, v0
v_lshrrev_b32 v{vT1}, 4, v0
v_mul_u32_u24 v{vPW2}, 96, v{vT0}
v_add_u32 v{vPW2}, s62, v{vPW2}
v_lshl_add_u32 v{vPW}, v{vT1}, 3, v{vPW2}
v_cmp_gt_u32 vcc, 32, v0
v_xor_b32 v{vT2}, 1, v{vT1}
v_mov_b32 v{vQF}, {sQS}
v_cndmask_b32 v{vT2}, v{vT1}, v{vT2}, vcc
v_cndmask_b32 v{vQF}, 1.0, v{vQF}, vcc
v_lshl_add_u32 v{vPW2}, v{vT2}, 3, v{vPW2}
v_and_b32 v{vT2}, 31, v0
v_mul_u32_u24 v{vPQ}, 96, v{vT2}
v_add_u32 v{vPQ}, s62, v{vPQ}
v_bfe_u32 v{vPV}, v0, 2, 2
v_lshl_add_u32 v{vPV}, v{vT1}, 3, v{vPV}
v_mul_u32_u24 v{vPV}, 96, v{vPV}
v_and_b32 v{vS1}, 3, v0
v_lshl_add_u32 v{vPV}, v{vS1}, 3, v{vPV}
v_add_u32 v{vPV}, s62, v{vPV}
s_mul_i32 s60, {sI}, {CH}
s_lshl_b32 s62, {sW}, 10
s_lshl_b32 s63, {sJ}, 9
s_add_u32 s62, s62, s63
s_add_u32 s62, s62, s60
s_cmp_lt_u32 {sJ}, 2
s_cselect_b32 s62, s62, {OOB}
v_lshl_add_u32 v{vS1}, v{vT2}, 4, s62
s_lshr_b32 s62, {sW}, 1
s_lshl_b32 s62, s62, 8
s_and_b32 s63, {sW}, 1
s_lshl_b32 s63, s63, 2
s_add_u32 s62, s62, s63
s_add_u32 s62, s62, s60
s_add_u32 s62, s62, 4096
s_cmp_eq_u32 {sJ}, 4
s_cselect_b32 s62, s62, {OOB}
v_lshl_add_u32 v{vS2}, v{vT2}, 3, s62
v_mov_b32 v{vT2}, {OOB}
v_cndmask_b32 v{vS1}, v{vT2}, v{vS1}, vcc
v_cndmask_b32 v{vS2}, v{vT2}, v{vS2}, vcc
s_mul_i32 s62, {sW}, 1216
s_add_u32 s62, s62, s60
s_add_u32 s62, s62, {4608 - 128}
s_cmp_eq_u32 {sJ}, 3
s_cselect_b32 s63, 128, 0
s_cmp_eq_u32 {sJ}, 5
s_cselect_b32 s63, 160, s63
s_cselect_b32 s61, 13, 8
s_cselect_b32 s69, 13, 99
s_add_u32 s62, s62, s63
s_lshr_b32 s63, 0x2c, {sJ}
s_bitcmp1_b32 s63, 0
s_cselect_b32 s61, s61, 99
v_mul_u32_u24 v{vS3}, 304, v{vT1}
v_lshl_add_u32 v{vS3}, v{vT0}, 4, v{vS3}
v_add_u32 v{vS3}, s62, v{vS3}
v_cmp_eq_u32 s[82:83], s69, v{vT0}
v_add_u32 v{vT1}, 48, v{vS3}
v_cmp_le_u32 vcc, s61, v{vT0}
v_cndmask_b32 v{vS3}, v{vS3}, v{vT1}, s[82:83]
v_mov_b32 v{vT0}, 0x3f803f80
v_cndmask_b32 v{vS3}, v{vT2}, v{vS3}, vcc
"""
fill_at = f"""
v_lshlrev_b32 v{vKVD}, 4, v{vTID}
s_lshl_b32 {sWKV}, {sW}, 10
s_mul_i32 {sWWO}, {sW}, {WOR}
s_add_u32 {sWWO}, {sWWO}, {WOB}
s_lshl_b32 s62, {sI}, 4
s_cmp_lt_u32 {sJ}, 6
s_cselect_b32 s62, s62, 0x1000
s_cmp_eq_u32 {sW}, 0
s_cselect_b32 s62, s62, 0x1000
v_writelane_b32 v{vSIG}, s62, 0
v_and_b32 v{vG1}, 15, v0
v_lshlrev_b32 v{vG1}, 4, v{vG1}
s_lshr_b32 {sTH}, {sJ}, 3
s_and_b32 {sCG}, {sJ}, 7
s_lshr_b32 s62, {sW}, 1
s_lshl_b32 s63, {sI}, 1
s_add_u32 s62, s62, s63
s_lshl_b32 s62, s62, 4
s_add_u32 s62, s62, {sJ}
s_mul_i32 s62, s62, {R}
s_and_b32 s63, {sW}, 1
s_mul_i32 s63, s63, {36864 + 512}
s_add_u32 s62, s62, s63
s_add_u32 s62, s62, {WS_P}
v_lshrrev_b32 v{vPS0}, 5, v0
v_lshlrev_b32 v{vPS0}, 10, v{vPS0}
v_and_b32 v{vPS1}, 31, v0
v_lshl_add_u32 v{vPS0}, v{vPS1}, 4, v{vPS0}
v_add_u32 v{vPS0}, s62, v{vPS0}
v_xor_b32 v{vPS1}, 512, v{vPS0}
"""

def place(slots, pairs, s0, s1):
    n = len(pairs)
    for k, (pre, op) in enumerate(pairs):
        sidx = s0 + (k * (s1 - s0)) // n
        while len(slots[sidx]) > 1 and slots[sidx][1].kind == "salu" and sidx + 1 < len(slots): sidx += 1
        pre = list(flat([pre]))
        for y in reversed(pre): slots[sidx].insert(1, y)
        if pre and slots[sidx][-1] is pre[-1] and getattr(op, "dma", False) and sidx + 1 < len(slots):
            slots[sidx + 1].append(op)
        else:
            slots[sidx].append(op)

em(XRD[0], RD[0, 0], RD[0, 1], W(lgkm=XRD[0]), RD[0, 2], W(lgkm=RD[0, 0]))
def put(slots, k, pre, op):
    pre = list(flat([pre])); j = k - 1; rest = []
    for y in reversed(pre):
        while j >= 0 and not any(z.kind == "vmem" for z in slots[j]) and len(slots[j]) > 1 and slots[j][1].kind == "salu": j -= 1
        if j >= max(0, k - 4) and not any(z.kind == "vmem" for z in slots[j]): slots[j].insert(1, y)
        else: rest.insert(0, y)
    slots[k - 1] += rest
    slots[k].append(op)
for c in range(9):
    slots = []
    for t in range(21):
        ring = WRING + 8 * ((21 * c + t) % 4)
        for T in (1, 0):
            for s in range(2):
                d = p1_acc(t, T)
                cc = rg(d, 0, 4)
                if c == 0 and s == 0: cc = rg(p1_acc(t, 0), 0, 4) if t < 18 else "0"
                slots.append([I(f"v_mfma_f32_16x16x32_bf16 {rg(d,0,4)}, {v(ring + 4*s, 4)}, {xreg(c, T, s)}, {cc}")])
    tail = []
    if c < 8: tail = RD[c + 1, 0] + RD[c + 1, 1] + RD[c + 1, 2]
    else: tail = RD2[0, 0] + RD2[0, 1]
    for t in range(21):
        b = 4 * t
        if t < 18:
            slots[b + 3].append(W(lgkm=RD[c, t + 1]))
            slots[b] += RD[c, t + 3][:2]; slots[b + 1] += RD[c, t + 3][2:]
        elif t == 18:
            slots[b].append(W(vm=[last(c + 1)]))
            if c < 8: slots[b] += XRD[c + 1][:2]; slots[b + 1] += XRD[c + 1][2:]
            slots[b + 3] += [W(lgkm=RD[c, 20]), I("s_barrier")] + stamp(2)
        elif t == 19:
            for m in range(4): slots[b + m] += tail[2 * m:2 * m + 2]
        elif t == 20 and c < 8:
            slots[b] += tail[8:10]; slots[b + 1] += tail[10:12]
            slots[b + 3].append(W(lgkm=RD[c + 1, 0]))
    pairs = list(LOADS[c + 2])
    extra = []
    if c == 1: extra = gl + clr
    if c == 5: extra = [gst]
    for k, op in enumerate(extra): put(slots, 4 * k + 3, None, op)
    for k, (pre, op) in enumerate(pairs):
        put(slots, 4 * ((k * 18) // len(pairs) if len(pairs) < 12 else k) + 2, pre, op)
    fl = {0: fill_c0, 2: fill_p2, 3: gate_math, 4: gate_red, 5: fill_at, 6: fill_pe}.get(c)
    if fl: spread(slots, [fl], 2 if c != 5 else 4, 72, 16)
    em(slots)
em(stamp())

def gelu(s):
    o = []; H = HOWN[s % 2]; wr = []
    groups = [(k, T) for k in range(2) for T in range(2)]
    for gi, (k, T) in enumerate(groups):
        src = hp(2 * s + k, T)
        t = [GT + 4 + e for e in range(4)]
        if src[0] == "a":
            u = [GT + e for e in range(4)]
            o += [f"v_accvgpr_read_b32 v{u[e]}, a{src[1]+e}" for e in range(4)]
        else: u = [src[1] + e for e in range(4)]
        o += [f"v_mul_f32 v{t[e]}, v{u[e]}, v{u[e]}" for e in range(4)]
        o += [f"v_fma_f32 v{t[e]}, v{t[e]}, {sGB}, v{vGA}" for e in range(4)]
        o += [f"v_mul_f32 v{t[e]}, v{t[e]}, v{u[e]}" for e in range(4)]
        o += [f"v_exp_f32 v{t[e]}, v{t[e]}" for e in range(4)]
        o += [f"v_add_f32 v{t[e]}, 1.0, v{t[e]}" for e in range(4)]
        o += [f"v_rcp_f32 v{t[e]}, v{t[e]}" for e in range(4)]
        o += [f"v_mul_f32 v{t[e]}, v{t[e]}, v{u[e]}" for e in range(4)]
        o += [f"v_cvt_pk_bf16_f32 v{H + 4*k + 2*T + r}, v{t[2*r]}, v{t[2*r+1]}" for r in range(2)]
        if T == 1:
            w = I(f"ds_write_b128 v{vHW}, {v(H + 4*k, 4)} offset:{8192*(s%2) + 1024*k}")
            sw = [f"v_permlane16_swap_b32 v{H+4*k+r}, v{H+4*k+2+r}" for r in range(2)] + [w]
            wr.append(w)
            o.append(("late", sw))
    res = []; pend = None; cnt = 0
    for x in o:
        if isinstance(x, tuple): pend = x[1]; cnt = 0; continue
        res.append(x)
        if pend:
            cnt += 1
            if cnt == 4: res += pend; pend = None
    if pend: res += ["s_nop 1"] + pend
    return list(flat(res))

g0s = gelu(0)
pe = []
for t in range(3):
    for T in range(2):
        b = PROJ + 8 * t + 4 * T
        pe += [f"v_mul_f32 v{b+e}, {sQS if t < 2 else 'v%d' % vQF}, v{b+e}" for e in range(4)]
        pe += [f"v_cvt_pk_bf16_f32 v{b+r}, v{b+2*r}, v{b+2*r+1}" for r in range(2)]
        pe += [f"ds_write_b64 v{vPW if t < 2 else vPW2}, {v(b, 2)} offset:{1536*T + 32*t}"]
em(g0s[:30], pe)
em(f"v_lshrrev_b32 v{vT1}, 5, v0", f"v_lshl_add_u32 v{vT1}, v{vT1}, 4, v{vPQ}", g0s[30:60], W(lgkm0=True))
D1 = XR; D2 = XR + 4
em(f"""
ds_read_b128 {v(D1,4)}, v{vPQ} offset:80
ds_read_b64_tr_b16 {v(D2,2)}, v{vPV} offset:64
ds_read_b64_tr_b16 {v(D2+2,2)}, v{vPV} offset:{64 + 4*96}
ds_read_b128 {a_(AQ,4)}, v{vT1}
ds_read_b128 {a_(AQ+4,4)}, v{vT1} offset:36
ds_read_b32 a{AQR}, v{vPQ} offset:32
ds_read_b32 a{AQR+1}, v{vPQ} offset:68
""", g0s[60:90], W(lgkm0=True))
em([f"v_cndmask_b32 v{D2+e}, v{D2+e}, v{vT0}, s[82:83]" for e in range(4)])
kvst = [I(f"buffer_store_dwordx4 {v(D1,4)}, v{vS1}, {SWS}, 0 offen sc1"), I(f"buffer_store_dword v{D1+3}, v{vS2}, {SWS}, 0 offen sc1"),
        I(f"buffer_store_dwordx4 {v(D2,4)}, v{vS3}, {SWS}, 0 offen sc1")]
em(kvst, g0s[90:], W(lgkm0=True), "s_barrier")
def h_reads(s):
    o = [I(f"ds_read_b128 {a_(AHP[s%2] + 4*k, 4)}, v{vHR} offset:{8192*(s%2) + 1024*k}") for k in range(2)]
    return o
HR = {s: h_reads(s) for s in range(9)}
em(HR[0], stamp(7))

nspin = [0]
def spin_check(load_text, cmp_text):
    k = nspin[0]; nspin[0] += 1
    OUTL.extend(flat([f"""
L_spin{k}:
s_mov_b32 {sSP}, {OPT['spin']}
L_spin{k}_l:
s_sleep 2
{load_text}
s_sub_u32 {sSP}, {sSP}, 1
s_waitcnt vmcnt(0)
s_cbranch_scc1 L_back{k}
{cmp_text}
s_nop 1
s_cbranch_vccnz L_spin{k}_l
s_branch L_back{k}
"""]))
    return list(flat([cmp_text, "s_nop 0", f"s_cbranch_vccnz L_spin{k}", f"L_back{k}:"]))

def kv_dma(d):
    o = []
    for n in range(5):
        o.append([[I(f"s_mov_b32 {sOM}, {WS_KV + d*DC + 4096*n}"), I(f"s_add_u32 m0, {sWKV}, {KVS[d%3] + 4096*n}")],
                  I(f"buffer_load_dwordx4 v{vKVD}, {SWS}, {sOM} offen sc1 lds")])
    return o
KVD = {d: link(kv_dma(d)) for d in range(8)}
sig1 = I(f"buffer_atomic_add v{vONE}, v{vSIG}, {SDBG}, 0 offen sc1")
poll1_t = f"buffer_load_dword v{vPOLL}, v{vG1}, {SDBG}, 0 offen sc1"
poll1 = I(poll1_t)

def convert(t, o):
    src = acc2(t, o); d = packed(t, o); r = []
    if src[0] == "v":
        return [f"v_cvt_pk_bf16_f32 v{d+e}, v{src[1]+2*e}, v{src[1]+2*e+1}" for e in range(8)]
    for h in range(2):
        r += [f"v_accvgpr_read_b32 v{GT+e}, a{src[1]+8*h+e}" for e in range(8)]
        r += [f"v_cvt_pk_bf16_f32 v{d+4*h+e}, v{GT+2*e}, v{GT+2*e+1}" for e in range(4)]
    return r

slots = []
for s in range(9):
    for t in range(9):
        wf = AW[t % 3]
        for o in range(2):
            for k in range(2):
                d = rg(acc2(t, o), 0, 16)
                b = v(HOWN[s % 2] + 4 * k, 4) if o == 0 else a_(AHP[s % 2] + 4 * k, 4)
                slots.append([I(f"v_mfma_f32_32x32x16_bf16 {d}, {a_(wf + 4*k, 4)}, {b}, {'0' if s == 0 and k == 0 else d}")])
BP = 29
for s in range(9):
    for t in range(9):
        b = 36 * s + 4 * t
        nx = (s, t + 2) if t < 7 else (s + 1, t - 7)
        n1 = (s, t + 1) if t < 8 else (s + 1, 0)
        if n1[0] < 9 and (s, t) != (0, 0) and t != 7: slots[b + 3].append(W(lgkm=RD2[n1]))
        if t == 0: slots[b + 1].append(W(lgkm=HR[s]))
        if nx[0] < 9:
            o = 2 if t == 7 else 0
            slots[b + o] += RD2[nx][:2]; slots[b + o + 1] += RD2[nx][2:]
            if t == 8: slots[b + 2] += HR[s + 1]
    pos = [2, 6, 10, 14, 18, 22, 26, 28, 35]
    if s <= 6:
        for k, (pre, op) in enumerate(LOADS[9 + s + 2]): put(slots, 36 * s + pos[k], pre, op)
    if s >= 7:
        for k, (pre, op) in enumerate(KVD[s - 7]): put(slots, 36 * s + 4 * k + 2, pre, op)
put(slots, 36 * 2 + 3, None, sig1)
put(slots, 36 * 6 + 3, None, poll1)
for s in range(8):
    spread(slots, gelu(s + 1), max(36 * s - (36 - BP - 1), 0), 36 * s + BP - 1, 32)
for s in range(9):
    b = 36 * s + BP
    vm = [last(9 + s + 1)] if s < 8 else [KVD[0][-1][1]]
    if s == 1: vm += kvst + clr + [gst]
    if s == 6: vm += [poll1]
    ex = []
    if s < 8: ex.append(I(f"v_add_u32 v{vR2}, {(SLOT if (s + 1) % 3 else -2 * SLOT) & 0xffffffff}, v{vR2}"))
    if s == 6: ex += spin_check(poll1_t, f"v_cmp_gt_u32 vcc, 6, v{vPOLL}")
    slots[b] = slots[b][:1] + [W(vm=vm, lgkm0=True), I("s_barrier")] + ex + stamp(4) + slots[b][1:]
b8 = 36 * 8
for n, (t, o) in enumerate(ORD[:15]):
    s0 = b8 + 2 * n + 5
    spread(slots, convert(t, o), s0, min(s0 + 2, b8 + 36), 32)
vK, vK2, vV = vR2, vW2, vHW
AK = [32, 36]; AK2 = [40, 42]; AV = [44, 52]; AO = [0, 16]; APL = 64
SB = [192, 208, 224]; CR = [240, 16]; Q2 = 32
def kv_off(kt):
    d, r = divmod(kt, 8)
    return KVS[d % 3] - KVB + (r // 4) * CH, r % 4
def k_read(kt):
    base, r = kv_off(kt); o = [I(f"ds_read_b128 {a_(AK[kt%2], 4)}, v{vK} offset:{base + 1024*r}")]
    if r == 0: o.append(I(f"ds_read_b64 {a_(AK2[(kt//4)%2], 2)}, v{vK2} offset:{base + 4096}"))
    return o
def v_read(kt):
    base, r = kv_off(kt)
    return [I(f"ds_read_b128 {a_(AV[kt%2] + 4*e, 4)}, v{vV} offset:{base + 4608 + 1216*r + 608*e}") for e in range(2)]
KR = {kt: k_read(kt) for kt in range(64)}; VR = {kt: v_read(kt) for kt in range(64)}
at_addr = f"""
v_lshlrev_b32 v{vK2}, 3, v0
v_add_u32 v{vK2}, {KVB}, v{vK2}
v_bfe_u32 v{vHR}, v0, 3, 2
v_and_b32 v{vTMP}, 3, v0
v_lshl_add_u32 v{vHR}, v{vHR}, 2, v{vTMP}
v_bfe_u32 v{vTMP}, v0, 2, 1
v_cmp_eq_u32 vcc, 9, v{vHR}
v_mad_u32_u24 v{vV}, v{vTMP}, 9, v{vHR}
v_lshrrev_b32 v{vTMP}, 5, v0
v_cndmask_b32 v{vV}, v{vV}, 18, vcc
v_cmp_lt_u32 vcc, 9, v{vHR}
v_mad_u32_u24 v{vV}, v{vTMP}, 19, v{vV}
v_lshlrev_b32 v{vV}, 4, v{vV}
v_add_u32 v{vV}, {KVB}, v{vV}
v_mov_b32 v{vTMP}, 0x40000
v_cndmask_b32 v{vV}, v{vV}, v{vTMP}, vcc
"""
spread(slots, [at_addr], b8, b8 + 5, 32)
zero_o = [I(f"ds_read_b128 {a_(4*e, 4)}, v{vTMP}") for e in range(8)]
for e in range(8): slots[b8 + 6 + 2 * e + (e > 0) * 0].append(zero_o[e])
slots[b8 + 32] = slots[b8 + 32][:1] + list(flat([f"v_lshlrev_b32 v{vK}, 4, v0", f"v_add_u32 v{vK}, {KVB}, v{vK}"])) + KR[0] + VR[0] + slots[b8 + 32][1:]
em(slots)
em([convert(t, o) for t, o in ORD[15:18]], stamp(13))

def q2(h, kt): return Q2 + 8 * h + 2 * (kt % 4)
em("v_cmp_gt_u32 vcc, 32, v0")
for h in range(2):
    b = Q2 + 8 * h
    em(f"""
v_accvgpr_read_b32 v{vTMP}, a{AQR+h}
v_mov_b32 v{b+1}, 0
v_mov_b32 v{b+2}, 0
v_mov_b32 v{b+5}, 0
v_mov_b32 v{b+6}, 0
v_cndmask_b32 v{b}, 0, v{vTMP}, vcc
v_cndmask_b32 v{b+3}, 0, v{vTMP}, vcc
v_cndmask_b32 v{b+4}, v{vTMP}, 0, vcc
v_cndmask_b32 v{b+7}, v{vTMP}, 0, vcc
""")
def qk(h, kt, d, c, ka=None, k2=None):
    ka = ka or a_(AK[kt % 2], 4); k2 = k2 or a_(AK2[(kt // 4) % 2], 2)
    return (I(f"v_mfma_f32_32x32x16_bf16 {v(d,16)}, {ka}, {a_(AQ + 4*h, 4)}, {c}"),
            I(f"v_mfma_f32_32x32x8_bf16 {v(d,16)}, {k2}, {v(q2(h, kt), 2)}, {v(d,16)}"))
def maxtree(s, dst, init=None):
    o = [f"v_max3_f32 v{dst}, v{s}, v{s+1}, {('v%d' % init) if init is not None else 'v%d' % (s+1)}"]
    o += [f"v_max3_f32 v{dst}, v{s+2*e}, v{s+2*e+1}, v{dst}" for e in range(1, 8)]
    return o
def set_c(h, m, tmp):
    return [f"v_mov_b32 v{tmp}, v{m}", "s_nop 1", f"v_permlane32_swap_b32 v{m}, v{tmp}", f"v_max_f32 v{m}, v{m}, v{tmp}"] + \
           [f"v_sub_f32 v{CR[h]+e}, 0, v{m}" for e in range(16)]
vPLM, vPLH, vWOa, vWOb, vPP = vHR, vGA, vSIG, vPOLL, vTMP
bg_addr = f"""
s_lshl_b32 s62, {sI}, 1
s_add_u32 s62, s62, {sTH}
s_mul_i32 s62, s62, {16*R}
s_mul_i32 s63, {sCG}, 9216
s_add_u32 s62, s62, s63
s_lshl_b32 s63, {sW}, 8
s_add_u32 s62, s62, s63
s_add_u32 s62, s62, {WS_P}
s_and_b32 s63, {sCG}, 1
s_lshl_b32 s60, s63, 4
s_xor_b32 s61, s63, 1
s_lshl_b32 s61, s61, 7
v_lshrrev_b32 v{vPLM}, 4, v0
v_mul_u32_u24 v{vPLM}, {R}, v{vPLM}
v_and_b32 v{vPLH}, 15, v0
v_lshl_add_u32 v{vPLM}, v{vPLH}, 4, v{vPLM}
v_add_u32 v{vPLM}, s62, v{vPLM}
s_lshl_b32 s63, s61, 6
v_add_u32 v{vPLH}, s63, v{vPLM}
s_lshl_b32 s63, s60, 6
v_add_u32 v{vPLM}, s63, v{vPLM}
s_mul_i32 s62, {sCG}, 144
s_add_u32 s60, s60, s62
s_add_u32 s61, s61, s62
s_mul_i32 s62, {sW}, {9*1152}
v_lshrrev_b32 v{vWOa}, 5, v0
v_bfe_u32 v{vWOb}, v0, 2, 3
v_mad_u32_u24 v{vWOa}, v{vWOa}, 36, v{vWOb}
v_mul_u32_u24 v{vWOa}, 1152, v{vWOa}
v_add_u32 v{vWOa}, s62, v{vWOa}
v_and_b32 v{vG1}, 3, v0
v_lshl_add_u32 v{vWOb}, v{vG1}, 2, v{vWOa}
v_lshl_add_u32 v{vWOa}, v{vG1}, 4, v{vWOa}
v_add_u32 v{vWOa}, s60, v{vWOa}
v_add_u32 v{vWOb}, s61, v{vWOb}
"""
bga = list(flat([bg_addr]))
em(W(lgkm0=True), qk(0, 0, SB[1], "0"), qk(1, 0, SB[2], "0"), bga[:14], maxtree(SB[1], SB[0]), maxtree(SB[2], SB[0] + 1),
   set_c(0, SB[0], SB[0] + 2), set_c(1, SB[0] + 1, SB[0] + 2), qk(0, 0, SB[0], v(CR[0], 16)), bga[14:])

slots = []
for n in range(128):
    kt, h = divmod(n, 2); s0 = SB[n % 3]
    ex = [I(f"v_exp_f32 v{s0+e}, v{s0+e}") for e in range(16)]
    if n < 127:
        m1, m2 = qk((n + 1) % 2, (n + 1) // 2, SB[(n + 1) % 3], v(CR[(n + 1) % 2], 16))
    else: m1 = m2 = None
    p2 = None
    if n > 0:
        km, hm = divmod(n - 1, 2)
        p2 = I(f"v_smfmac_f32_32x32x32_bf16 {a_(AO[hm],16)}, {a_(AV[km%2] + 4, 4)}, {v(SB[(n-1)%3] + 8, 8)}, v{vIDX}")
    p1 = I(f"v_smfmac_f32_32x32x32_bf16 {a_(AO[h],16)}, {a_(AV[kt%2], 4)}, {v(s0, 8)}, v{vIDX}")
    u = [[m1], [m2], [p2], [p1]]
    if h == 0 and kt < 63:
        u[0] += KR[kt + 1]; u[2] += VR[kt + 1]; u[3].append(W(lgkm=KR[kt + 1]))
    if h == 1 and kt < 63:
        if n % 16 == 13 and n // 16 < 7: u[3] += [W(vm=[KVD[n // 16 + 1][-1][1]], lgkm0=True), I("s_barrier")]
        else: u[3].append(W(lgkm0=True))
    slots.append((u, ex))
def bg(n, pos, pre, op):
    u = slots[n][0]
    pre = list(flat([pre]))
    if pos == 2: u[2] += pre + ([I("s_nop 0")] if getattr(op, "dma", False) and len(pre) else []) + [op]
    else:
        u[2] += pre; u[3].append(op)
events = {}
def sched(pairs, n0, n1):
    for k, pr in enumerate(pairs):
        n = n0 + (k * (n1 - n0)) // len(pairs)
        events.setdefault(n, []).append(pr)
for d in range(2, 8): sched(KVD[d], 16 * (d - 2) + 0, 16 * (d - 2) + 12)
PST = []
for t in range(9):
    for o in range(2):
        for pi in range(2):
            PST.append([I(f"s_mov_b32 {sOS}, {4096*t}") if o == 0 and pi == 0 else None,
                        I(f"buffer_store_dwordx4 {v(packed(t,o) + 4*pi, 4)}, v{vPS0 + o}, {SWS}, {sOS} offen offset:{2048*pi} sc1")])
PST = link(PST); sched(PST, 0, 48)
pflag = I(f"buffer_store_dword v{vONE}, v{vFLG}, {SWS}, 0 offen sc1")
sched([[W(vm=[PST[-1][1]]), pflag]], 54, 55)
WOD = []
for c in range(9):
    if c == 8:
        WOD.append([f"""
s_mul_i32 s62, {sW}, {144*1152}
v_lshrrev_b32 v{vWOa}, 4, v0
v_bfe_u32 v{vWOb}, v0, 2, 1
v_lshl_add_u32 v{vWOa}, v{vWOa}, 1, v{vWOb}
v_bfe_u32 v{vWOb}, v0, 3, 1
v_lshl_add_u32 v{vWOa}, v{vWOa}, 1, v{vWOb}
v_mad_u32_u24 v{vWOa}, v{vWOa}, 9, 8
v_mul_u32_u24 v{vWOa}, 1152, v{vWOa}
v_add_u32 v{vWOa}, s62, v{vWOa}
v_lshl_add_u32 v{vWOb}, v{vG1}, 2, v{vWOa}
v_lshl_add_u32 v{vWOa}, v{vG1}, 4, v{vWOa}
v_add_u32 v{vWOa}, s60, v{vWOa}
""", I(f"v_add_u32 v{vWOb}, s61, v{vWOb}")])
    so = (72 * 1152 * c) if c < 8 else 0
    WOD.append([[I(f"s_mov_b32 {sOQ}, {so}"), I(f"s_add_u32 m0, {sWWO}, {2304*c}")], I(f"buffer_load_dwordx4 v{vWOa}, {SWO}, {sOQ} offen lds")])
    WOD.append([I(f"s_add_u32 m0, {sWWO}, {2304*c + 1024 - 64}"), I(f"buffer_load_dwordx4 v{vWOa}, {SWO}, {sOQ} offen offset:64 lds")])
    WOD.append([I(f"s_add_u32 m0, {sWWO}, {2304*c + 2048}"), I(f"buffer_load_dword v{vWOb}, {SWO}, {sOQ} offen lds")])
WOD = link(WOD); sched(WOD, 40, 68)
TACC = 48; TSEL = 68; TB2 = 76; vG2 = 86; vOP, vOS, vOL, vOLR, vOUT, vOUTH, vWR, vWRH, vTA, vTB = range(87, 97); OF = 100; TW = 172
poll2_t = f"buffer_load_dword v{vTB}, v{vPP}, {SWS}, 0 offen sc1"
poll2 = I(poll2_t)
sched([[f"""
s_lshl_b32 s62, {sI}, 6
s_lshl_b32 s63, {sTH}, 1
s_add_u32 s62, s62, s63
s_lshr_b32 s63, {sCG}, 2
s_add_u32 s63, s63, s62
s_lshl_b32 s63, s63, 7
s_add_u32 s63, s63, {WS_PF}
v_and_b32 v{vTA}, 15, v0
v_lshl_add_u32 v{vPP}, v{vTA}, 9, s63
s_lshr_b32 s63, {sW}, 1
s_add_u32 s63, s63, s62
s_lshl_b32 s63, s63, 7
s_add_u32 s63, s63, {WS_OF}
""", I(f"v_lshl_add_u32 v{vOP}, v{vTA}, 9, s63")]], 57, 58)
sched([[None, poll2]], 66, 67)
sched([[[W(vm=[poll2])], spin_check(poll2_t, f"v_cmp_ne_u32 vcc, 1, v{vTB}")]], 70, 71)
PLD = []
for m in range(4):
    for c in range(9):
        pre = I(f"s_mov_b32 {sOL}, {m*4*R + (4096 if 4 <= c < 8 else 0)}") if c % 4 == 0 else None
        PLD.append([pre, I(f"buffer_load_dwordx4 {a_(APL + 4*(9*m + c), 4)}, v{vPLM if c < 8 else vPLH}, {SWS}, {sOL} offen offset:{1024*(c%4)} sc1")])
PLD = link(PLD); sched(PLD, 71, 124)
gld1 = I(f"buffer_load_dword v{vG1}, v{vTB}, {SWS}, 0 offen sc1"); gld2 = I(f"buffer_load_dword v{vG2}, v{vTB}, {SWS}, 0 offen sc1")
b2l = [I(f"buffer_load_dwordx2 {v(TB2 + 2*t, 2)}, v{vTB}, {SB2}, {'s60' if t < 4 else 's61'} offen offset:{32*(t%4)}") for t in range(5)]
misc = [[f"""
s_lshl_b32 s62, {sI}, 9
s_lshl_b32 s63, {sW}, 7
s_add_u32 s63, s63, s62
s_add_u32 s63, s63, {WS_G}
v_and_b32 v{vTB}, 31, v0
v_lshl_add_u32 v{vTB}, v{vTB}, 2, s63
""", gld1], [f"""
s_lshl_b32 s63, {sTH}, 8
s_add_u32 s62, s62, s63
s_lshl_b32 s63, {sW}, 6
s_add_u32 s62, s62, s63
s_add_u32 s63, s62, {WS_G}
v_lshl_add_u32 v{vTB}, v{vTA}, 2, s63
""", gld2], [f"""
v_lshrrev_b32 v{vTB}, 4, v0
v_lshlrev_b32 v{vTB}, 3, v{vTB}
""", b2l[0]]] + [[None, x] for x in b2l[1:]]
sched(misc, 98, 112)
for n in range(128):
    u, ex = slots[n]
    ev = events.get(n, [])
    for k, (pre, op) in enumerate(ev):
        pre = list(flat([pre])); ops = list(flat([op]))
        dma = getattr(ops[0], "dma", False)
        pos = [3, 2, 0][len(ev) - 1 - k] if len(ev) <= 3 else 3
        tgt = u[pos]
        prev = {3: u[2], 2: u[0], 0: None}[pos]
        simple = all(y.kind == "salu" and not isinstance(y, W) for y in pre)
        if prev is not None and simple and k == 0 and pre and prev[0] is not None:
            for y in reversed(pre): prev.insert(1, y)
            tgt += ops
        else:
            tgt += pre + ops
    if n in (1, 13, 29, 45, 53, 55, 61, 69, 71, 77, 93, 109): u[0] += stamp(8)
    em(u[0], ex[0:4], u[1], ex[4:8], u[2], ex[8:12], u[3], ex[12:16])
em("s_nop 0", f"v_smfmac_f32_32x32x32_bf16 {a_(AO[1],16)}, {a_(AV[1] + 4, 4)}, {v(SB[127%3] + 8, 8)}, v{vIDX}")
em(stamp(9))

em(f"""
s_lshl_b32 s63, {sI}, 2
s_add_u32 s69, s63, {sW}
s_mul_i32 s69, s69, 36864
s_add_u32 s69, s69, {WS_O}
s_lshl_b32 {sOS}, {sJ}, 11
s_add_u32 {sOS}, {sOS}, s69
s_lshl_b32 {sOL}, {sJ}, 8
s_add_u32 {sOL}, {sOL}, s69
s_add_u32 {sOL}, {sOL}, 32768
v_lshlrev_b32 v{vOS}, 4, v0
v_and_b32 v{vOL}, 31, v0
v_lshrrev_b32 v{vOLR}, 5, v0
v_lshlrev_b32 v{vOLR}, 2, v{vOLR}
v_lshl_add_u32 v{vOL}, v{vOL}, 3, v{vOLR}
""")
OV = [SB[0], SB[1]]
em("L_epi:", "s_nop 3")
for h in range(2): em([f"v_accvgpr_read_b32 v{OV[h]+e}, a{AO[h]+e}" for e in range(10)])
lim = f2u(2.0 ** 60) if not OPT["force_fb"] else f2u(0.5)
em(f"""
v_max3_f32 v{SB[2]}, |v{OV[0]}|, |v{OV[0]+1}|, |v{OV[0]+2}|
v_max3_f32 v{SB[2]+1}, |v{OV[1]}|, |v{OV[1]+1}|, |v{OV[1]+2}|
""")
for e in (3, 5, 7):
    for h in range(2): em(f"v_max3_f32 v{SB[2]+h}, |v{OV[h]+e}|, |v{OV[h]+e+1}|, v{SB[2]+h}")
em(f"""
v_max_f32 v{SB[2]}, v{SB[2]}, v{SB[2]+1}
v_mul_f32 v{SB[2]}, {hex(f2u(2.0**-60))}, v{SB[2]}
v_rcp_f32 v{SB[2]+2}, v{OV[0]+9}
v_add_f32 v{SB[2]}, v{SB[2]}, v{OV[0]+9}
v_rcp_f32 v{SB[2]+3}, v{OV[1]+9}
v_add_f32 v{SB[2]}, v{SB[2]}, v{OV[1]+9}
v_cmp_ngt_f32 vcc, {hex(lim)}, v{SB[2]}
""", W(vm=[gld1]), f"""
s_cbranch_vccnz L_fb
L_fbdone:
v_mul_f32 v{SB[2]+2}, v{SB[2]+2}, v{vG1}
v_mul_f32 v{SB[2]+3}, v{SB[2]+3}, v{vG1}
""")
ost = []
for h in range(2):
    em([f"v_mul_f32 v{OV[h]+e}, v{OV[h]+e}, v{SB[2]+2+h}" for e in range(9)])
    em([f"v_cvt_pk_bf16_f32 v{OV[h]+12+e}, v{OV[h]+2*e}, v{OV[h]+2*e+1}" for e in range(4)])
    ost.append(I(f"buffer_store_dwordx4 {v(OV[h]+12, 4)}, v{vOS}, {SWS}, {sOS} offen offset:{1024*h} sc1")); em(ost[-1])
ost.append(I(f"buffer_store_dword v{SB[2]}, v{vOL}, {SWS}, {sOL} offen sc1"))
em(f"v_cvt_pk_bf16_f32 v{SB[2]}, v{OV[0]+8}, v{OV[1]+8}", ost[-1])
em(f"""
s_mov_b32 {sOM}, {WS_OF - WS_PF}
v_and_b32 v{vWR}, 1, v0
v_lshlrev_b32 v{vWR}, 4, v{vWR}
v_mov_b32 v{vWRH}, 0x3f80
v_lshlrev_b32 v{vWRH}, v{vWR}, v{vWRH}
v_lshrrev_b32 v{vWR}, 1, v{vTA}
""")
for e in range(8):
    em(f"v_cmp_eq_u32 vcc, {e}, v{vWR}")
    t, hh = divmod(e, 2) if e < 8 else (0, 0)
    em(f"v_lshlrev_b32 v{TACC + 4*t + 2*hh}, 16, v{TB2 + e}" if e > 0 else [W(vm=b2l), f"v_lshlrev_b32 v{TACC}, 16, v{TB2}"],
       f"v_and_b32 v{TACC + 4*t + 2*hh + 1}, 0xffff0000, v{TB2 + e}")
    em(f"v_cndmask_b32 v{TSEL + e}, 0, v{vWRH}, vcc")
for e in (8, 9):
    em(f"v_lshlrev_b32 v{TACC + 16 + 2*(e-8)}, 16, v{TB2 + e}", f"v_and_b32 v{TACC + 17 + 2*(e-8)}, 0xffff0000, v{TB2 + e}")
em(W(vm=[PLD[-1][1]]), "s_nop 0")
red = []
for t in range(5):
    for m in range(4):
        for c in ((2 * t, 2 * t + 1) if t < 4 else (8,)):
            red.append([I(f"v_mfma_f32_16x16x32_bf16 {v(TACC + 4*t, 4)}, {v(TSEL + 4*(c%2), 4)}, {a_(APL + 4*(9*m + c), 4)}, {v(TACC + 4*t, 4)}")])
tail_addr = f"""
s_lshl_b32 s62, {sTH}, 1
s_add_u32 s62, s62, s63
s_lshr_b32 s69, {sW}, 1
s_add_u32 s62, s62, s69
s_mul_i32 s62, s62, 36864
s_add_u32 s62, s62, {WS_O}
s_and_b32 s69, {sW}, 1
s_lshl_b32 s69, s69, 4
v_add_u32 v{vOL}, s69, v{vTA}
v_lshrrev_b32 v{vTB}, 4, v0
v_lshlrev_b32 v{vOLR}, 3, v{vOL}
v_lshl_add_u32 v{vOLR}, v{vTB}, 10, v{vOLR}
v_add_u32 v{vOLR}, s62, v{vOLR}
v_lshlrev_b32 v{vOL}, 4, v{vOL}
v_lshl_add_u32 v{vOL}, v{vTB}, 9, v{vOL}
v_add_u32 v{vOL}, s62, v{vOL}
s_lshl_b32 s62, {sI}, 1
s_add_u32 s62, s62, {sTH}
s_lshl_b32 s62, s62, 2
s_add_u32 s62, s62, {sW}
s_mul_i32 s62, s62, {16*1152}
v_mul_u32_u24 v{vOUT}, 1152, v{vTA}
v_lshl_add_u32 v{vOUT}, v{vTB}, 3, v{vOUT}
v_add_u32 v{vOUT}, s62, v{vOUT}
v_cmp_gt_u32 vcc, 32, v0
v_mov_b32 v{vOUTH}, {OOB}
v_mul_u32_u24 v{vWR}, {WOR}, v{vTB}
v_add_u32 v{vWR}, {WOB}, v{vWR}
v_cndmask_b32 v{vOUTH}, v{vOUTH}, v{vOUT}, vcc
v_bfe_u32 v{vTB}, v0, 2, 2
v_lshl_add_u32 v{vWRH}, v{vTB}, 4, v{vWR}
v_lshl_add_u32 v{vWR}, v{vTB}, 6, v{vWR}
v_and_b32 v{vTB}, 3, v0
v_lshl_add_u32 v{vWR}, v{vTB}, 3, v{vWR}
v_and_b32 v{vTB}, 1, v0
v_lshl_add_u32 v{vWRH}, v{vTB}, 3, v{vWRH}
v_sub_f32 v{vG2}, 1.0, v{vG2}
"""
spread(red, [tail_addr], 0, 30, 16)
oflag = I(f"buffer_store_dword v{vONE}, v{vFLG}, {SWS}, {sOM} offen sc1")
em(red, W(vm=ost), oflag)
poll3_t = f"buffer_load_dword v{vTB}, v{vOP}, {SWS}, 0 offen sc1"
def wo_frag(n):
    return a_(4 * n, 4) if n < 64 else v(TW + 4 * ((n - 64) % 20), 4)
def wo_read(n):
    c, r = divmod(n, 10); t, s = divmod(r, 2); o = []
    for rho in range(2):
        d = a_(4 * n + 2 * rho, 2) if n < 64 else v(TW + 4 * ((n - 64) % 20) + 2 * rho, 2)
        if t < 4: o.append(I(f"ds_read_b64_tr_b16 {d}, v{vWR} offset:{2304*c + 1024*(t//2) + 512*s + 256*rho + 32*(t%2)}"))
        else: o.append(I(f"ds_read_b64_tr_b16 {d}, v{vWRH} offset:{2304*c + 2048 + 128*s + 64*rho}"))
    return o
WRD = [wo_read(n) for n in range(90)]
em("s_nop 7", [f"v_mul_f32 v{TACC+e}, v{TACC+e}, v{vG2}" for e in range(20)])
for n in range(84):
    em(WRD[n])
    if n % 6 == 5: em(W(lgkm=WRD[n - 3]))
poll3 = I(poll3_t)
em(stamp(), poll3, W(vm=[poll3], lgkm0=True), spin_check(poll3_t, f"v_cmp_ne_u32 vcc, 1, v{vTB}"), stamp())
OLD = []
for ks in range(16):
    pre = I(f"s_mov_b32 {sOL}, {4096*(ks//2)}") if ks % 2 == 0 else None
    OLD.append(I(f"buffer_load_dwordx4 {v(OF + 4*ks, 4)}, v{vOL}, {SWS}, {sOL} offen offset:{2048*(ks%2)} sc1")); em(pre, OLD[-1])
em(f"s_mov_b32 {sOL}, 32768")
for e in range(4):
    OLD.append(I(f"buffer_load_dwordx2 {v(OF + 64 + 2*e, 2)}, v{vOLR}, {SWS}, {sOL} offen offset:{256*e} sc1")); em(OLD[-1])
for c in range(9):
    em(W(vm=[OLD[2 * c + 1] if c < 8 else OLD[-1]], lgkm0=(c == 8)))
    for r in range(10):
        t, s = divmod(r, 2); n = 10 * c + r
        em(f"v_mfma_f32_16x16x32_bf16 {v(TACC + 4*t, 4)}, {wo_frag(n)}, {v(OF + 8*c + 4*s, 4)}, {v(TACC + 4*t, 4)}")
        if 64 <= n < 70: em(WRD[n + 20])
for t in range(5):
    em([f"v_cvt_pk_bf16_f32 v{TACC + 4*t + r}, v{TACC + 4*t + 2*r}, v{TACC + 4*t + 2*r + 1}" for r in range(2)])
    em(f"buffer_store_dwordx2 {v(TACC + 4*t, 2)}, v{vOUT if t < 4 else vOUTH}, {SOUT}, {'s60' if t < 4 else 's61'} offen offset:{32*(t%4)}" + ["", " sc1", " nt", " sc0 sc1"][OPT.get("outsc", 0)])
if OPT["stamps"]:
    em("s_waitcnt vmcnt(0)", stamp(15), f"v_mov_b32 v1, 0")
    for k in range(nst[0]): em(f"v_writelane_b32 v1, s{84+k}, {k}")
    em(f"""
s_lshl_b32 s62, s2, 2
s_add_u32 s62, s62, {sW}
s_lshl_b32 s62, s62, 6
s_add_u32 s62, s62, {WS_ST}
v_cmp_gt_u32 vcc, 16, v0
v_lshlrev_b32 v2, 2, v0
v_mov_b32 v3, {OOB}
v_cndmask_b32 v2, v3, v2, vcc
buffer_store_dword v1, v2, {SWS}, s62 offen
""")
    if OPT.get("dbgout"):
        em(f"""
v_subrev_u32 v1, s84, v1
v_add_u32 v2, -1, v0
v_mul_u32_u24 v3, 0x5556, v2
v_lshrrev_b32 v3, 16, v3
v_add_u32 v2, v0, v3
v_lshlrev_b32 v2, 2, v2
v_cmp_eq_u32 vcc, 0, v0
v_mov_b32 v3, 0x1000
s_lshl_b32 s62, s2, 2
s_add_u32 s62, s62, {sW}
s_cmp_eq_u32 s62, {OPT['dbgout']}
s_cselect_b32 s62, 0, 0x1000
v_cndmask_b32 v2, v2, v3, vcc
v_cmp_lt_u32 vcc, 12, v0
s_nop 1
v_cndmask_b32 v2, v2, v3, vcc
buffer_store_dword v1, v2, {SDBG}, s62 offen
""")
if "delay" in OPT:
    em(f"""
s_add_u32 s62, s{84 + OPT['delay']}, 7000
s_mov_b32 {sSP}, 100000
L_dly:
s_memrealtime s[80:81]
s_sub_u32 {sSP}, {sSP}, 1
s_cbranch_scc1 L_end
s_waitcnt lgkmcnt(0)
s_sub_u32 s63, s80, s62
s_cmp_lt_i32 s63, 0
s_cbranch_scc1 L_dly
""")
em("L_end:", "s_endpgm")

FK, FK2, FV, FM = 100, 116, 120, 152
fb = [f"""
L_fb:
v_subrev_u32 v{vK}, {KVB}, v{vK}
v_subrev_u32 v{vK2}, {KVB}, v{vK2}
v_cmp_gt_u32 vcc, 0x40000, v{vV}
v_subrev_u32 v{vV}, {KVB}, v{vV}
v_mov_b32 v{FM}, {OOB}
v_cndmask_b32 v{vV}, v{FM}, v{vV}, vcc
v_mov_b32 v{FM}, 0xff7fffff
v_mov_b32 v{FM+1}, 0xff7fffff
s_mov_b32 s62, {WS_KV}
L_fb1:
s_add_u32 s69, s62, 4096
"""]
fbk = [f"buffer_load_dwordx4 {v(FK + 4*r, 4)}, v{vK}, {SWS}, s62 offen offset:{1024*r} sc1" for r in range(4)] + [f"buffer_load_dwordx2 {v(FK2, 2)}, v{vK2}, {SWS}, s69 offen sc1"]
fb += fbk + ["s_waitcnt vmcnt(0)"]
for r in range(4):
    fb += [qk(0, r, SB[0], "0", v(FK + 4 * r, 4), v(FK2, 2)), qk(1, r, SB[1], "0", v(FK + 4 * r, 4), v(FK2, 2)), "s_nop 15",
           maxtree(SB[0], FM, FM), maxtree(SB[1], FM + 1, FM + 1)]
fb += [f"""
s_add_u32 s62, s62, {CH}
s_cmp_lt_u32 s62, {WS_KV + 16*CH}
s_cbranch_scc1 L_fb1
""", set_c(0, FM, FM + 2), set_c(1, FM + 1, FM + 2), [f"v_accvgpr_write_b32 a{e}, 0" for e in range(32)], f"""
s_mov_b32 s62, {WS_KV}
L_fb2:
s_add_u32 s69, s62, 4096
"""] + fbk + [f"s_add_u32 s69, s62, 4608"]
for r in range(4):
    if r == 2: fb += [f"s_add_u32 s69, s69, 2432"]
    fb += [f"buffer_load_dwordx4 {v(FV + 8*r + 4*e, 4)}, v{vV}, {SWS}, s69 offen offset:{1216*(r%2) + 608*e} sc1" for e in range(2)]
fb += ["s_waitcnt vmcnt(0)"]
for r in range(4):
    fb += [qk(0, r, SB[0], v(CR[0], 16), v(FK + 4 * r, 4), v(FK2, 2)), qk(1, r, SB[1], v(CR[1], 16), v(FK + 4 * r, 4), v(FK2, 2)), "s_nop 15"]
    for h in range(2):
        fb += [[f"v_exp_f32 v{SB[h]+e}, v{SB[h]+e}" for e in range(16)], "s_nop 1"]
        fb += [f"v_smfmac_f32_32x32x32_bf16 {a_(AO[h],16)}, {v(FV + 8*r + 4*e, 4)}, {v(SB[h] + 8*e, 8)}, v{vIDX}" for e in range(2)]
fb += [f"""
s_add_u32 s62, s62, {CH}
s_cmp_lt_u32 s62, {WS_KV + 16*CH}
s_cbranch_scc1 L_fb2
s_nop 15
"""]
for h in range(2): fb += [[f"v_accvgpr_read_b32 v{OV[h]+e}, a{AO[h]+e}" for e in range(10)]]
fb += [f"v_rcp_f32 v{SB[2]+2}, v{OV[0]+9}", f"v_rcp_f32 v{SB[2]+3}, v{OV[1]+9}", "s_nop 1", "s_branch L_fbdone"]
OUTL.extend(flat(fb))

resolve_waits(P)
P2 = check(P)
if OPT.get("x_nodma"): P2 = [x for x in P2 if not (getattr(x, "dma", False) and SW2 in x.text)]
if OPT.get("x_nodma1"): P2 = [x for x in P2 if not (getattr(x, "dma", False) and (SW1 in x.text or SX in x.text or SWQ in x.text or SEX in x.text))]
if OPT.get("x_nogelu"): P2 = [x for x in P2 if not (x.kind in ("valu", "trans") and x.wr and x.wr[0][0] == "v" and 32 <= x.wr[0][1] < 40 and "cndmask" not in x.mn and "mov" not in x.mn)]
if OPT.get("x_nobar"): P2 = [x for x in P2 if x.mn != "s_barrier"]
if OPT.get("x_notr"): P2 = [x for x in P2 if x.mn != "ds_read_b64_tr_b16"]
O2 = check(OUTL)
hdr = open(os.path.join(os.path.dirname(os.path.abspath(__file__)), "..", "cdna_kernels", NAME + ".s.ref")).read().split("; Override launch")[0]
src = hdr + f"""; Generated by gen/gen.py (hand-written generator).
; @launch grid=(256,1,1) block=(256,1,1) lds={LDS_BYTES}
.amdgcn_target "amdgcn-amd-amdhsa--gfx950"
.text
.globl {NAME}_kernel
.p2align 8
.type {NAME}_kernel,@function
{NAME}_kernel:
""" + render(P2) + render(O2) + f"""L_codeend:
    s_endpgm
.section .rodata,"a"
.p2align 6
.amdhsa_kernel {NAME}_kernel
  .amdhsa_next_free_vgpr 512
  .amdhsa_next_free_sgpr 102
  .amdhsa_accum_offset 256
  .amdhsa_group_segment_fixed_size 0
  .amdhsa_kernarg_size 112
  .amdhsa_user_sgpr_count 2
  .amdhsa_user_sgpr_kernarg_segment_ptr 1
  .amdhsa_system_sgpr_workgroup_id_x 1
.end_amdhsa_kernel
"""
open(sys.argv[1], "w").write(src)
print("instrs:", len(P2), len(O2))
```

```python
import re

TRANS = ("v_exp_f32", "v_rcp_f32", "v_log_f32", "v_rsq_f32", "v_sqrt_f32")

def regs_of(tok):
    tok = tok.strip()
    neg = tok.lstrip("-")
    m = re.match(r"^abs\((.*)\)$", neg)
    if m: neg = m.group(1)
    neg = neg.strip("|")
    m = re.match(r"^([vas])\[(\d+):(\d+)\]$", neg)
    if m: return [(m.group(1), i) for i in range(int(m.group(2)), int(m.group(3)) + 1)]
    m = re.match(r"^([vas])(\d+)$", neg)
    if m: return [(m.group(1), int(m.group(2)))]
    if neg == "vcc": return [("s", "vcc")]
    if neg == "m0": return [("s", "m0")]
    if neg == "exec": return [("s", "exec")]
    return []

class I:
    def __init__(self, text, opt=False, note=None):
        self.text = text.strip()
        self.opt = opt
        self.note = note
        self.parse()
    def parse(self):
        t = self.text.split(";")[0].strip()
        self.label = t.endswith(":")
        p = t.split(None, 1)
        self.mn = p[0] if p else ""
        rest = p[1] if len(p) > 1 else ""
        ops = [o.strip() for o in rest.split(",")] if rest else []
        mods = ""
        if ops:
            l = ops[-1].split()
            ops[-1] = l[0]; mods = " ".join(l[1:])
        self.ops = ops; self.mods = mods
        mn = self.mn
        R = lambda k: regs_of(ops[k]) if k < len(ops) else []
        allr = lambda a: [r for k in range(a, len(ops)) for r in R(k)]
        self.rd = []; self.wr = []; self.kind = "other"; self.cnt = None
        self.srcc = []
        if mn.startswith("v_mfma"):
            self.kind = "mfma"; self.wr = R(0); self.rd = allr(1); self.srcc = R(3); self.ab = R(1) + R(2)
            self.passes = 8 if "32x32" in mn else 4
        elif mn.startswith("v_smfmac"):
            self.kind = "mfma"; self.wr = R(0); self.rd = allr(0); self.srcc = R(0); self.ab = R(1) + R(2) + R(3)
            self.passes = 8 if "32x32" in mn else 4
        elif mn.startswith("v_"):
            self.kind = "trans" if mn.replace("_e32", "").replace("_e64", "") in TRANS else "valu"
            self.wr = R(0); self.rd = allr(1)
            if "swap" in mn: self.wr = R(0) + R(1); self.rd = R(0) + R(1)
            if mn.startswith(("v_fmac", "v_writelane", "v_dot2c")) or "dpp" in mn or "row_" in mods: self.rd = self.rd + R(0)
            if mn.startswith(("v_add_co", "v_addc_co")): self.wr = R(0) + R(1); self.rd = allr(2)
        elif mn.startswith("ds_read"):
            self.kind = "ds"; self.wr = R(0); self.rd = R(1); self.cnt = "lgkm"
        elif mn.startswith("ds_"):
            self.kind = "ds"; self.rd = allr(0); self.cnt = "lgkm"
        elif mn.startswith(("buffer_load", "global_load")):
            self.kind = "vmem"; self.cnt = "vm"
            if " lds" in " " + mods: self.rd = allr(0) + [("s", "m0")]; self.dma = True
            else:
                self.wr = R(0); self.rd = allr(1)
                if "d16" in mn: self.rd += R(0)
        elif mn.startswith(("buffer_store", "buffer_atomic", "global_store")):
            self.kind = "vmem"; self.cnt = "vm"; self.rd = allr(0); self.store = R(0)
            if "atomic" in mn and "sc0" in mods: self.wr = R(0)
        elif mn.startswith(("s_load", "s_memtime", "s_memrealtime")):
            self.kind = "smem"; self.cnt = "smem"; self.wr = R(0); self.rd = allr(1)
        elif mn.startswith("s_"):
            self.kind = "salu"
            if mn.startswith(("s_cmp", "s_cbranch", "s_branch", "s_nop", "s_barrier", "s_waitcnt", "s_sleep", "s_endpgm", "s_setprio", "s_bitcmp")):
                self.rd = allr(0)
            else:
                self.wr = R(0); self.rd = allr(1)
    def cost(self):
        if self.kind == "mfma":
            if "smfmac" in self.mn: return 12
            if "32x32x8" in self.mn: return 4
            return 8
        if self.kind == "trans": return 8
        if self.kind == "vmem": return 24 if "store_dwordx4" in self.mn else 8
        if self.mn == "ds_write_b128": return 24
        if self.mn == "ds_write_b64": return 12
        if "swap" in self.mn: return 8
        if self.label or not self.mn or self.mn[0] in ".;": return 0
        return 4

class W(I):
    def __init__(self, vm=(), lgkm=(), vm0=False, lgkm0=False):
        self.vm = [x for x in vm if x is not None]; self.lg = [x for x in lgkm if x is not None]
        self.vm0 = vm0; self.lgkm0 = lgkm0
        super().__init__("s_waitcnt ?")

def flat(x):
    for e in x:
        if e is None: continue
        if isinstance(e, (list, tuple)): yield from flat(e)
        elif isinstance(e, str):
            for l in e.split("\n"):
                if l.strip(): yield I(l)
        else: yield e

def resolve_waits(prog):
    pos = {id(x): n for n, x in enumerate(prog)}
    for n, x in enumerate(prog):
        if not isinstance(x, W): continue
        parts = []
        for cnt, ops, zero, name, mx in (("vm", x.vm, x.vm0, "vmcnt", 63), ("lgkm", x.lg, x.lgkm0, "lgkmcnt", 15)):
            if zero: parts.append(f"{name}(0)"); continue
            if not ops: continue
            for o in ops:
                assert id(o) in pos, f"wait target not in program: {o.text}"
                assert pos[id(o)] < n, f"wait target after wait: {o.text}"
            last = max(pos[id(o)] for o in ops)
            N = sum(1 for y in prog[last + 1:n] if y.cnt == cnt and not y.opt)
            if cnt == "lgkm":
                sm = False
                for y in prog[max(0, last - 200):n]:
                    if y.cnt == "smem": sm = True
                    if y.mn == "s_waitcnt" and "lgkmcnt(0)" in y.text: sm = False
                assert not sm, "smem mixed in counted lgkm wait"
            parts.append(f"{name}({min(N, mx)})")
        assert parts
        x.text = "s_waitcnt " + " ".join(parts); x.parse()

def check(prog, fix=True, verbose=True):
    out = []; nfix = 0; errs = []
    pend = {"vm": [], "lgkm": [], "smem": []}
    hist = []
    lastw = {}; scc = None; m0used = True
    st = 0
    for x in prog:
        if x.label or not x.mn or x.mn[0] in ".;":
            out.append(x); continue
        need = 0; why = None
        rd = set(x.rd); wr = set(x.wr)
        def req(p_st, n, w):
            nonlocal need, why
            d = n - (st - p_st - 1)
            if d > need: need = d; why = w
        for p_st, p in hist[-24:]:
            pw = set(p.wr)
            if p.kind == "mfma":
                big = 12 if p.passes == 8 else 8
                if x.kind == "mfma":
                    if pw & set(x.ab): req(p_st, big, ("mfma->AB", p))
                    sc = set(x.srcc)
                    if pw & sc and not (pw == sc and p.passes == x.passes): req(p_st, big - 2, ("mfma->C overlap", p))
                    if pw & wr and not (pw == wr and p.passes == x.passes): req(p_st, big - 2, ("mfma WAW", p))
                elif x.kind in ("valu", "trans", "ds", "vmem"):
                    if pw & (rd | wr): req(p_st, big, ("mfma->use", p))
                    if x.kind in ("valu", "trans") and set(p.srcc) & wr: req(p_st, 7 if p.passes == 8 else 3, ("mfma C WAR", p))
                    if x.kind in ("ds", "vmem") and set(p.srcc) & wr: req(p_st, 7 if p.passes == 8 else 3, ("mfma C WAR(load)", p))
            if p.kind in ("valu", "trans"):
                pv = {r for r in pw if r[0] != "s"}; ps = {r for r in pw if r[0] == "s"}
                if x.kind == "mfma" and pv & rd: req(p_st, 2, ("valu->mfma", p))
                if x.kind in ("valu", "trans"):
                    if p.kind == "trans" and pv & rd: req(p_st, 1, ("trans->valu", p))
                    if ("permlane" in x.mn or "dpp" in x.mn or "row_" in x.mods) and pv & rd: req(p_st, 2, ("valu->perm/dpp", p))
                    if x.mn.startswith(("v_readfirstlane", "v_readlane")) and pv & rd: req(p_st, 1, ("valu->readlane", p))
                    if ps & rd: req(p_st, 2, ("valu sgpr->valu", p))
                if x.kind == "vmem" and ps & rd: req(p_st, 5, ("valu sgpr->vmem", p))
                if x.kind in ("ds", "vmem") and p.kind == "trans" and pv & rd: req(p_st, 1, ("trans->mem", p))
                if x.kind == "salu" and ps & rd: req(p_st, 1, ("valu sgpr->salu", p))
                if x.mn.startswith("s_cbranch_vcc") and ("s", "vcc") in ps: req(p_st, 1, ("vcc->branch", p))
            if p.kind == "vmem" and hasattr(p, "store") and len(p.store) >= 3 and set(p.store) & wr:
                req(p_st, 2, ("store WAR", p))
            if p.kind == "salu" and ("s", "m0") in pw and getattr(x, "dma", False): req(p_st, 1, ("m0->dma", p))
        if need > 0:
            nfix += 1
            if verbose: print(f"  [nop {need}] {why[0]}: {why[1].text}  ->  {x.text}")
            assert fix
            n = need
            while n > 0:
                k = min(n, 16); out.append(I(f"s_nop {k-1}")); st += k; n -= k
        if x.mn.startswith(("s_cselect", "s_cbranch_scc")):
            if not (scc and scc.mn.startswith(("s_cmp", "s_bitcmp", "s_sub_u32"))): errs.append(f"scc clobbered by {scc.text if scc else None} before {x.text}")
        if x.kind == "salu" and not x.mn.startswith(("s_mov", "s_cselect", "s_mul_i32", "s_nop", "s_waitcnt", "s_barrier", "s_cbranch", "s_branch", "s_sleep", "s_getpc", "s_setprio")): scc = x
        if getattr(x, "dma", False):
            if m0used: errs.append(f"dma without fresh m0: {x.text}")
            m0used = True
        if ("s", "m0") in x.wr:
            if not m0used: errs.append(f"m0 overwritten unused: {x.text}")
            m0used = False
        for dpi in getattr(x, "deps", []):
            if all(lastw.get(r) is not dpi for r in dpi.wr): errs.append(f"dep broken: {x.text} expects {dpi.text}, has {lastw.get(dpi.wr[0]).text if lastw.get(dpi.wr[0]) else None}")
        for r in x.wr: lastw[r] = x
        for c in pend:
            for p in pend[c]:
                if set(p.wr) & (rd | wr):
                    if c == p.cnt == x.cnt and not (set(p.wr) & rd) and c != "smem": continue
                    errs.append(f"uncovered {c}: {p.text}  ->  {x.text}")
        if x.mn == "s_waitcnt":
            m = re.search(r"vmcnt\((\d+)\)", x.text)
            if m:
                n = int(m.group(1)); q = pend["vm"]
                keep = []; c = 0
                for p in reversed(q):
                    if c >= n: break
                    keep.append(p)
                    if not p.opt: c += 1
                pend["vm"] = keep[::-1]
            m = re.search(r"lgkmcnt\((\d+)\)", x.text)
            if m:
                n = int(m.group(1))
                pend["lgkm"] = pend["lgkm"][len(pend["lgkm"]) - n:] if n and n < len(pend["lgkm"]) else ([] if n == 0 else pend["lgkm"])
                if n == 0: pend["smem"] = []
        if x.cnt: pend[x.cnt].append(x)
        if len([p for p in pend["vm"]]) > 63: errs.append(f"vmcnt overflow at {x.text}")
        out.append(x); hist.append((st, x))
        if x.mn == "s_nop": st += int(x.ops[0]) + 1
        else: st += 1
    for e in errs[:30]: print("ERROR", e)
    assert not errs, f"{len(errs)} errors"
    return out

def spread(slots, fill, s0, s1, pipe):
    fill = stream(fill)
    if not fill: return
    def used(sl):
        c = 0
        for k, y in enumerate(sl):
            if k == 1 and y.kind == "salu" and sl[0].cost() >= 8: continue
            c += y.cost()
        return c
    free = [max(pipe - used(slots[k]), 1) for k in range(s0, s1)]
    tot = sum(y.cost() for y in fill); F = sum(free)
    if tot > F:
        extra = (tot - F) / len(free); free = [f + extra for f in free]; F = sum(free)
    acc = 0.0; done = 0; n = 0
    for k in range(s0, s1):
        acc += free[k - s0] * tot / F
        while n < len(fill) and (done + fill[n].cost() / 2 <= acc or k == s1 - 1 or fill[n].mn.startswith("s_cselect")):
            slots[k].append(fill[n]); done += fill[n].cost(); n += 1

def render(prog):
    o = []
    for x in prog:
        o.append(x.text if x.label or x.text.startswith(".") else "    " + x.text)
    return "\n".join(o) + "\n"

def link(pairs):
    cur = {}
    out = []
    for pre, op in pairs:
        pre = list(flat([pre]))
        for y in pre:
            y.deps = [cur[r] for r in y.rd if r in cur]
            for r in y.wr: cur[r] = y
        if isinstance(op, I):
            op.deps = [cur[r] for r in op.rd if r in cur]
            if op.kind == "valu":
                for r in op.wr: cur[r] = op
        out.append([pre, op])
    return out

def stream(x):
    o = list(flat([x])); cur = {}
    for y in o:
        y.deps = list(getattr(y, "deps", [])) + [cur[r] for r in y.rd if r in cur]
        for r in y.wr:
            if r[0] == "s": cur[r] = y
    return o
```

```python
import sys, math, struct, os
from asm import *

NAME = "gated_mix__grouped_kv_mqa__dense_activation_gelu__prompt"
OPT = dict(kvt=1, f1=2, ntw1=0, ntx=0, ntq=0, ntw2=0, ntwo=0, n1=6, perm=6, w2t=0, stamps=0, force_fb=0, spin=1 << 18, sync=1, touch=1, st_end=64, fa=35, fl=70, pa=58, pl=86, ld_end=124, wo0=30, rot=1, outsc=2)
for a in sys.argv[2:]:
    k, v = a.split("="); OPT[k] = int(v)

def f2u(x): return struct.unpack("<I", struct.pack("<f", x))[0]
def v(a, n=1): return f"v{a}" if n == 1 else f"v[{a}:{a+n-1}]"
def a_(a, n=1): return f"a{a}" if n == 1 else f"a[{a}:{a+n-1}]"
def rg(r, off=0, n=1): return (v if r[0] == "v" else a_)(r[1] + off, n)

WS_KV = 0; CH = 9472; DC = 2 * CH
WS_G = 0x300000
WS_PF = 0x30000
WS_OF = 0x50000
WS_PF2 = 0x70000
WS_ST = 0x90000
WS_O = 0xa0000
WS_P = 0x400000; R = 73728
OOB = 0x40000000
WR = 10784; SLOT = 4 * WR; TOP = 3 * SLOT
XB = TOP; HB = TOP; TMP = TOP + 16384; BIAS = TOP + 32768; CNT = BIAS + 1152
KVS = [0, 20480, 40960]
WOR = 20768; WOB = 61440
LDS_BYTES = 163840; LOOB = 0x40000
SX, SW1, SWQ, SEX, SW2, SWO, SWS, SOUT, SB1, SB2, SGW, SDBG = [f"s[{4+4*k}:{7+4*k}]" for k in range(12)]
sI, sJ, sW, sWB = "s56", "s57", "s58", "s59"
sCM, sCH = "s60", "s61"
sO1, sOQ, sOE, sOM, sXT, sN = "s64", "s65", "s66", "s67", "s68", "s69"
sGB, sQS, sWKV, sWWO, sSP = "s70", "s71", "s72", "s73", "s74"
sFH, sROT, sOS, sOL, sXB = "s75", "s76", "s77", "s78", "s79"
sPC = "s[0:1]"; sFLG = "s3"
sPS0, sPS1, sPLM, sPLH = "s36", "s37", "s38", "s39"
sPP, sOP, sG1, sG2 = "s44", "s45", "s46", "s47"
sOST, sOLD, sOUT, sSIG = "s52", "s53", "s54", "s55"
sMASK = "s[82:83]"
sPERM, sX0 = sOS, sOL
sW2M, sW2H = sOQ, sOE
ORDERS = ["014235678", "125306487", "236014578", "301245687", "012734568", "123805647", "230156478", "301264587"]
if OPT["perm"] == 0: ORDERS = ["012345678"] * 8
if OPT["perm"] == 3: ORDERS = ["013245678", "124036587", "205134678", "012635478", "120743568", "201845367", "012345678", "120453687"]
if OPT["perm"] == 5: ORDERS = ["012534678", "123640578", "234701568", "340812567", "401235678", "012346785", "123407856", "234018567"]
if OPT["perm"] == 6: ORDERS = ["013245678", "120435678", "201354678", "012346578", "120345768", "201345687", "012345678", "120345678"]
if OPT["perm"] == 7: ORDERS = ["014235678", "123504678", "230164578", "301247568", "012345867", "123045678", "230145678", "301245678"]
if OPT["perm"] == 2: ORDERS = ["021345678", "103245678", "012435678", "102354678", "012346578", "102345768", "012345687", "102345678"]
if OPT["perm"] == 8: ORDERS = ["012345678", "123456780", "234567801", "345678012", "456780123", "567801234", "670812345", "708123456"]
for o in ORDERS: assert sorted(o) == list("012345678")
def perm_word(o): return sum(int(ch) << (4 * k) for k, ch in enumerate(o[1:]))
vR2, vW2, vHW, vHR, vGA, vC, vK, vTD, vONE, vR2P, vCA, vTW2, vIDX, vPA, vTMP = range(1, 16)
HOWN = [16, 24, 40]; GT = 32
ACCV = 48
PROJ = 48; XR = 72; WRING = 136; GATE = 168
(vW1, vWQ, vWQT, vEX, vX, vX2, vR1a, vR1b, vR1xa, vR1xb, vTID, vXR0, vXR1, vXR2, vXR3, vW1H, vG4, vW1B,
 vPW, vPWP, vPW2, vPQ, vPV, vS1, vS2, vS3, vQF, vT0, vT1, vT2, vBR) = range(191, 222)
AW = [192, 200, 240, 248]; AHP = [208, 216]; AQ = 224; AQR = 232

def hp(s, T): return ("v", 224 + 16 * s + 4 * T) if s < 2 else ("a", 16 * (s - 2) + 4 * T)
ORD = [(t, o) for t in range(9) for o in range(2)]
ATILES = ORD[6:11]
def acc2(t, o):
    n = ORD.index((t, o))
    if (t, o) in ATILES: return ("a", 112 + 16 * (n - 6))
    return ("v", ACCV + 16 * (n if n < 6 else n - 5))
def packed(t, o): return ACCV + 8 * ORD.index((t, o))

P = []; OUTL = []
def em(*x): P.extend(flat(x))
nst = [0]
def stamp(mask=1):
    if not (OPT["stamps"] & mask): return []
    k = nst[0]; nst[0] += 1
    assert k < 16
    return list(flat([f"{'s_memtime' if OPT.get('cyc') else 's_memrealtime'} s[80:81]", "s_waitcnt lgkmcnt(0)", f"s_mov_b32 s{84+k}, s80"]))

nlab = [0]
def spin_check(load_text, cmp_text, sleep=2):
    k = nlab[0]; nlab[0] += 1
    OUTL.extend(flat([f"""
L_spin{k}:
s_mov_b32 {sSP}, {OPT['spin']}
L_spin{k}_l:
{'s_sleep %d' % sleep if sleep else ''}
{load_text}
s_sub_u32 {sSP}, {sSP}, 1
s_waitcnt vmcnt(0)
s_cbranch_scc1 L_back{k}
{cmp_text}
s_nop 1
s_cbranch_vccnz L_spin{k}_l
s_branch L_back{k}
"""]))
    return list(flat([cmp_text])), list(flat([f"s_cbranch_vccnz L_spin{k}", f"L_back{k}:"]))

nsync = [0]
def sync(vm):
    if not OPT["sync"]:
        return [], [], [], [W(vm=vm, lgkm0=True), I("s_barrier")]
    nsync[0] += 1; k = nlab[0]; nlab[0] += 1
    cmp_text = f"v_cmp_le_u32 vcc, {4*nsync[0]}, v{vC}"
    OUTL.extend(flat([f"""
L_spin{k}:
s_mov_b32 {sSP}, {OPT['spin'] * 16}
L_spin{k}_l:
ds_read_b32 v{vC}, v{vCA}
s_sub_u32 {sSP}, {sSP}, 1
s_waitcnt lgkmcnt(0)
s_cbranch_scc1 L_back{k}
{cmp_text}
s_nop 1
s_cbranch_vccz L_spin{k}_l
s_branch L_back{k}
"""]))
    rd = I(f"ds_read_b32 v{vC}, v{vCA}")
    return [W(vm=vm), I(f"ds_add_u32 v{vCA}, v{vONE}")], [rd], [W(lgkm=[rd]), I(cmp_text)], list(flat([f"s_cbranch_vccz L_spin{k}", f"L_back{k}:"]))

def front(slot, items):
    slot[1:1] = list(flat([items]))
def put(slots, k, pre, op):
    pre = list(flat([pre])); free = []
    for j in range(k - 1, max(-1, k - 5), -1):
        if any(z.kind == "vmem" for z in slots[j]): break
        if not (len(slots[j]) > 1 and slots[j][1].kind == "salu"): free.insert(0, j)
    m = 0
    while m < len(pre) and pre[m].kind == "salu": m += 1
    m = min(m, len(free))
    for y, j in zip(pre[:m], free[len(free) - m:]): slots[j].insert(1, y)
    slots[k - 1] += pre[m:]
    slots[k].append(op)

def flag():
    if OPT["f1"] == 2:
        return [I(f"v_lshlrev_b32 v{vTMP}, 2, v0"), I("s_mov_b32 exec_hi, 0"), I(f"buffer_store_dword v{vONE}, v{vTMP}, {SWS}, {sFLG} offen sc1"), I("s_mov_b32 exec_hi, -1")]
    st = I(f"buffer_store_dword v{vONE}, off, {SWS}, {sFLG} sc1")
    return [I("s_mov_b64 exec, 1"), st, I("s_mov_b64 exec, -1")] if OPT["f1"] else [st]
def code_touch():
    return link([[f"""
s_lshl_b32 s62, {sN}, 2
s_add_u32 s62, s62, {sW}
s_lshl_b32 s62, s62, 9
v_lshrrev_b32 v{vTMP}, 4, v0
v_lshl_add_u32 v{vTMP}, v{vTMP}, 7, s62
v_min_u32 v{vTMP}, L_codeend-L_pc-4, v{vTMP}
""", I(f"global_load_dword v{vTD}, v{vTMP}, {sPC}")]])

SIZES = {4: 2359296, 8: 5308416, 12: 663552, 16: 20736, 36: 9216, 20: 5308416, 24: 663552, 28: 268435456, 32: 2359296, 40: 1152, 44: 1152, 48: 256}
def srd(*bs): return [f"s_mov_b32 s{b+2}, {SIZES[b]}\ns_mov_b32 s{b+3}, 0x20000" for b in bs]

if OPT.get("st0"): em("s_memrealtime s[100:101]")
em(stamp(16))
NT = {k: (" nt" if OPT["nt" + k] else "") for k in ("w1", "x", "q", "w2", "wo")}
em(f"""
s_getpc_b64 s[62:63]
L_pc:
s_cmp_ge_u32 s2, 256
s_cbranch_scc1 L_end
s_load_dwordx4 s[52:55], s[0:1], 0
s_load_dwordx2 s[8:9], s[0:1], 48
s_lshr_b32 {sN}, s2, 3
v_lshrrev_b32 v1, 7, v0
v_lshrrev_b32 v3, 3, v0
v_mul_u32_u24 v1, {sN}, v1
v_lshl_add_u32 v1, v1, 4, v3
v_lshlrev_b32 v1, 7, v1
v_min_u32 v1, L_codeend-L_pc-4, v1
global_load_dword v{vTD}, v1, s[62:63]
s_load_dwordx4 s[16:19], s[0:1], 16
s_load_dwordx2 s[36:37], s[0:1], 56
v_lshrrev_b32 v1, 6, v0
v_mov_b32 v{vTID}, v0
v_readfirstlane_b32 {sW}, v1
v_and_b32 v0, 63, v0
s_and_b32 {sI}, s2, 1
s_lshl_b32 {sI}, {sI}, 3
s_and_b32 s60, {sN}, 7
s_add_u32 {sI}, {sI}, s60
s_bfe_u32 {sJ}, s2, 0x20001
s_lshl_b32 {sJ}, {sJ}, 2
s_lshr_b32 {sROT}, s2, 6
s_add_u32 {sJ}, {sJ}, {sROT}
s_add_u32 {sPERM}, {sI}, {sJ}
s_and_b32 {sPERM}, {sPERM}, 7
s_lshl_b32 s60, {sPERM}, 2
s_lshr_b32 {sOE}, {hex(sum(int(o[0]) << (4*k) for k, o in enumerate(ORDERS)))}, s60
s_and_b32 {sOE}, {sOE}, 15
s_lshl_b32 {sX0}, {sOE}, 7
s_add_u32 {sXT}, {sX0}, {16*1152}
s_lshl_b32 {sXB}, {sW}, 12
s_lshl_b32 s60, {sI}, 2
s_add_u32 s60, s60, {sW}
s_mul_i32 s60, s60, {32*1152}
v_lshrrev_b32 v2, 4, v0
v_lshrrev_b32 v1, 3, v0
v_mul_u32_u24 v5, 1152, v1
v_add_u32 v1, 2, v2
v_xor_b32 v1, v1, v0
v_and_b32 v1, 7, v1
v_add_u32 v5, s60, v5
v_lshl_add_u32 v{vX}, v1, 4, v5
""", srd(4), f"""
s_waitcnt lgkmcnt(0)
s_mov_b64 s[4:5], s[52:53]
""", stamp(31))
def p1_loads(c):
    sl = (c % 3) * SLOT; o = []; w = []
    for n in range(4):
        o.append([[I(f"s_add_u32 m0, {sXB}, {XB + 16384*(c%2) + 1024*n}")],
                  I(f"buffer_load_dwordx4 v{vX2 if n%2 else vX}, {SX}, {sXT if n >= 2 else sX0} offen{NT['x']} lds")])
    o = [o[0], o[2], o[1], o[3]]
    for n in range(8):
        w.append([[I(f"s_add_u32 m0, {sWB}, {sl + 1024*n - 128*(n//2)}")], I(f"buffer_load_dwordx4 v{vW1B if n%2 else vW1}, {SW1}, {sO1} offen offset:{128*(n//2)}{NT['w1']} lds")])
    w.append([[I(f"s_add_u32 m0, {sWB}, {sl + 8192}")], I(f"buffer_load_dwordx4 v{vW1H}, {SW1}, {sO1} offen{NT['w1']} lds")])
    w.append([[I(f"s_add_u32 m0, {sWB}, {sl + 9216}")], I(f"buffer_load_dwordx4 v{vWQ}, {SWQ}, {sOQ} offen{NT['q']} lds")])
    w.append([[I(f"s_add_u32 m0, {sWB}, {sl + 10240}")], I(f"buffer_load_dword v{vWQT}, {SWQ}, {sOQ} offen{NT['q']} lds")])
    w.append([[I(f"s_add_u32 m0, {sWB}, {sl + 10496}")], I(f"buffer_load_dword v{vEX}, {SEX}, {sOE} offen lds")])
    if c == 0: return o + w
    so = [I(f"s_bfe_u32 {sOE}, {sPERM}, {hex(0x40000 + 4*(c-1))}"), I(f"s_mul_i32 {sO1}, {sOE}, {64*9216}"), I(f"s_mul_i32 {sOQ}, {sOE}, {64*1152}"),
          I(f"s_lshl_b32 {sX0}, {sOE}, 7"), I(f"s_add_u32 {sXT}, {sX0}, {16*1152}"), I(f"s_mul_i32 {sOE}, {sOE}, {64*36}")]
    if c == 1:
        o[0][0] = so + o[0][0]; return o + w
    w[0][0] = so[:2] + w[0][0]
    for k in range(4): w[1 + k][0] = [so[2 + k]] + w[1 + k][0]
    return w + o
def p2_loads(s):
    sl = (s % 3) * SLOT; o = []
    for n in range(9):
        pre = [I(f"s_add_u32 m0, {sWB}, {sl + 896*n}")]
        if n == 0: pre = [I(f"s_add_u32 {sO1}, {sW2M}, {s*36864}") if s < 8 else I(f"s_mov_b32 {sO1}, {sW2H}")] + pre
        o.append([pre, I(f"buffer_load_dwordx4 v{vW2}, {SW2}, {sO1} offen offset:{128*n}{NT['w2']} lds")])
    return o
LOADS = [link(p1_loads(c)) for c in range(9)] + [link(p2_loads(s)) for s in range(9)]
def last(c): return LOADS[c][-1][1]

def weave(pairs, fill):
    fill = stream(fill); n = len(pairs); k = 0
    for q, (pre, op) in enumerate(pairs):
        e = (q + 1) * len(fill) // n
        while e < len(fill) and fill[e].mn.startswith("s_cselect"): e += 1
        e = max(e, k)
        em(pre, fill[k:e], op); k = e

bl = I(f"buffer_load_dword v7, v6, {SB1}, s61 offen")
psel = [f"s_mov_b32 s60, {hex(perm_word(ORDERS[0]))}"]
for k in range(1, 8): psel += [f"s_cmp_eq_u32 {sPERM}, {k}", f"s_cselect_b32 {'s60' if k < 7 else sPERM}, {hex(perm_word(ORDERS[k]))}, s60"]
L0 = LOADS[0]
em(L0[0][0], f"v_xor_b32 v1, 4, v1", L0[0][1], L0[1][0], f"v_lshl_add_u32 v{vX2}, v1, 4, v5", L0[1][1], L0[2][0], f"v_add_u32 v{vX2}, {8*1152}, v{vX2}", L0[2][1],
   L0[3][0], f"v_bfe_u32 v1, v0, 2, 3", L0[3][1], srd(8), f"""
s_load_dwordx2 s[20:21], s[0:1], 64
s_load_dwordx2 s[24:25], s[0:1], 32
s_load_dwordx2 s[28:29], s[0:1], 104
s_load_dwordx2 s[32:33], s[0:1], 88
s_load_dwordx2 s[40:41], s[0:1], 72
s_load_dwordx2 s[44:45], s[0:1], 80
s_load_dwordx2 s[48:49], s[0:1], 96
s_mul_i32 {sWB}, {sW}, {WR}
s_mul_i32 {sO1}, {sOE}, {64*9216}
v_lshl_add_u32 v1, {sW}, 4, v1
v_mul_u32_u24 v1, 9216, v1
v_and_b32 v4, 3, v0
v_lshl_add_u32 v1, v4, 4, v1
v_lshrrev_b32 v5, 5, v0
v_lshl_add_u32 v1, v5, 6, v1
s_mul_i32 s61, {sJ}, 576
s_and_b32 {sFH}, {sJ}, 1
s_lshl_b32 s60, {sFH}, 6
s_add_u32 s60, s60, s61
v_add_u32 v{vW1}, s60, v1
v_add_u32 v{vW1B}, {8*9216}, v{vW1}
""")
weave(L0[4:12], [f"""
v_lshrrev_b32 v1, 2, v{vTID}
s_xor_b32 s60, {sFH}, 1
s_lshl_b32 s60, s60, 9
s_add_u32 s60, s60, s61
v_mul_u32_u24 v5, 9216, v1
v_lshl_add_u32 v5, v4, 4, v5
v_add_u32 v{vW1H}, s60, v5
s_mov_b64 s[12:13], s[54:55]
s_lshr_b32 s60, 0x2c, {sJ}
s_bitcmp1_b32 s60, 0
s_cselect_b32 s16, s18, s16
s_cselect_b32 s17, s19, s17
s_cmp_lt_u32 {sJ}, 6
s_cselect_b32 s18, {SIZES[16]}, 0
s_mov_b32 s19, 0x20000
s_mul_i32 {sOQ}, {sOE}, {64*1152}
s_mul_i32 {sOE}, {sOE}, {64*36}
s_mul_i32 s60, {sJ}, 72
v_mul_u32_u24 v5, 1152, v1
v_add_u32 v5, s60, v5
v_lshl_add_u32 v{vWQ}, v4, 4, v5
v_lshl_add_u32 v{vWQT}, v4, 2, v5
v_add_u32 v{vWQT}, 56, v{vWQT}
s_lshl_b32 s60, {sFH}, 4
s_cmp_ge_u32 {sJ}, 4
s_cselect_b32 s60, 20, s60
v_mul_u32_u24 v5, 36, v1
v_lshl_add_u32 v5, v4, 2, v5
v_add_u32 v{vEX}, s60, v5
v_min_u32 v6, 143, v{vTID}
v_lshlrev_b32 v6, 2, v6
""", srd(12, 36)])
em(stamp(16), bl)
weave(L0[12:], [psel, "s_waitcnt lgkmcnt(0)", f"s_mov_b64 {sPC}, s[62:63]"])
weave(LOADS[1][:OPT['n1']], [f"""
s_mul_i32 s63, {sFH}, -128
s_and_b32 {sFH}, {sW}, 1
v_bfe_u32 v5, v0, 2, 2
v_mul_u32_u24 v{vR1a}, {WR}, v2
v_lshl_add_u32 v{vR1xa}, v5, 4, v{vR1a}
v_lshl_add_u32 v{vR1a}, v5, 6, v{vR1a}
v_lshl_add_u32 v{vR1a}, v4, 3, v{vR1a}
s_lshl_b32 s62, {sFH}, 5
v_add_u32 v{vR1a}, s62, v{vR1a}
v_add_u32 v{vR1b}, {2*SLOT}, v{vR1a}
v_lshrrev_b32 v5, 1, v4
v_and_b32 v1, 1, v4
v_lshl_add_u32 v{vR1xa}, v5, 8, v{vR1xa}
v_lshl_add_u32 v{vR1xa}, v1, 3, v{vR1xa}
v_add_u32 v{vR1xa}, 10240, v{vR1xa}
v_add_u32 v{vR1xb}, {2*SLOT}, v{vR1xa}
v_bfe_u32 v5, v0, 1, 3
v_add_u32 v5, 2, v5
v_lshlrev_b32 v1, 1, v2
v_xor_b32 v5, v5, v1
v_and_b32 v5, 7, v5
v_and_b32 v1, 15, v0
v_lshlrev_b32 v1, 7, v1
v_lshl_add_u32 v5, v5, 4, v1
s_add_u32 s62, {sXB}, {XB}
v_add_u32 v{vXR0}, s62, v5
v_xor_b32 v{vXR1}, 16, v{vXR0}
s_xor_b32 s62, {sXB}, 4096
s_add_u32 s62, s62, {XB}
v_add_u32 v{vXR2}, s62, v5
v_xor_b32 v{vXR3}, 16, v{vXR2}
s_lshl_b32 s62, {sFH}, 6
s_add_u32 s62, s62, {BIAS}
v_lshl_add_u32 v{vBR}, v2, 4, s62
v_lshl_add_u32 v5, v6, 1, s63
v_add_u32 v1, 1152, v5
v_min_u32 v5, v5, v1
v_add_u32 v5, {BIAS}, v5
v_mov_b32 v{vCA}, {LOOB}
s_mov_b32 s62, {CNT}
v_writelane_b32 v{vCA}, s62, 0
v_mov_b32 v{vONE}, 0
""", srd(20, 24, 28, 32, 40, 44, 48)])
em(stamp(16))
if OPT["stamps"] & 16:
    for k in (0, 3, 8, 12): em(W(vm=[LOADS[0][k][1]]), stamp(16))
em(f"ds_write_b32 v{vCA}, v{vONE}", W(vm=[bl]), f"""
v_lshlrev_b32 v6, 16, v7
v_and_b32 v7, 0xffff0000, v7
v_mov_b32 v{vONE}, 1
ds_write_b64 v5, v[6:7]
""", W(vm=[last(0)], lgkm0=True), stamp(16), "s_barrier", stamp(19))

def p1_reads(c, t):
    sl = c % 3; ring = WRING + 8 * ((11 * c + t) % 4); o = []
    for s in range(2):
        for rho in range(2):
            if t > 0:
                ad = vR1a if sl < 2 else vR1b
                n = 9 if t == 1 else t - 2
                off = (sl % 2) * SLOT + 256 * rho + (1024 * n + 512 * s if n >= 8 else 2048 * (n // 2) + 1024 * s + 512 * (n % 2))
            else:
                ad = vR1xa if sl < 2 else vR1xb
                off = (sl % 2) * SLOT + 128 * s + 64 * rho
            o.append(I(f"ds_read_b64_tr_b16 {v(ring + 4*s + 2*rho, 2)}, v{ad} offset:{off}"))
    return o
def p1_acc(t, T): return hp(t - 2, T) if t >= 2 else ("v", PROJ + (16 if t == 0 else 0) + 4 * T)
RD = {(c, t): p1_reads(c, t) for c in range(9) for t in range(11)}
def xreg(c, T, s): return v(XR + 32*(c%2) + 8*T + 4*s, 4)
XRD = {c: [I(f"ds_read_b128 {xreg(c, T, s)}, v{vXR0 + 2*(T//2) + s} offset:{16384*(c%2) + 2048*(T%2)}") for T in (1, 0, 3, 2) for s in range(2)] for c in range(9)}
BRD = [I(f"ds_read_b128 {rg(hp(s, 0), 0, 4)}, v{vBR} offset:{128*s}") for s in range(9)]
def p2_reads(s, t):
    return [I(f"ds_read_b64_tr_b16 {a_(AW[(9*s+t)%4] + 4*k + 2*rho, 2)}, v{vR2P if k else vR2} offset:{512*t + 256*rho}") for k in range(2) for rho in range(2)]
RD2 = {(s, t): p2_reads(s, t) for s in range(9) for t in range(9)}

gl = [I(f"buffer_load_dwordx4 {v(GATE+10,4)}, v{GATE+20}, {SGW}, 0 offen"), I(f"buffer_load_dwordx4 {v(GATE+14,4)}, v{GATE+20}, {SGW}, 0 offen offset:512"),
      I(f"buffer_load_dword v{GATE+18}, v{GATE+21}, {SGW}, 0 offen offset:1024"),
      I(f"buffer_load_dwordx4 {v(GATE,4)}, v{GATE+22}, {SX}, 0 offen"), I(f"buffer_load_dwordx4 {v(GATE+4,4)}, v{GATE+22}, {SX}, 0 offen offset:512"),
      I(f"buffer_load_dword v{GATE+8}, v{vG4}, {SX}, 0 offen offset:1024")]
g_acc = GATE + 9; g0, g1, g2, g3 = GATE + 19, GATE + 20, GATE + 21, GATE + 22
fill_a = f"""
s_lshl_b32 s62, {sI}, 4
s_add_u32 s62, s62, {sJ}
s_lshl_b32 s63, s62, 3
v_lshrrev_b32 v{vT2}, 5, v{vTID}
v_add_u32 v{vT2}, s63, v{vT2}
v_and_b32 v{g2}, 31, v0
v_lshlrev_b32 v{g1}, 4, v{g2}
v_lshlrev_b32 v{g2}, 2, v{g2}
v_mul_u32_u24 v{vG4}, 1152, v{vT2}
v_add_u32 v{g3}, v{vG4}, v{g1}
v_add_u32 v{vG4}, v{vG4}, v{g2}
s_lshl_b32 s62, s62, 2
s_add_u32 s62, s62, {sW}
s_lshl_b32 s62, s62, 7
s_add_u32 {sFLG}, s62, {WS_PF}
s_lshl_b32 s62, {sI}, 13
s_add_u32 s62, s62, {WS_PF}
s_lshr_b32 s63, {sJ}, 1
s_mul_i32 s63, s63, {WS_OF - WS_PF}
s_add_u32 s62, s62, s63
s_and_b32 s63, {sJ}, 1
s_lshl_b32 s63, s63, 12
s_add_u32 s62, s62, s63
s_cmp_lt_u32 {sJ}, 6
s_cselect_b32 s62, s62, {OOB}
v_lshl_add_u32 v{g0}, v{vTID}, 4, s62
v_mov_b32 v{g_acc}, 0
v_mov_b32 v{GATE}, 0
v_mov_b32 v{GATE+1}, 0
v_mov_b32 v{GATE+2}, 0
v_mov_b32 v{GATE+3}, 0
"""
clr = I(f"buffer_store_dwordx4 {v(GATE, 4)}, v{g0}, {SWS}, 0 offen sc1")
gate_math = []
for d in range(9):
    xx = GATE + d; ww = GATE + 10 + d
    gate_math += [f"v_lshlrev_b32 v{g0}, 16, v{xx}", f"v_lshlrev_b32 v{g1}, 16, v{ww}", f"v_and_b32 v{g2}, 0xffff0000, v{xx}", f"v_and_b32 v{g3}, 0xffff0000, v{ww}",
                  f"v_fmac_f32 v{g_acc}, v{g0}, v{g1}", f"v_fmac_f32 v{g_acc}, v{g2}, v{g3}"]
GA = -2 * math.sqrt(2 / math.pi) * math.log2(math.e)
gate_red = [
    f"v_lshlrev_b32 v{vT2}, 7, v{vT2}", f"v_add_u32 v{vT2}, {WS_G}, v{vT2}",
    f"v_add_f32_dpp v{g_acc}, v{g_acc}, v{g_acc} row_shr:1 row_mask:0xf bank_mask:0xf bound_ctrl:1",
    f"v_and_b32 v{g0}, 31, v0", f"v_lshl_add_u32 v{vT2}, v{g0}, 2, v{vT2}",
    f"v_add_f32_dpp v{g_acc}, v{g_acc}, v{g_acc} row_shr:2 row_mask:0xf bank_mask:0xf bound_ctrl:1",
    "s_nop 0", f"v_mov_b32 v{vGA}, {hex(f2u(GA))}",
    f"v_add_f32_dpp v{g_acc}, v{g_acc}, v{g_acc} row_shr:4 row_mask:0xf bank_mask:0xf bound_ctrl:1",
    "s_nop 0", f"v_mov_b32 v{vIDX}, 0xdddddddd",
    f"v_add_f32_dpp v{g_acc}, v{g_acc}, v{g_acc} row_shr:8 row_mask:0xf bank_mask:0xf bound_ctrl:1",
    f"v_lshlrev_b32 v{vK}, 4, v0", f"v_and_b32 v{vPA}, 0xf0, v{vK}",
    f"v_add_f32_dpp v{g_acc}, v{g_acc}, v{g_acc} row_bcast:15 row_mask:0xa bank_mask:0xf",
    f"v_mul_f32 v{g_acc}, {hex(f2u(-math.log2(math.e)))}, v{g_acc}",
    f"v_exp_f32 v{g_acc}, v{g_acc}", f"s_mov_b32 {sGB}, {hex(f2u(GA * 0.044715))}",
    f"v_add_f32 v{g_acc}, 1.0, v{g_acc}", f"v_rcp_f32 v{g_acc}, v{g_acc}", "s_nop 0"]
gst = I(f"buffer_store_dword v{g_acc}, v{vT2}, {SWS}, 0 offen sc1")
fill_p2 = f"""
s_mul_i32 s62, {sJ}, 288
s_lshl_b32 s63, {sW}, 3
s_add_u32 s62, s62, s63
v_bfe_u32 v{vS1}, v0, 2, 3
v_add_u32 v{vS1}, s62, v{vS1}
v_mul_u32_u24 v{vW2}, 1152, v{vS1}
v_lshrrev_b32 v{vS2}, 5, v0
v_lshl_add_u32 v{vW2}, v{vS2}, 6, v{vW2}
v_and_b32 v{vS1}, 3, v0
v_lshl_add_u32 v{vW2}, v{vS1}, 4, v{vW2}
v_mul_u32_u24 v{vR2}, {WR}, v{vS2}
v_bfe_u32 v{vS1}, v0, 2, 2
v_lshl_add_u32 v{vR2}, v{vS1}, 6, v{vR2}
v_bfe_u32 v{vS1}, v0, 4, 1
v_lshl_add_u32 v{vR2}, v{vS1}, 5, v{vR2}
v_and_b32 v{vS1}, 1, v0
v_lshl_add_u32 v{vR2}, v{vS1}, 4, v{vR2}
v_bfe_u32 v{vS1}, v0, 1, 1
v_lshl_add_u32 v{vR2}, v{vS1}, 3, v{vR2}
s_mul_i32 s62, {sFH}, {4608 - 2*WR}
s_add_u32 s62, s62, {2*WR}
v_add_u32 v{vR2P}, s62, v{vR2}
s_mul_i32 s62, {sFH}, {4608 + 2*WR}
v_add_u32 v{vR2}, s62, v{vR2}
s_lshl_b32 s62, {sW}, 11
s_add_u32 s63, s62, {HB}
v_lshl_add_u32 v{vHW}, v0, 4, s63
s_xor_b32 s62, s62, 2048
s_add_u32 s63, s62, {HB}
v_lshl_add_u32 v{vHR}, v0, 4, s63
s_and_b32 s62, {sN}, 7
s_lshl_b32 s62, s62, 2
s_add_u32 s62, s62, {sW}
s_mul_i32 s62, s62, {27*128}
s_mul_i32 s63, {sJ}, {288*1152}
s_add_u32 s62, s62, s63
v_mul_u32_u24 v{vTW2}, 27, v0
v_lshrrev_b32 v{vTW2}, 6, v{vTW2}
v_lshl_add_u32 v{vTW2}, v{vTW2}, 7, s62
"""
def w2touch(r):
    if not OPT["w2t"]: return []
    return link([[I(f"s_mov_b32 {sOM}, {110592*r}"), I(f"buffer_load_dword v{vTD}, v{vTW2}, {SW2}, {sOM} offen")]])
fill_pe = f"""
s_mov_b32 {sQS}, {hex(f2u(math.log2(math.e)/math.sqrt(18)))}
s_mul_i32 s62, {sW}, 3072
s_add_u32 s62, s62, {TMP}
v_and_b32 v{vT0}, 15, v0
v_lshrrev_b32 v{vT1}, 4, v0
v_mul_u32_u24 v{vPW2}, 96, v{vT0}
v_add_u32 v{vPW2}, s62, v{vPW2}
v_lshl_add_u32 v{vPW}, v{vT1}, 3, v{vPW2}
s_lshl_b32 s63, {sFH}, 5
v_add_u32 v{vPW}, s63, v{vPW}
s_mul_i32 s63, {sFH}, -6144
s_add_u32 s63, s63, 3072
v_add_u32 v{vPWP}, s63, v{vPW}
v_cmp_gt_u32 vcc, 32, v0
v_xor_b32 v{vS3}, 1, v{vT1}
v_mov_b32 v{vQF}, {sQS}
v_cndmask_b32 v{vS3}, v{vT1}, v{vS3}, vcc
v_cndmask_b32 v{vQF}, 1.0, v{vQF}, vcc
v_lshl_add_u32 v{vPW2}, v{vS3}, 3, v{vPW2}
v_and_b32 v{vS3}, 31, v0
v_mul_u32_u24 v{vPQ}, 96, v{vS3}
v_add_u32 v{vPQ}, s62, v{vPQ}
v_bfe_u32 v{vPV}, v0, 2, 2
v_lshl_add_u32 v{vPV}, v{vT1}, 3, v{vPV}
v_mul_u32_u24 v{vPV}, 96, v{vPV}
v_and_b32 v{vS1}, 3, v0
v_lshl_add_u32 v{vPV}, v{vS1}, 3, v{vPV}
v_add_u32 v{vPV}, s62, v{vPV}
s_mul_i32 s60, {sI}, {CH}
s_lshl_b32 s62, {sW}, 10
s_lshl_b32 s63, {sJ}, 9
s_add_u32 s62, s62, s63
s_add_u32 s62, s62, s60
s_cmp_lt_u32 {sJ}, 2
s_cselect_b32 s62, s62, {OOB}
v_lshl_add_u32 v{vS1}, v{vS3}, 4, s62
s_lshr_b32 s62, {sW}, 1
s_lshl_b32 s62, s62, 8
s_lshl_b32 s63, {sFH}, 2
s_add_u32 s62, s62, s63
s_add_u32 s62, s62, s60
s_add_u32 s62, s62, 4096
s_cmp_eq_u32 {sJ}, 4
s_cselect_b32 s62, s62, {OOB}
v_lshl_add_u32 v{vS2}, v{vS3}, 3, s62
v_mov_b32 v{vBR}, {OOB}
v_cndmask_b32 v{vS1}, v{vBR}, v{vS1}, vcc
v_cndmask_b32 v{vS2}, v{vBR}, v{vS2}, vcc
"""
fill_pe2 = f"""
s_mul_i32 s62, {sW}, 1216
s_add_u32 s62, s62, s60
s_add_u32 s62, s62, {4608 - 128}
s_cmp_eq_u32 {sJ}, 3
s_cselect_b32 s63, 128, 0
s_cmp_eq_u32 {sJ}, 5
s_cselect_b32 s63, 160, s63
s_cselect_b32 s61, 13, 8
s_cselect_b32 s60, 13, 99
s_add_u32 s62, s62, s63
s_lshr_b32 s63, 0x2c, {sJ}
s_bitcmp1_b32 s63, 0
s_cselect_b32 s61, s61, 99
v_mul_u32_u24 v{vS3}, 304, v{vT1}
v_lshl_add_u32 v{vS3}, v{vT0}, 4, v{vS3}
v_add_u32 v{vS3}, s62, v{vS3}
v_cmp_eq_u32 {sMASK}, s60, v{vT0}
v_add_u32 v{vT1}, 48, v{vS3}
v_cmp_le_u32 vcc, s61, v{vT0}
v_cndmask_b32 v{vS3}, v{vS3}, v{vT1}, {sMASK}
v_mov_b32 v{vT0}, 0x3f803f80
v_cndmask_b32 v{vS3}, v{vBR}, v{vS3}, vcc
v_lshrrev_b32 v{vT1}, 5, v0
v_lshl_add_u32 v{vT1}, v{vT1}, 4, v{vPQ}
"""
fill_s = f"""
s_lshl_b32 {sWKV}, {sW}, 10
s_mul_i32 {sWWO}, {sW}, {WOR}
s_add_u32 {sWWO}, {sWWO}, {WOB}
s_lshl_b32 {sSIG}, {sI}, 4
s_cmp_lt_u32 {sJ}, 6
s_cselect_b32 {sSIG}, {sSIG}, 0x1000
s_cmp_eq_u32 {sW}, 0
s_cselect_b32 {sSIG}, {sSIG}, 0x1000
s_lshr_b32 s62, {sW}, 1
s_lshl_b32 s63, {sI}, 1
s_add_u32 s62, s62, s63
s_lshl_b32 s62, s62, 4
s_add_u32 s62, s62, {sJ}
s_mul_i32 s62, s62, {R}
s_mul_i32 {sPS0}, {sFH}, {36864 + 512}
s_add_u32 {sPS0}, {sPS0}, s62
s_add_u32 {sPS0}, {sPS0}, {WS_P}
s_xor_b32 {sPS1}, {sPS0}, 512
s_lshr_b32 s62, {sJ}, 3
s_add_u32 s63, s63, s62
s_mul_i32 {sPLM}, s63, {16*R}
s_lshl_b32 {sOUT}, s63, 2
s_add_u32 {sOUT}, {sOUT}, {sW}
s_lshl_b32 {sG2}, {sOUT}, 11
s_add_u32 {sG2}, {sG2}, {WS_G + 124}
s_lshr_b32 {sOLD}, {sOUT}, 1
s_mul_i32 {sOLD}, {sOLD}, 36864
s_add_u32 {sOLD}, {sOLD}, {WS_O}
s_mul_i32 {sOUT}, {sOUT}, {16*1152}
s_lshl_b32 {sOP}, {sI}, 5
s_add_u32 {sOP}, {sOP}, s62
s_lshl_b32 {sOP}, {sOP}, 1
s_bfe_u32 s62, {sJ}, 0x10002
s_add_u32 {sPP}, {sOP}, s62
s_lshl_b32 {sPP}, {sPP}, 7
s_add_u32 {sPP}, {sPP}, {WS_PF}
s_lshr_b32 s62, {sW}, 1
s_add_u32 {sOP}, {sOP}, s62
s_lshl_b32 {sOP}, {sOP}, 7
s_add_u32 {sOP}, {sOP}, {WS_OF}
s_lshl_b32 s62, {sI}, 2
s_add_u32 s62, s62, {sW}
s_lshl_b32 {sG1}, s62, 12
s_add_u32 {sG1}, {sG1}, {WS_G + 124}
s_mul_i32 {sOST}, s62, 36864
s_add_u32 {sOST}, {sOST}, {WS_O}
"""
fill_s2 = f"""
s_and_b32 s62, {sJ}, 7
s_mul_i32 s62, s62, 144
s_add_u32 {sOUT}, {sOUT}, s62
s_and_b32 s63, {sJ}, 1
s_lshl_b32 {sCM}, s63, 4
s_add_u32 {sCM}, {sCM}, s62
s_xor_b32 s63, s63, 1
s_lshl_b32 {sCH}, s63, 7
s_add_u32 {sCH}, {sCH}, s62
s_lshl_b32 s62, {sW}, 8
s_add_u32 {sPLM}, {sPLM}, s62
s_add_u32 {sPLM}, {sPLM}, {WS_P}
s_lshl_b32 s62, {sCH}, 6
s_add_u32 {sPLH}, {sPLM}, s62
s_lshl_b32 s62, {sCM}, 6
s_add_u32 {sPLM}, {sPLM}, s62
s_lshl_b32 {sROT}, {sROT}, {1 if OPT['rot'] else 3}
"""

def gelu(s):
    o = []; H = HOWN[s % 3]
    for T in range(4):
        src = hp(s, T); t = [GT + 4 + e for e in range(4)]
        if src[0] == "a":
            u = [GT + e for e in range(4)]
            o += [f"v_accvgpr_read_b32 v{u[e]}, a{src[1]+e}" for e in range(4)]
        else: u = [src[1] + e for e in range(4)]
        o += [f"v_mul_f32 v{t[e]}, v{u[e]}, v{u[e]}" for e in range(4)]
        o += [f"v_fma_f32 v{t[e]}, v{t[e]}, {sGB}, v{vGA}" for e in range(4)]
        o += [f"v_mul_f32 v{t[e]}, v{t[e]}, v{u[e]}" for e in range(4)]
        o += [f"v_exp_f32 v{t[e]}, v{t[e]}" for e in range(4)]
        o += [f"v_add_f32 v{t[e]}, 1.0, v{t[e]}" for e in range(4)]
        o += [f"v_rcp_f32 v{t[e]}, v{t[e]}" for e in range(4)]
        o += [f"v_mul_f32 v{t[e]}, v{t[e]}, v{u[e]}" for e in range(4)]
        o += [f"v_cvt_pk_bf16_f32 v{H + 2*T + r}, v{t[2*r]}, v{t[2*r+1]}" for r in range(2)]
        if T % 2:
            b = H + 4 * (T // 2)
            o.append(("late", [f"v_permlane16_swap_b32 v{b+r}, v{b+2+r}" for r in range(2)] +
                      [f"ds_write_b128 v{vHW}, {v(b, 4)} offset:{8192*(s%2) + 1024*(1 - T//2)}"]))
    res = []; pend = None; cnt = 0
    for x in o:
        if isinstance(x, tuple): pend = x[1]; cnt = 0; continue
        res.append(x)
        if pend:
            cnt += 1
            if cnt == 2: res += pend; pend = None
    if pend: res += ["s_nop 0"] + pend
    return list(flat(res))
HR = {s: [I(f"ds_read_b128 {a_(AHP[s%2] + 4*o, 4)}, v{vHR} offset:{8192*(s%2) + 1024*o}") for o in range(2)] for s in range(9)}

D1 = GATE; D2 = GATE + 4
def pe_tile(b, fac, ad, off):
    return [f"v_mul_f32 v{b+e}, {fac}, v{b+e}" for e in range(4)] + [f"v_cvt_pk_bf16_f32 v{b+r}, v{b+2*r}, v{b+2*r+1}" for r in range(2)] + \
           [f"ds_write_b64 v{ad}, {v(b, 2)} offset:{off}"]
kvrd = [I(f"ds_read_b128 {v(D1,4)}, v{vPQ} offset:80"), I(f"ds_read_b64_tr_b16 {v(D2,2)}, v{vPV} offset:64"), I(f"ds_read_b64_tr_b16 {v(D2+2,2)}, v{vPV} offset:{64 + 4*96}")]
kvst = [I(f"buffer_store_dwordx4 {v(D1,4)}, v{vS1}, {SWS}, 0 offen sc1"), I(f"buffer_store_dword v{D1+3}, v{vS2}, {SWS}, 0 offen sc1"),
        I(f"buffer_store_dwordx4 {v(D2,4)}, v{vS3}, {SWS}, 0 offen sc1")]
pe = [pe_tile(PROJ + 16 + 4*T, f"v{vQF}", vPW2, 64 + 1536*T) for T in (1, 0)] + [kvrd] + \
     [pe_tile(PROJ + 4*T, sQS, vPW if T < 2 else vPWP, 1536*(T%2)) for T in (3, 2, 1, 0)] + \
     [W(lgkm=kvrd), [f"v_cndmask_b32 v{D2+e}, v{D2+e}, v{vT0}, {sMASK}" for e in range(4)], kvst]
g0s = gelu(0)

em(XRD[0][:4], RD[0, 0], XRD[0][4:], W(lgkm=XRD[0][:2]), RD[0, 1], W(lgkm=RD[0, 0]), RD[0, 2], BRD[0])
TS = [0] + [4 + 8 * t for t in range(11)]
for c in range(9):
    slots = []
    for t in range(11):
        ring = WRING + 8 * ((11 * c + t) % 4)
        for T in ((3, 2, 1, 0) if t else (1, 0)):
            for s in range(2):
                d = p1_acc(t, T); cc = rg(d, 0, 4)
                if c == 0 and s == 0: cc = rg(p1_acc(t, 0), 0, 4) if t >= 2 else "0"
                slots.append([I(f"v_mfma_f32_16x16x32_bf16 {rg(d,0,4)}, {v(ring + 4*s, 4)}, {xreg(c, T, s)}, {cc}")])
    arr, frd, fcmp, fbr = sync([last(c + 1)] + ([gl[-1]] if c == 4 else []))
    for t in range(11):
        b = TS[t]; e = TS[t + 1] - 1
        if t < 10:
            tg = RD[c, t + 1] + (XRD[c] if t == 0 else []) + ([BRD[t - 1]] if c == 0 and t >= 1 else [])
            slots[e].append(W(lgkm=tg))
        if t < 8:
            for m in range(4): slots[b + (m if t in (0, 7) else 2 * m)].append(RD[c, t + 3][m])
            if c == 0: slots[b + (3 if t in (0, 7) else 7)].append(BRD[t + 1])
    slots[56] += arr; slots[61] += frd
    front(slots[66], fcmp[:1]); slots[66] += fcmp[1:]
    front(slots[67], fbr + stamp(2 if c > 3 else 18))
    if c < 8:
        nx = XRD[c + 1][:4] + RD[c + 1, 0] + XRD[c + 1][4:] + RD[c + 1, 1] + RD[c + 1, 2]
        pos = [67, 68, 69, 70, 71, 71, 72, 72, 73, 74, 75, 76, 77, 77, 78, 78, 79, 80, 81, 82]
        slots[83].append(W(lgkm=XRD[c + 1][:4] + RD[c + 1, 0]))
    else:
        nx = RD2[0, 0] + RD2[0, 1] + RD2[0, 2]; pos = list(range(68, 80))
    for y, k in zip(nx, pos): slots[k].append(y)
    pairs = list(LOADS[c + 2]); late = []
    if c < 7: pairs, late = pairs[:12], pairs[12:]
    if c == 0: pairs = LOADS[1][OPT['n1']:] + pairs
    if c == 2: pairs = [[None, x] for x in gl[:3] + [clr]] + pairs
    if c == 3: pairs = [[None, x] for x in gl[3:]] + pairs
    if c == 6: late = late + w2touch(0)
    if c == 7: pairs = link([[[f"s_and_b32 {sW2M}, {sJ}, 1", f"s_xor_b32 {sW2H}, {sW2M}, 1"], gst],
                             [f"s_mul_i32 {sW2M}, {sW2M}, 36864", I(f"s_mul_i32 {sW2H}, {sW2H}, {8*36864}")]]) + code_touch() + pairs
    if c == 8: pairs = w2touch(1) + pairs
    cand = [k for k in range(5, 66, 2) if k not in (53, 55, 61)]
    for k, (pre, op) in enumerate(pairs): put(slots, cand[(k * len(cand)) // len(pairs)], pre, op)
    for (pre, op), k in zip(late, (70, 74, 78, 81, 83)): put(slots, k, pre, op)
    fl = {1: [fill_a, fill_p2], 2: fill_pe, 4: [fill_s], 5: gate_math, 6: [gate_red], 7: [fill_pe2, fill_s2]}.get(c)
    if c == 2: fl = None
    if c == 4: fl = [fill_pe]
    if c == 6: fl = [gate_red, fill_s]
    if fl: spread(slots, [fl], 2 if c != 7 else 20, 66, 16)
    if c == 8:
        spread(slots, pe, 14, 56, 16)
        spread(slots, g0s[:36], 56, 84, 16)
    em(slots)
em(stamp())
qrd = f"""
ds_read_b128 {a_(AQ,4)}, v{vT1}
ds_read_b128 {a_(AQ+4,4)}, v{vT1} offset:36
ds_read_b32 a{AQR}, v{vPQ} offset:32
ds_read_b32 a{AQR+1}, v{vPQ} offset:68
"""
g1s = gelu(1)
em(g0s[36:], W(lgkm0=True), "s_barrier", HR[0], qrd, g1s[:20], W(lgkm=HR[0]), stamp(7))

def kv_dma(d):
    return link([[[I(f"s_add_u32 {sOM}, {sWKV}, {WS_KV + d*DC + 4096*n}"), I(f"s_add_u32 m0, {sWKV}, {KVS[d%3] + 4096*n}")],
                  I(f"buffer_load_dwordx4 v{vK}, {SWS}, {sOM} offen sc1 lds")] for n in range(5)])
KVD = {d: kv_dma(d) for d in range(8)}
sig1 = I(f"buffer_atomic_add v{vONE}, v{vTMP}, {SDBG}, {sSIG} offen sc1")
poll1_t = f"buffer_load_dword v{vTMP}, v{vPA}, {SDBG}, 0 offen sc1"
poll1 = I(poll1_t)
def convert(t, o):
    src = acc2(t, o); d = packed(t, o); r = []
    if src[0] == "v":
        return [f"v_cvt_pk_bf16_f32 v{d+e}, v{src[1]+2*e}, v{src[1]+2*e+1}" for e in range(8)]
    for h in range(2):
        r += [f"v_accvgpr_read_b32 v{GT+e}, a{src[1]+8*h+e}" for e in range(8)]
        r += [f"v_cvt_pk_bf16_f32 v{d+4*h+e}, v{GT+2*e}, v{GT+2*e+1}" for e in range(4)]
    return r

vK2, vV, vPS = vW2, vHW, vGA
AK = [32, 36]; AK2 = [40, 42]; AV = [44, 52]; AO = [0, 16]; APL = 64
SB = [192, 208, 224]; CR = [240, 16]; Q2 = 32
def kv_off(kt):
    d, r = divmod(kt, 8)
    return KVS[d % 3] + (r // 4) * CH, r % 4
def k_read(kt):
    base, r = kv_off(kt); o = [I(f"ds_read_b128 {a_(AK[kt%2], 4)}, v{vK} offset:{base + 1024*r}")]
    if r == 0: o.append(I(f"ds_read_b64 {a_(AK2[(kt//4)%2], 2)}, v{vK2} offset:{base + 4096}"))
    return o
def v_read(kt):
    base, r = kv_off(kt)
    return [I(f"ds_read_b128 {a_(AV[kt%2] + 4*e, 4)}, v{vV} offset:{base + 4608 + 1216*r + 608*e}") for e in range(2)]
KR = {kt: k_read(kt) for kt in range(64)}; VR = {kt: v_read(kt) for kt in range(64)}

slots = []
for s in range(9):
    for t in range(9):
        wf = AW[(9 * s + t) % 4]
        for o in range(2):
            for k in range(2):
                d = rg(acc2(t, o), 0, 16)
                b = v(HOWN[s % 3] + 4 * o, 4) if k == 0 else a_(AHP[s % 2] + 4 * o, 4)
                slots.append([I(f"v_mfma_f32_32x32x16_bf16 {d}, {a_(wf + 4*k, 4)}, {b}, {'0' if s == 0 and k == 0 else d}")])
step = lambda s: (SLOT if (s + 1) % 3 else -2 * SLOT) & 0xffffffff
p1c, p1b = spin_check(poll1_t, f"v_cmp_gt_u32 vcc, 6, v{vTMP}")
wot = [[f"""
s_mul_i32 s62, {sN}, 18
s_mul_i32 s63, {sW}, 9
s_lshr_b32 s63, s63, 1
s_add_u32 s62, s62, s63
s_lshl_b32 s62, s62, 1
s_bfe_u32 s63, {sJ}, 0x10002
s_add_u32 s62, s62, s63
s_mul_i32 s62, s62, 576
v_lshrrev_b32 v{vTMP}, 3, v0
v_min_u32 v{vTMP}, 4, v{vTMP}
v_and_b32 v{vTW2}, 7, v0
v_lshlrev_b32 v{vTW2}, 7, v{vTW2}
v_min_u32 v{vTW2}, 572, v{vTW2}
v_mul_u32_u24 v{vTMP}, 1152, v{vTMP}
v_add_u32 v{vTMP}, v{vTMP}, v{vTW2}
""", I(f"buffer_load_dword v{vTD}, v{vTMP}, {SWO}, s62 offen{NT['wo']}")]] if OPT["touch"] else []
kvt = link([[f"""
s_lshl_b32 s62, {sN}, 2
s_add_u32 s62, s62, {sW}
s_mul_i32 s62, s62, 1280
v_mul_u32_u24 v{vTMP}, 10, v0
v_lshrrev_b32 v{vTMP}, 6, v{vTMP}
v_lshlrev_b32 v{vTMP}, 7, v{vTMP}
""", I(f"buffer_load_dword v{vTD}, v{vTMP}, {SWS}, s62 offen sc1")]]) if OPT["kvt"] else []
LATE = {}
for s in range(9):
    B = 36 * s
    vm = [last(9 + s + 1)] if s < 8 else [KVD[0][-1][1]]
    if s == 0: vm += kvst + [clr, gst]
    if s == 6: vm += [poll1]
    arr, frd, fcmp, fbr = sync(vm)
    for t in range(9):
        b = B + 4 * t
        n1 = (s, t + 1) if t < 8 else (s + 1, 0)
        if n1[0] < 9 and not (s == 0 and t < 2): slots[b + 3].append(W(lgkm=RD2[n1] + (HR[s + 1] if t == 8 else [])))
        if t < 6: slots[b] += RD2[s, t + 3][:2]; slots[b + 1] += RD2[s, t + 3][2:]
    LATE[s] = arr + ([I(f"v_add_u32 v{vR2}, {step(s)}, v{vR2}"), I(f"v_add_u32 v{vR2P}, {step(s)}, v{vR2P}")] if s < 8 else [])
    slots[B + 25] += frd
    if fcmp: slots[B + 27][1].lg += fcmp[0].lg
    LATE[s, "c"] = fcmp[1:]
    front(slots[B + 28], fbr + stamp(4))
    if s < 8:
        nx = RD2[s + 1, 0] + HR[s + 1] + RD2[s + 1, 1] + RD2[s + 1, 2]
        for k, y in enumerate(nx): slots[B + 28 + k // 2].append(y)
    else:
        slots[B + 28] += KR[0]; slots[B + 29] += VR[0]
    pos = [2, 6, 10, 14, 18, 23, 26, 35, 3 + 36]
    if s == 0: pos = [3, 6, 10, 14, 18, 23, 26, 35, 39]
    if s <= 6:
        pos = [2, 6, 10, 14, 18, 21, 24, 26, 35]
        for k, (pre, op) in enumerate(LOADS[9 + s + 2]): put(slots, B + pos[k], pre, op)
    if s >= 7:
        for k, (pre, op) in enumerate(KVD[s - 7]): put(slots, B + 4 * k + 2, pre, op)
put(slots, 36 * 1 + 3, I(f"v_lshlrev_b32 v{vTMP}, 8, v0"), sig1)
put(slots, 36 * 5 + 7, None, poll1)
for pre, op in w2touch(2): put(slots, 36 * 3 + 8, pre, op)
spread(slots, g1s[20:], 0, 22, 32)
for s in range(1, 8): spread(slots, gelu(s + 1), 36 * s - 13, 36 * s + 22, 32)
for s in range(9):
    B = 36 * s
    front(slots[B + 22], LATE[s]); slots[B + 27] += LATE[s, "c"]
slots[36 * 6 + 29] += p1c; front(slots[36 * 6 + 30], p1b)
b8 = 36 * 8
at_addr = [f"""
v_lshlrev_b32 v{vK2}, 3, v0
v_bfe_u32 v{vPS}, v0, 3, 2
v_and_b32 v{vTMP}, 3, v0
v_lshl_add_u32 v{vPS}, v{vPS}, 2, v{vTMP}
v_bfe_u32 v{vTMP}, v0, 2, 1
v_cmp_eq_u32 {sMASK}, 9, v{vPS}
v_mad_u32_u24 v{vV}, v{vTMP}, 9, v{vPS}
v_lshrrev_b32 v{vTMP}, 5, v0
v_cndmask_b32 v{vV}, v{vV}, 18, {sMASK}
v_cmp_lt_u32 {sMASK}, 9, v{vPS}
v_mad_u32_u24 v{vV}, v{vTMP}, 19, v{vV}
v_lshlrev_b32 v{vV}, 4, v{vV}
v_lshl_add_u32 v{vPS}, v{vTMP}, 9, v{vK}
v_mov_b32 v{vTMP}, {LOOB}
v_cndmask_b32 v{vV}, v{vV}, v{vTMP}, {sMASK}
""", [f"ds_read_b128 {a_(4*e, 4)}, v{vTMP}" for e in range(8)], kvt, wot, code_touch()]
spread(slots, at_addr, b8 - 13, b8 + 4, 32)
for n, (t, o) in enumerate(ORD[:15]):
    s0 = b8 + 2 * n + 5
    spread(slots, convert(t, o), s0, min(s0 + 2, b8 + 36), 32)
em(slots)
def q2(h, kt): return Q2 + 8 * h + 2 * (kt % 4)
def q2_build(h):
    b = Q2 + 8 * h
    return f"""
v_accvgpr_read_b32 v{vTMP}, a{AQR+h}
v_mov_b32 v{b+1}, 0
v_mov_b32 v{b+2}, 0
v_mov_b32 v{b+5}, 0
v_mov_b32 v{b+6}, 0
v_cndmask_b32 v{b}, 0, v{vTMP}, vcc
v_cndmask_b32 v{b+3}, 0, v{vTMP}, vcc
v_cndmask_b32 v{b+4}, v{vTMP}, 0, vcc
v_cndmask_b32 v{b+7}, v{vTMP}, 0, vcc
"""
def qk(h, kt, d, c, ka=None, k2=None):
    ka = ka or a_(AK[kt % 2], 4); k2 = k2 or a_(AK2[(kt // 4) % 2], 2)
    return (I(f"v_mfma_f32_32x32x16_bf16 {v(d,16)}, {ka}, {a_(AQ + 4*h, 4)}, {c}"),
            I(f"v_mfma_f32_32x32x8_bf16 {v(d,16)}, {k2}, {v(q2(h, kt), 2)}, {v(d,16)}"))
def maxtree(s, dst, init=None):
    o = [f"v_max3_f32 v{dst}, v{s}, v{s+1}, {('v%d' % init) if init is not None else 'v%d' % (s+1)}"]
    o += [f"v_max3_f32 v{dst}, v{s+2*e}, v{s+2*e+1}, v{dst}" for e in range(1, 8)]
    return o
def set_c(h, m, tmp):
    return [f"v_mov_b32 v{tmp}, v{m}", "s_nop 1", f"v_permlane32_swap_b32 v{m}, v{tmp}", f"v_max_f32 v{m}, v{m}, v{tmp}"] + \
           [f"v_sub_f32 v{CR[h]+e}, 0, v{m}" for e in range(16)]

m0, m1_ = qk(0, 0, SB[0], "0"), qk(1, 0, SB[1], "0")
em("v_cmp_gt_u32 vcc, 32, v0", convert(*ORD[15]), q2_build(0), W(lgkm0=True), m0[0], q2_build(1), m0[1], convert(*ORD[16]), m1_[0], convert(*ORD[17]), m1_[1], stamp(13))
vM = [vR2, vR2P]
em(maxtree(SB[0], vM[0]), set_c(0, vM[0], vTMP))
u0 = qk(0, 0, SB[0], v(CR[0], 16))
em(maxtree(SB[1], vM[1])[:2], u0[0], maxtree(SB[1], vM[1])[2:], u0[1], set_c(1, vM[1], vTMP))

slots = []
for n in range(128):
    kt, h = divmod(n, 2); s0 = SB[n % 3]
    ex = [I(f"v_exp_f32 v{s0+e}, v{s0+e}") for e in range(16)]
    m1, m2 = qk((n + 1) % 2, (n + 1) // 2, SB[(n + 1) % 3], v(CR[(n + 1) % 2], 16)) if n < 127 else (None, None)
    p2 = None
    if n > 0:
        km, hm = divmod(n - 1, 2)
        p2 = I(f"v_smfmac_f32_32x32x32_bf16 {a_(AO[hm],16)}, {a_(AV[km%2] + 4, 4)}, {v(SB[(n-1)%3] + 8, 8)}, v{vIDX}")
    p1 = I(f"v_smfmac_f32_32x32x32_bf16 {a_(AO[h],16)}, {a_(AV[kt%2], 4)}, {v(s0, 8)}, v{vIDX}")
    u = [[m1], [m2], [p2], [p1]]
    if h == 0 and kt < 63:
        u[0] += KR[kt + 1]; u[2] += VR[kt + 1]; u[3].append(W(lgkm=KR[kt + 1]))
    if h == 1 and kt < 63: u[3].append(W(lgkm=VR[kt + 1]))
    slots.append((u, ex))
events = {}
def sched(pairs, n0, n1):
    for k, pr in enumerate(pairs):
        events.setdefault(n0 + (k * (n1 - n0)) // len(pairs), []).append(pr)
for d in range(2, 8): sched(KVD[d], 16 * (d - 2) + 1, 16 * (d - 2) + 11)
pa = [0, 1, 5, 6, 9, 10, 14, 15]; pb = [p for p in range(18) if p not in pa]
PST = []
for grp in (pa, pb):
    for o in range(2):
        for k, p in enumerate(grp):
            t, pi = divmod(p, 2)
            PST.append([I(f"s_add_u32 {sOS}, {sPS1 if o else sPS0}, {4096*t}") if k == 0 or grp[k-1] // 2 != t else None,
                        I(f"buffer_store_dwordx4 {v(packed(t,o) + 4*pi, 4)}, v{vPS}, {SWS}, {sOS} offen offset:{2048*pi} sc1")])
PST = link(PST); sched(PST, 0, OPT["st_end"])
sched([[W(vm=[PST[15][1]]), flag()]], OPT["fa"], OPT["fa"] + 1)
sched(link([[[I(f"s_add_u32 {sFLG}, {sFLG}, {WS_PF2 - WS_PF}"), W(vm=[PST[-1][1]])], flag()]]), OPT["fl"], OPT["fl"] + 1)
vWOa, vWOb, vPL, vL4 = vR2, vR2P, vHR, vTW2
WOD = []
for c in range(9):
    if c == 0: pre = f"""
v_lshrrev_b32 v{vWOa}, 5, v0
v_bfe_u32 v{vWOb}, v0, 2, 3
v_mad_u32_u24 v{vWOa}, v{vWOa}, 36, v{vWOb}
v_mad_u32_u24 v{vWOa}, {sW}, 9, v{vWOa}
v_mul_u32_u24 v{vWOa}, 1152, v{vWOa}
v_and_b32 v{vL4}, 3, v0
v_lshl_add_u32 v{vWOb}, v{vL4}, 2, v{vWOa}
"""
    elif c == 8: pre = f"""
v_lshrrev_b32 v{vWOa}, 4, v0
v_lshl_add_u32 v{vWOa}, {sW}, 2, v{vWOa}
v_bfe_u32 v{vWOb}, v0, 2, 1
v_lshl_add_u32 v{vWOa}, v{vWOa}, 1, v{vWOb}
v_bfe_u32 v{vWOb}, v0, 3, 1
v_lshl_add_u32 v{vWOa}, v{vWOa}, 1, v{vWOb}
v_mad_u32_u24 v{vWOa}, v{vWOa}, 9, 8
v_mul_u32_u24 v{vWOa}, 1152, v{vWOa}
v_lshl_add_u32 v{vWOb}, v{vL4}, 2, v{vWOa}
"""
    if c in (0, 8): WOD.append([pre, I(f"v_lshl_add_u32 v{vWOa}, v{vL4}, 4, v{vWOa}")])
    if c < 8:
        so = [I(f"s_add_u32 {sOE}, {sROT}, {c}"), I(f"s_and_b32 {sOE}, {sOE}, 7"), I(f"s_mul_i32 {sOE}, {sOE}, {72*1152}"), I(f"s_add_u32 {sOQ}, {sOE}, {sCM}")]
        so2 = I(f"s_add_u32 {sOE}, {sOE}, {sCH}"); r1, r2 = sOQ, sOE
    else: so = []; so2 = None; r1, r2 = sCM, sCH
    WOD.append([so + [I(f"s_add_u32 m0, {sWWO}, {2304*c}")], I(f"buffer_load_dwordx4 v{vWOa}, {SWO}, {r1} offen{NT['wo']} lds")])
    WOD.append([[so2, I(f"s_add_u32 m0, {sWWO}, {2304*c + 1024 - 64}")], I(f"buffer_load_dwordx4 v{vWOa}, {SWO}, {r1} offen offset:64{NT['wo']} lds")])
    WOD.append([I(f"s_add_u32 m0, {sWWO}, {2304*c + 2048}"), I(f"buffer_load_dword v{vWOb}, {SWO}, {r2} offen lds")])
WOD = link(WOD); sched(WOD, OPT["wo0"], OPT["wo0"] + 58)
TACC = 68; TSEL = 88; TB2 = 172 + 0; vTA, vTB, vPP, vG1, vG2, vOL, vOLR, vO0, vO1, vO2, vOW, vOWH, vWR, vWRH = range(48, 62); OF = 100; TW = 172
poll2_t = f"buffer_load_dword v{vTB}, v{vPP}, {SWS}, {sPP} offen sc1"
PLI = [(m, c) for m in range(4) for c in range(4)] + [(m, c) for m in range(4) for c in range(4, 9)]
PLD = link([[I(f"s_add_u32 {sOL}, {sPLM if c < 8 else sPLH}, {m*4*R + (4096 if 4 <= c < 8 else 0)}") if c % 4 == 0 else None,
             I(f"buffer_load_dwordx4 {a_(APL + 4*(9*m + c), 4)}, v{vPL}, {SWS}, {sOL} offen offset:{1024*(c%4)} sc1")] for m, c in PLI])
for stg, pl in enumerate((OPT["pa"], OPT["pl"])):
    poll2 = I(poll2_t)
    pre = f"""
v_lshlrev_b32 v{vPP}, 5, v{vPA}
v_lshrrev_b32 v{vTA}, 4, v0
v_mul_u32_u24 v{vPL}, {R}, v{vTA}
v_add_u32 v{vPL}, v{vPL}, v{vPA}
""" if stg == 0 else f"s_add_u32 {sPP}, {sPP}, {WS_PF2 - WS_PF}"
    sched(link([[pre, poll2]]), pl, pl + 1)
    p2c, p2b = spin_check(poll2_t, f"v_cmp_ne_u32 vcc, 1, v{vTB}")
    sched([[[W(vm=[poll2])], p2c + [I("s_nop 0")] + p2b]], pl + 5, pl + 6)
sched(PLD[:16], OPT["pa"] + 6, OPT["pl"] + 6); sched(PLD[16:], OPT["pl"] + 6, OPT["ld_end"])
gld1 = I(f"buffer_load_dword v{vG1}, v{vTB}, {SWS}, {sG1} offen sc1"); gld2 = I(f"buffer_load_dword v{vG2}, v{vTB}, {SWS}, {sG2} offen sc1")
b2l = [I(f"buffer_load_dwordx2 {v(TB2 + 2*t, 2)}, v{vTB}, {SB2}, {sCM if t < 4 else sCH} offen offset:{32*(t%4)}") for t in range(5)]
misc = [[f"v_and_b32 v{vTB}, 31, v0\nv_lshlrev_b32 v{vTB}, 7, v{vTB}", gld1], [f"v_lshlrev_b32 v{vTB}, 3, v{vPA}", gld2],
        [f"v_lshlrev_b32 v{vTB}, 3, v{vTA}", b2l[0]]] + [[None, x] for x in b2l[1:]] + code_touch()
sched(link(misc), 96, 112)
for d in range(7):
    arr, frd, fcmp, fbr = sync([KVD[d + 1][-1][1]] + ([WOD[-1][1]] if d == 6 else []))
    n = 16 * d + 12
    if arr:
        slots[n][0][3][1].vm += arr[0].vm; slots[n][0][3].append(arr[1])
        slots[n + 1][0][1] += frd
        slots[n + 1][0][3][1].lg += fcmp[0].lg; slots[n + 1][1].append(fcmp[1])
    front(slots[n + 2][0][0], fbr)
for n in range(128):
    u, ex = slots[n]
    ev = events.get(n, [])
    freepos = [p for p in (0, 2, 3) if u[p][0] is not None]
    for k, (pre, op) in enumerate(ev):
        pre = list(flat([pre])); ops = list(flat([op]))
        pos = [3, 2, 0][len(ev) - 1 - k] if len(ev) <= 3 else 3
        prev = {3: u[2], 2: u[0], 0: None}[pos]
        simple = all(y.kind == "salu" and not isinstance(y, W) for y in pre)
        if prev is not None and simple and pre and prev[0] is not None:
            if k == 0: front(prev, pre)
            else: prev += pre
            u[pos] += ops
        else: u[pos] += pre + ops
    if n in (1, 17, 33, 37, 49, 61, 65, 73, 81, 89, 93, 113): u[0] += stamp(8)
    em(u[0], ex[0:4], u[1], ex[4:8], u[2], ex[8:12], u[3], ex[12:])
em(f"s_lshl_b32 {sOS}, {sJ}, 11", f"s_add_u32 {sOS}, {sOS}, {sOST}", f"v_smfmac_f32_32x32x32_bf16 {a_(AO[1],16)}, {a_(AV[1] + 4, 4)}, {v(SB[127%3] + 8, 8)}, v{vIDX}")
em(stamp(9))

OV = [SB[0], SB[2]]; XT = CR[0]
lim = f2u(2.0 ** 60) if not OPT["force_fb"] else f2u(0.5)
def o_read(h): return [f"v_accvgpr_read_b32 v{OV[h]+e}, a{AO[h]+e}" for e in range(10)]
def o_max(h):
    return [f"v_max3_f32 v{SB[1]+h}, |v{OV[h]}|, |v{OV[h]+1}|, |v{OV[h]+2}|"] + [f"v_max3_f32 v{SB[1]+h}, |v{OV[h]+e}|, |v{OV[h]+e+1}|, v{SB[1]+h}" for e in (3, 5, 7)]
em(f"""
s_lshl_b32 {sOL}, {sJ}, 8
s_add_u32 {sOL}, {sOL}, {sOST}
s_add_u32 {sOL}, {sOL}, 32768
""", o_read(0), f"v_rcp_f32 v{SB[1]+2}, v{OV[0]+9}", o_max(0), o_read(1), f"v_rcp_f32 v{SB[1]+3}, v{OV[1]+9}", o_max(1), f"""
v_max_f32 v{SB[1]}, v{SB[1]}, v{SB[1]+1}
v_add_f32 v{SB[1]+1}, v{OV[0]+9}, v{OV[1]+9}
v_fmac_f32 v{SB[1]+1}, {hex(f2u(2.0**-60))}, v{SB[1]}
v_cmp_ngt_f32 vcc, {hex(lim)}, v{SB[1]+1}
""", W(vm=[gld1]), f"""
s_cbranch_vccnz L_fb
L_fbdone:
v_mul_f32 v{SB[1]+2}, v{SB[1]+2}, v{vG1}
v_mul_f32 v{SB[1]+3}, v{SB[1]+3}, v{vG1}
""")
ost = []
for h in range(2):
    em([f"v_mul_f32 v{OV[h]+e}, v{OV[h]+e}, v{SB[1]+2+h}" for e in range(9)])
    em([f"v_cvt_pk_bf16_f32 v{OV[h]+12+e}, v{OV[h]+2*e}, v{OV[h]+2*e+1}" for e in range(4)])
    ost.append(I(f"buffer_store_dwordx4 {v(OV[h]+12, 4)}, v{vK}, {SWS}, {sOS} offen offset:{1024*h} sc1")); em(ost[-1])
ost.append(I(f"buffer_store_dword v{SB[1]}, v{vOL}, {SWS}, {sOL} offen sc1"))
em(f"""
v_cvt_pk_bf16_f32 v{SB[1]}, v{OV[0]+8}, v{OV[1]+8}
v_and_b32 v{vOL}, 31, v0
v_lshrrev_b32 v{vOLR}, 5, v0
v_lshlrev_b32 v{vOLR}, 2, v{vOLR}
v_lshl_add_u32 v{vOL}, v{vOL}, 3, v{vOLR}
""", ost[-1], stamp(32))
em(f"""
s_sub_u32 {sFLG}, {sFLG}, {WS_PF2 - WS_OF}
v_and_b32 v{vWR}, 16, v{vK}
v_mov_b32 v{vWRH}, 0x3f80
v_lshlrev_b32 v{vWRH}, v{vWR}, v{vWRH}
v_lshrrev_b32 v{vWR}, 5, v{vPA}
""", W(vm=b2l + [PLD[-1][1]]))
for e in range(10):
    if e < 8: em(f"v_cmp_eq_u32 vcc, {e}, v{vWR}")
    em(f"v_lshlrev_b32 v{TACC + 2*e}, 16, v{TB2 + e}", f"v_and_b32 v{TACC + 2*e + 1}, 0xffff0000, v{TB2 + e}")
    if e < 8: em(f"v_cndmask_b32 v{TSEL + e}, 0, v{vWRH}, vcc")
red = []
for t in range(5):
    for m in range(4):
        for c in ((2 * t, 2 * t + 1) if t < 4 else (8,)):
            red.append([I(f"v_mfma_f32_16x16x32_bf16 {v(TACC + 4*t, 4)}, {v(TSEL + 4*(c%2), 4)}, {a_(APL + 4*(9*m + c), 4)}, {v(TACC + 4*t, 4)}")])
tail_addr = f"""
v_mul_u32_u24 v{vWR}, {WOR}, v{vTA}
v_add_u32 v{vWR}, {WOB}, v{vWR}
v_bfe_u32 v{vTB}, v0, 2, 2
v_lshl_add_u32 v{vWRH}, v{vTB}, 4, v{vWR}
v_lshl_add_u32 v{vWR}, v{vTB}, 6, v{vWR}
v_lshl_add_u32 v{vWR}, v{vL4}, 3, v{vWR}
v_and_b32 v{vTB}, 1, v0
v_lshl_add_u32 v{vWRH}, v{vTB}, 3, v{vWRH}
s_lshl_b32 s62, {sFH}, 8
v_add_u32 v{vOL}, s62, v{vPA}
v_lshrrev_b32 v{vOLR}, 1, v{vOL}
v_lshl_add_u32 v{vOLR}, v{vTA}, 10, v{vOLR}
v_lshl_add_u32 v{vOL}, v{vTA}, 9, v{vOL}
v_sub_f32 v{vG2}, 1.0, v{vG2}
s_mul_i32 s62, {sW}, 2304
v_mul_u32_u24 v{vOW}, 9, v{vPA}
v_lshl_add_u32 v{vOW}, v{vTA}, 3, v{vOW}
v_add_u32 v{vOW}, s62, v{vOW}
s_and_b32 s63, {sJ}, 1
s_xor_b32 s63, s63, 1
s_lshl_b32 s63, s63, 7
v_lshrrev_b32 v{vTB}, 5, v0
v_lshl_add_u32 v{vOWH}, v{vTB}, 18, v{vOW}
v_add_u32 v{vOWH}, s63, v{vOWH}
s_and_b32 s63, {sJ}, 1
s_lshl_b32 s63, s63, 4
v_add_u32 v{vOW}, s63, v{vOW}
v_add_u32 v{vK2}, s62, v{vK}
"""
out_addr = []
for n in range(3):
    o = vO0 + n
    out_addr += [f"v_add_u32 v{vTMP}, {64*n}, v0", f"v_mul_u32_u24 v{o}, 7282, v{vTMP}", f"v_lshrrev_b32 v{o}, 16, v{o}", f"v_mul_u32_u24 v{o}, 1008, v{o}", f"v_lshl_add_u32 v{o}, v{vTMP}, 4, v{o}"]
out_addr += [f"v_lshl_add_u32 v{vO2}, v{vTA}, 28, v{vO2}"]
FR = [("a", 4 * k) for k in range(16)] + [("a", 208 + 4 * k) for k in range(12)] + [("a", 64 + 4 * k) for k in range(36)] + [("v", TW + 4 * (k % 20)) for k in range(26)]
def wo_read(n):
    c, r = divmod(n, 10); t, s = divmod(r, 2); o = []
    for rho in range(2):
        d = rg(FR[n], 2 * rho, 2)
        if t < 4: o.append(I(f"ds_read_b64_tr_b16 {d}, v{vWR} offset:{2304*c + 1024*(t//2) + 512*s + 256*rho + 32*(t%2)}"))
        else: o.append(I(f"ds_read_b64_tr_b16 {d}, v{vWRH} offset:{2304*c + 2048 + 128*s + 64*rho}"))
    return o
WRD = [wo_read(n) for n in range(90)]
def wo_batch(n0, n1):
    o = []
    for n in range(n0, n1):
        if n >= 6 and n % 2 == 0: o.append(W(lgkm=WRD[n - 5]))
        o += WRD[n]
    return o
spread(red, [tail_addr], 0, 18, 16)
red[18] += [W(vm=ost)] + flag() + stamp(32)
for k in range(17): red[19 + k] += wo_batch(k, k + 1)
em(red)
poll3_t = f"buffer_load_dword v{vTB}, v{vPP}, {SWS}, {sOP} offen sc1"
poll3 = I(poll3_t)
p3c, p3b = spin_check(poll3_t, f"v_cmp_ne_u32 vcc, 1, v{vTB}", sleep=0)
em(poll3, wo_batch(17, 28), [f"v_mul_f32 v{TACC+e}, v{TACC+e}, v{vG2}" for e in range(20)], out_addr, wo_batch(28, 50), stamp(33), W(vm=[poll3]), p3c, "s_nop 0", p3b, stamp(33))
OLD = []
for ks in range(16):
    pre = [f"s_add_u32 {sOL}, {sROT}, {ks//2}", f"s_and_b32 {sOL}, {sOL}, 7", f"s_lshl_b32 {sOL}, {sOL}, 12", f"s_add_u32 {sOL}, {sOL}, {sOLD}"] if ks % 2 == 0 else None
    OLD.append([pre, I(f"buffer_load_dwordx4 {v(OF + 4*ks, 4)}, v{vOL}, {SWS}, {sOL} offen offset:{2048*(ks%2)} sc1")])
for e in range(4):
    OLD.append([f"s_add_u32 {sOL}, {sOLD}, 32768" if e == 0 else None, I(f"buffer_load_dwordx2 {v(OF + 64 + 2*e, 2)}, v{vOLR}, {SWS}, {sOL} offen offset:{256*e} sc1")])
OLD = link(OLD)
em(OLD[:10], wo_batch(50, 84), stamp(32))
fin = []
for n in range(90):
    c, r = divmod(n, 10); t, s = divmod(r, 2)
    fin.append([I(f"v_mfma_f32_16x16x32_bf16 {v(TACC + 4*t, 4)}, {rg(FR[n], 0, 4)}, {v(OF + 8*c + 4*s, 4)}, {v(TACC + 4*t, 4)}")])
    if r == 9 and c < 8: fin[n].append(W(vm=[OLD[2 * c + 3][1] if c < 7 else OLD[-1][1]], lgkm0=(c in (4, 7))))
    if 64 <= n < 70: fin[n] += WRD[n + 20]
for k, p in enumerate((4, 6, 14, 16, 24, 26, 32, 34, 36, 38)): put(fin, p, *OLD[10 + k])
em(W(vm=[OLD[1][1]], lgkm=WRD[49]), stamp(32), fin)
em(stamp(32))
for t in range(5):
    em([f"v_cvt_pk_bf16_f32 v{TACC + 4*t + r}, v{TACC + 4*t + 2*r}, v{TACC + 4*t + 2*r + 1}" for r in range(2)])
    em(f"ds_write_b64 v{vOW if t < 4 else vOWH}, {v(TACC + 4*t, 2)} offset:{32*(t%4)}")
ord_ = [I(f"ds_read_b128 {v(OF + 4*n, 4)}, v{vK2} offset:{1024*n}") for n in range(3)]
em(ord_)
for n in range(3):
    em(W(lgkm=[ord_[n]]), f"buffer_store_dwordx4 {v(OF + 4*n, 4)}, v{vO0 + n}, {SOUT}, {sOUT} offen" + ["", " sc1", " nt", " sc0 sc1"][OPT["outsc"]])
if OPT["stamps"]:
    em("s_waitcnt vmcnt(0)", stamp(63), f"v_mov_b32 v1, 0")
    for k in range(nst[0]): em(f"v_writelane_b32 v1, s{84+k}, {k}")
    em(f"""
s_lshl_b32 s62, s2, 2
s_add_u32 s62, s62, {sW}
s_lshl_b32 s62, s62, 6
s_add_u32 s62, s62, {WS_ST}
v_cmp_gt_u32 vcc, 16, v0
v_lshlrev_b32 v2, 2, v0
v_mov_b32 v3, {OOB}
v_cndmask_b32 v2, v3, v2, vcc
buffer_store_dword v1, v2, {SWS}, s62 offen
""")
if "delay" in OPT:
    em(f"""
s_add_u32 s62, s{84 + OPT['delay']}, 7000
s_mov_b32 {sSP}, 100000
L_dly:
s_memrealtime s[80:81]
s_sub_u32 {sSP}, {sSP}, 1
s_cbranch_scc1 L_end
s_waitcnt lgkmcnt(0)
s_sub_u32 s63, s80, s62
s_cmp_lt_i32 s63, 0
s_cbranch_scc1 L_dly
""")
em("L_end:", "s_endpgm")

FK, FK2, FV, FM = 100, 116, 120, 152
fb = [f"""
L_fb:
v_cmp_gt_u32 vcc, {LOOB}, v{vV}
v_mov_b32 v{FM}, {OOB}
s_mov_b32 s62, {WS_KV}
v_cndmask_b32 v{vV}, v{FM}, v{vV}, vcc
v_mov_b32 v{FM}, 0xff7fffff
v_mov_b32 v{FM+1}, 0xff7fffff
L_fb1:
s_add_u32 s63, s62, 4096
"""]
fbk = [f"buffer_load_dwordx4 {v(FK + 4*r, 4)}, v{vK}, {SWS}, s62 offen offset:{1024*r} sc1" for r in range(4)] + [f"buffer_load_dwordx2 {v(FK2, 2)}, v{vK2}, {SWS}, s63 offen sc1"]
fb += fbk + ["s_waitcnt vmcnt(0)"]
for r in range(4):
    fb += [qk(0, r, SB[0], "0", v(FK + 4 * r, 4), v(FK2, 2)), qk(1, r, SB[1], "0", v(FK + 4 * r, 4), v(FK2, 2)), "s_nop 15",
           maxtree(SB[0], FM, FM), maxtree(SB[1], FM + 1, FM + 1)]
fb += [f"""
s_add_u32 s62, s62, {CH}
s_cmp_lt_u32 s62, {WS_KV + 16*CH}
s_cbranch_scc1 L_fb1
""", set_c(0, FM, FM + 2), set_c(1, FM + 1, FM + 2), [f"v_accvgpr_write_b32 a{e}, 0" for e in range(32)], f"""
s_mov_b32 s62, {WS_KV}
L_fb2:
s_add_u32 s63, s62, 4096
"""] + fbk + [f"s_add_u32 s63, s62, 4608"]
for r in range(4):
    if r == 2: fb += [f"s_add_u32 s63, s63, 2432"]
    fb += [f"buffer_load_dwordx4 {v(FV + 8*r + 4*e, 4)}, v{vV}, {SWS}, s63 offen offset:{1216*(r%2) + 608*e} sc1" for e in range(2)]
fb += ["s_waitcnt vmcnt(0)"]
for r in range(4):
    fb += [qk(0, r, SB[0], v(CR[0], 16), v(FK + 4 * r, 4), v(FK2, 2)), qk(1, r, SB[1], v(CR[1], 16), v(FK + 4 * r, 4), v(FK2, 2)), "s_nop 15"]
    for h in range(2):
        fb += [[f"v_exp_f32 v{SB[h]+e}, v{SB[h]+e}" for e in range(16)], "s_nop 1"]
        fb += [f"v_smfmac_f32_32x32x32_bf16 {a_(AO[h],16)}, {v(FV + 8*r + 4*e, 4)}, {v(SB[h] + 8*e, 8)}, v{vIDX}" for e in range(2)]
fb += [f"""
s_add_u32 s62, s62, {CH}
s_cmp_lt_u32 s62, {WS_KV + 16*CH}
s_cbranch_scc1 L_fb2
s_nop 15
""", o_read(0), o_read(1), f"v_rcp_f32 v{SB[1]+2}, v{OV[0]+9}", f"v_rcp_f32 v{SB[1]+3}, v{OV[1]+9}", "s_nop 1", "s_branch L_fbdone"]
OUTL.extend(flat(fb))

resolve_waits(P)
P2 = check(P)
O2 = check(OUTL)
if OPT.get("x_nospin"): P2 = [x for x in P2 if x.mn != "s_cbranch_vccnz"]
if OPT.get("x_nodma"): P2 = [x for x in P2 if not (getattr(x, "dma", False) and any(s in x.text for s in (SW1, SX, SWQ, SEX, SW2)))]
if OPT.get("x_nosync"): P2 = [x for x in P2 if not (x.mn in ("ds_add_u32", "s_cbranch_vccz") or x.text.startswith((f"ds_read_b32 v{vC},", "v_cmp_le_u32 vcc")))]
if OPT.get("x_nobr"): P2 = [x for x in P2 if x.mn != "s_cbranch_vccz"]
if OPT.get("x_notr"): P2 = [x for x in P2 if x.mn != "ds_read_b64_tr_b16"]
if OPT.get("x_nogelu"): P2 = [x for x in P2 if not (x.kind in ("valu", "trans") and x.wr and x.wr[0][0] == "v" and 32 <= x.wr[0][1] < 40 and "cndmask" not in x.mn and "mov" not in x.mn)]
if OPT.get("x_nost"): P2 = [x for x in P2 if not (x.mn == "buffer_store_dwordx4" and f"v{vPS}," in x.text)]
if OPT.get("x_nold"): P2 = [x for x in P2 if not (x.mn == "buffer_load_dwordx4" and x.text.split()[1].startswith("a["))]
if OPT.get("x_nowo"): P2 = [x for x in P2 if not (getattr(x, "dma", False) and SWO in x.text)]
hdr = open(os.path.join(os.path.dirname(os.path.abspath(__file__)), "..", "cdna_kernels", NAME + ".s.ref")).read().split("; Override launch")[0]
src = hdr + f"""; Generated by gen/gen.py (hand-written generator).
; @launch grid=(256,1,1) block=(256,1,1) lds={LDS_BYTES}
.amdgcn_target "amdgcn-amd-amdhsa--gfx950"
.text
.globl {NAME}_kernel
.p2align 8
.type {NAME}_kernel,@function
{NAME}_kernel:
""" + render(P2) + render(O2) + f"""L_codeend:
    s_endpgm
.section .rodata,"a"
.p2align 6
.amdhsa_kernel {NAME}_kernel
  .amdhsa_next_free_vgpr 512
  .amdhsa_next_free_sgpr 102
  .amdhsa_accum_offset 256
  .amdhsa_group_segment_fixed_size 0
  .amdhsa_kernarg_size 112
  .amdhsa_user_sgpr_count 2
  .amdhsa_user_sgpr_kernarg_segment_ptr 1
  .amdhsa_system_sgpr_workgroup_id_x 1
.end_amdhsa_kernel
"""
open(sys.argv[1], "w").write(src)
print("instrs:", len(P2), len(O2))
```

```python
import re

TRANS = ("v_exp_f32", "v_rcp_f32", "v_log_f32", "v_rsq_f32", "v_sqrt_f32")

def regs_of(tok):
    tok = tok.strip()
    neg = tok.lstrip("-")
    m = re.match(r"^abs\((.*)\)$", neg)
    if m: neg = m.group(1)
    neg = neg.strip("|")
    m = re.match(r"^([vas])\[(\d+):(\d+)\]$", neg)
    if m: return [(m.group(1), i) for i in range(int(m.group(2)), int(m.group(3)) + 1)]
    m = re.match(r"^([vas])(\d+)$", neg)
    if m: return [(m.group(1), int(m.group(2)))]
    if neg == "vcc": return [("s", "vcc")]
    if neg == "m0": return [("s", "m0")]
    if neg == "exec": return [("s", "exec")]
    return []

class I:
    def __init__(self, text, opt=False, note=None):
        self.text = text.strip()
        self.opt = opt
        self.note = note
        self.parse()
    def parse(self):
        t = self.text.split(";")[0].strip()
        self.label = t.endswith(":")
        p = t.split(None, 1)
        self.mn = p[0] if p else ""
        rest = p[1] if len(p) > 1 else ""
        ops = [o.strip() for o in rest.split(",")] if rest else []
        mods = ""
        if ops:
            l = ops[-1].split()
            ops[-1] = l[0]; mods = " ".join(l[1:])
        self.ops = ops; self.mods = mods
        mn = self.mn
        R = lambda k: regs_of(ops[k]) if k < len(ops) else []
        allr = lambda a: [r for k in range(a, len(ops)) for r in R(k)]
        self.rd = []; self.wr = []; self.kind = "other"; self.cnt = None
        self.srcc = []
        if mn.startswith("v_mfma"):
            self.kind = "mfma"; self.wr = R(0); self.rd = allr(1); self.srcc = R(3); self.ab = R(1) + R(2)
            self.passes = 8 if "32x32" in mn else 4
        elif mn.startswith("v_smfmac"):
            self.kind = "mfma"; self.wr = R(0); self.rd = allr(0); self.srcc = R(0); self.ab = R(1) + R(2) + R(3)
            self.passes = 8 if "32x32" in mn else 4
        elif mn.startswith("v_"):
            self.kind = "trans" if mn.replace("_e32", "").replace("_e64", "") in TRANS else "valu"
            self.wr = R(0); self.rd = allr(1)
            if "swap" in mn: self.wr = R(0) + R(1); self.rd = R(0) + R(1)
            if mn.startswith(("v_fmac", "v_writelane", "v_dot2c")) or "dpp" in mn or "row_" in mods: self.rd = self.rd + R(0)
            if mn.startswith(("v_add_co", "v_addc_co")): self.wr = R(0) + R(1); self.rd = allr(2)
        elif mn.startswith("ds_read"):
            self.kind = "ds"; self.wr = R(0); self.rd = R(1); self.cnt = "lgkm"
        elif mn.startswith("ds_"):
            self.kind = "ds"; self.rd = allr(0); self.cnt = "lgkm"
        elif mn.startswith(("buffer_load", "global_load")):
            self.kind = "vmem"; self.cnt = "vm"
            if " lds" in " " + mods: self.rd = allr(0) + [("s", "m0")]; self.dma = True
            else:
                self.wr = R(0); self.rd = allr(1)
                if "d16" in mn: self.rd += R(0)
        elif mn.startswith(("buffer_store", "buffer_atomic", "global_store")):
            self.kind = "vmem"; self.cnt = "vm"; self.rd = allr(0); self.store = R(0)
            if "atomic" in mn and "sc0" in mods: self.wr = R(0)
        elif mn.startswith(("s_load", "s_memtime", "s_memrealtime")):
            self.kind = "smem"; self.cnt = "smem"; self.wr = R(0); self.rd = allr(1)
        elif mn.startswith("s_"):
            self.kind = "salu"
            if mn.startswith(("s_cmp", "s_cbranch", "s_branch", "s_nop", "s_barrier", "s_waitcnt", "s_sleep", "s_endpgm", "s_setprio", "s_bitcmp")):
                self.rd = allr(0)
            else:
                self.wr = R(0); self.rd = allr(1)
    def cost(self):
        if self.kind == "mfma":
            if "smfmac" in self.mn: return 12
            if "32x32x8" in self.mn: return 4
            return 8
        if self.kind == "trans": return 8
        if self.kind == "vmem": return 24 if "store_dwordx4" in self.mn else 8
        if self.mn == "ds_write_b128": return 24
        if self.mn == "ds_write_b64": return 12
        if "swap" in self.mn: return 8
        if self.label or not self.mn or self.mn[0] in ".;": return 0
        return 4

class W(I):
    def __init__(self, vm=(), lgkm=(), vm0=False, lgkm0=False):
        self.vm = [x for x in vm if x is not None]; self.lg = [x for x in lgkm if x is not None]
        self.vm0 = vm0; self.lgkm0 = lgkm0
        super().__init__("s_waitcnt ?")

def flat(x):
    for e in x:
        if e is None: continue
        if isinstance(e, (list, tuple)): yield from flat(e)
        elif isinstance(e, str):
            for l in e.split("\n"):
                if l.strip(): yield I(l)
        else: yield e

def resolve_waits(prog):
    pos = {id(x): n for n, x in enumerate(prog)}
    for n, x in enumerate(prog):
        if not isinstance(x, W): continue
        parts = []
        for cnt, ops, zero, name, mx in (("vm", x.vm, x.vm0, "vmcnt", 63), ("lgkm", x.lg, x.lgkm0, "lgkmcnt", 15)):
            if zero: parts.append(f"{name}(0)"); continue
            if not ops: continue
            for o in ops:
                assert id(o) in pos, f"wait target not in program: {o.text}"
                assert pos[id(o)] < n, f"wait target after wait: {o.text}"
            last = max(pos[id(o)] for o in ops)
            N = sum(1 for y in prog[last + 1:n] if y.cnt == cnt and not y.opt)
            if cnt == "lgkm":
                sm = False
                for y in prog[max(0, last - 200):n]:
                    if y.cnt == "smem": sm = True
                    if y.mn == "s_waitcnt" and "lgkmcnt(0)" in y.text: sm = False
                assert not sm, "smem mixed in counted lgkm wait"
            parts.append(f"{name}({min(N, mx)})")
        assert parts
        x.text = "s_waitcnt " + " ".join(parts); x.parse()

def check(prog, fix=True, verbose=True):
    out = []; nfix = 0; errs = []
    pend = {"vm": [], "lgkm": [], "smem": []}
    hist = []
    lastw = {}; scc = None; m0used = True
    st = 0
    for x in prog:
        if x.label or not x.mn or x.mn[0] in ".;":
            out.append(x); continue
        need = 0; why = None
        rd = set(x.rd); wr = set(x.wr)
        def req(p_st, n, w):
            nonlocal need, why
            d = n - (st - p_st - 1)
            if d > need: need = d; why = w
        for p_st, p in hist[-24:]:
            pw = set(p.wr)
            if p.kind == "mfma":
                big = 12 if p.passes == 8 else 8
                if x.kind == "mfma":
                    if pw & set(x.ab): req(p_st, big, ("mfma->AB", p))
                    sc = set(x.srcc)
                    if pw & sc and not (pw == sc and p.passes == x.passes): req(p_st, big - 2, ("mfma->C overlap", p))
                    if pw & wr and not (pw == wr and p.passes == x.passes): req(p_st, big - 2, ("mfma WAW", p))
                elif x.kind in ("valu", "trans", "ds", "vmem"):
                    if pw & (rd | wr): req(p_st, big, ("mfma->use", p))
                    if x.kind in ("valu", "trans") and set(p.srcc) & wr: req(p_st, 7 if p.passes == 8 else 3, ("mfma C WAR", p))
                    if x.kind in ("ds", "vmem") and set(p.srcc) & wr: req(p_st, 7 if p.passes == 8 else 3, ("mfma C WAR(load)", p))
            if p.kind in ("valu", "trans"):
                pv = {r for r in pw if r[0] != "s"}; ps = {r for r in pw if r[0] == "s"}
                if x.kind == "mfma" and pv & rd: req(p_st, 2, ("valu->mfma", p))
                if x.kind in ("valu", "trans"):
                    if p.kind == "trans" and pv & rd: req(p_st, 1, ("trans->valu", p))
                    if ("permlane" in x.mn or "dpp" in x.mn or "row_" in x.mods) and pv & rd: req(p_st, 2, ("valu->perm/dpp", p))
                    if x.mn.startswith(("v_readfirstlane", "v_readlane")) and pv & rd: req(p_st, 1, ("valu->readlane", p))
                    if ps & rd: req(p_st, 2, ("valu sgpr->valu", p))
                if x.kind == "vmem" and ps & rd: req(p_st, 5, ("valu sgpr->vmem", p))
                if x.kind in ("ds", "vmem") and p.kind == "trans" and pv & rd: req(p_st, 1, ("trans->mem", p))
                if x.kind == "salu" and ps & rd: req(p_st, 1, ("valu sgpr->salu", p))
                if x.mn.startswith("s_cbranch_vcc") and ("s", "vcc") in ps: req(p_st, 1, ("vcc->branch", p))
            if p.kind == "vmem" and hasattr(p, "store") and len(p.store) >= 3 and set(p.store) & wr:
                req(p_st, 2, ("store WAR", p))
            if p.kind == "salu" and ("s", "m0") in pw and getattr(x, "dma", False): req(p_st, 1, ("m0->dma", p))
        if need > 0:
            nfix += 1
            if verbose: print(f"  [nop {need}] {why[0]}: {why[1].text}  ->  {x.text}")
            assert fix
            n = need
            while n > 0:
                k = min(n, 16); out.append(I(f"s_nop {k-1}")); st += k; n -= k
        if x.mn.startswith(("s_cselect", "s_cbranch_scc")):
            if not (scc and scc.mn.startswith(("s_cmp", "s_bitcmp", "s_sub_u32", "s_or_b64"))): errs.append(f"scc clobbered by {scc.text if scc else None} before {x.text}")
        if x.kind == "salu" and not x.mn.startswith(("s_mov", "s_cselect", "s_mul_i32", "s_nop", "s_waitcnt", "s_barrier", "s_cbranch", "s_branch", "s_sleep", "s_getpc", "s_setprio")): scc = x
        if getattr(x, "dma", False):
            if m0used: errs.append(f"dma without fresh m0: {x.text}")
            m0used = True
        if ("s", "m0") in x.wr:
            if not m0used: errs.append(f"m0 overwritten unused: {x.text}")
            m0used = False
        for dpi in getattr(x, "deps", []):
            if all(lastw.get(r) is not dpi for r in dpi.wr): errs.append(f"dep broken: {x.text} expects {dpi.text}, has {lastw.get(dpi.wr[0]).text if lastw.get(dpi.wr[0]) else None}")
        for r in x.wr: lastw[r] = x
        for c in pend:
            for p in pend[c]:
                if set(p.wr) & (rd | wr):
                    if c == p.cnt == x.cnt and not (set(p.wr) & rd) and c != "smem": continue
                    errs.append(f"uncovered {c}: {p.text}  ->  {x.text}")
        if x.mn == "s_waitcnt":
            m = re.search(r"vmcnt\((\d+)\)", x.text)
            if m:
                n = int(m.group(1)); q = pend["vm"]
                keep = []; c = 0
                for p in reversed(q):
                    if c >= n: break
                    keep.append(p)
                    if not p.opt: c += 1
                pend["vm"] = keep[::-1]
            m = re.search(r"lgkmcnt\((\d+)\)", x.text)
            if m:
                n = int(m.group(1))
                pend["lgkm"] = pend["lgkm"][len(pend["lgkm"]) - n:] if n and n < len(pend["lgkm"]) else ([] if n == 0 else pend["lgkm"])
                if n == 0: pend["smem"] = []
        if x.cnt: pend[x.cnt].append(x)
        if len([p for p in pend["vm"]]) > 63: errs.append(f"vmcnt overflow at {x.text}")
        out.append(x); hist.append((st, x))
        if x.mn == "s_nop": st += int(x.ops[0]) + 1
        else: st += 1
    for e in errs[:30]: print("ERROR", e)
    assert not errs, f"{len(errs)} errors"
    return out

def spread(slots, fill, s0, s1, pipe):
    fill = stream(fill)
    if not fill: return
    def used(sl):
        c = 0
        for k, y in enumerate(sl):
            if k == 1 and y.kind == "salu" and sl[0].cost() >= 8: continue
            c += y.cost()
        return c
    free = [max(pipe - used(slots[k]), 1) for k in range(s0, s1)]
    tot = sum(y.cost() for y in fill); F = sum(free)
    if tot > F:
        extra = (tot - F) / len(free); free = [f + extra for f in free]; F = sum(free)
    acc = 0.0; done = 0; n = 0
    for k in range(s0, s1):
        acc += free[k - s0] * tot / F
        while n < len(fill) and (done + fill[n].cost() / 2 <= acc or k == s1 - 1 or fill[n].mn.startswith("s_cselect")):
            slots[k].append(fill[n]); done += fill[n].cost(); n += 1

def render(prog):
    o = []
    for x in prog:
        o.append(x.text if x.label or x.text.startswith(".") else "    " + x.text)
    return "\n".join(o) + "\n"

def link(pairs):
    cur = {}
    out = []
    for pre, op in pairs:
        pre = list(flat([pre]))
        for y in pre:
            y.deps = [cur[r] for r in y.rd if r in cur]
            for r in y.wr: cur[r] = y
        if isinstance(op, I):
            op.deps = [cur[r] for r in op.rd if r in cur]
            if op.kind == "valu":
                for r in op.wr: cur[r] = op
        out.append([pre, op])
    return out

def stream(x):
    o = list(flat([x])); cur = {}
    for y in o:
        y.deps = list(getattr(y, "deps", [])) + [cur[r] for r in y.rd if r in cur]
        for r in y.wr:
            if r[0] == "s": cur[r] = y
    return o

def nfree(sl):
    cap = {8: 1, 12: 2}.get(sl[0].cost(), 0) if sl and sl[0] is not None and sl[0].kind == "mfma" else 0
    k = 1
    while k < len(sl) and sl[k].kind == "salu" and not sl[k].label: k += 1
    return cap - (k - 1), k

def spread2(slots, fill, s0, s1, pipe):
    fill = stream(fill); n = 0
    def used(sl):
        free, k = nfree(sl)
        return sum(y.cost() for y in sl) - 4 * ((k - 1) + min(free, 0))
    for k in range(s0, s1):
        sl = slots[k]
        if n < len(fill) and fill[n].kind == "salu":
            free, pos = nfree(sl)
            grp = 1
            while n + grp < len(fill) and fill[n + grp].mn.startswith("s_cselect"): grp += 1
            if free > 0 and (used(sl) + 4 * max(grp - free, 0) <= pipe or len(sl) == 1) and not any(y.label for y in sl):
                sl[pos:pos] = fill[n:n + grp]; n += grp
        while n < len(fill) and fill[n].kind != "salu" and used(sl) + fill[n].cost() <= pipe:
            sl.append(fill[n]); n += 1
    return fill[n:]
```

```python
import sys, math, struct, os
from asm import *

NAME = "gated_mix__grouped_kv_mqa__dense_activation_gelu__prompt"
OPT = dict(tlb=0, ct=1, hoist=0, nt0=0, c1=65, p2e=0, kvw=1, w2r=1, kvt=1, f1=2, ntw1=0, ntx=0, ntq=0, ntw2=0, ntwo=0, n1=6, perm=6, w2t=0, stamps=0, force_fb=0, spin=1 << 18, sync=1, touch=1, st_end=64, fa=35, fl=70, pa=58, pl=86, ld_end=124, wo0=66, rot=1, outsc=2)
for a in sys.argv[2:]:
    k, v = a.split("="); OPT[k] = int(v)

def f2u(x): return struct.unpack("<I", struct.pack("<f", x))[0]
def v(a, n=1): return f"v{a}" if n == 1 else f"v[{a}:{a+n-1}]"
def a_(a, n=1): return f"a{a}" if n == 1 else f"a[{a}:{a+n-1}]"
def rg(r, off=0, n=1): return (v if r[0] == "v" else a_)(r[1] + off, n)

WS_KV = 0; CH = 9472; DC = 2 * CH
WS_G = 0x300000
WS_PF = 0x30000
WS_OF = 0x50000
WS_PF2 = 0x70000
WS_ST = 0x90000
WS_O = 0xa0000
WS_P = 0x400000; R = 73728
OOB = 0x40000000
WR = 10784; SLOT = 4 * WR; TOP = 3 * SLOT
XB = TOP; HB = TOP; TMP = TOP + 16384; BIAS = TOP + 32768; CNT = BIAS + 1152
KVS = [0, 20480, 40960]
WOR = 20768; WOB = 61440
LDS_BYTES = 163840; LOOB = 0x40000
SX, SW1, SWQ, SEX, SW2, SWO, SWS, SOUT, SB1, SB2, SGW, SDBG = [f"s[{4+4*k}:{7+4*k}]" for k in range(12)]
sI, sJ, sW, sWB = "s56", "s57", "s58", "s59"
sCM, sCH = "s60", "s61"
sO1, sOQ, sOE, sOM, sXT, sN = "s64", "s65", "s66", "s67", "s68", "s69"
sGB, sQS, sWKV, sWWO, sSP = "s70", "s71", "s72", "s73", "s74"
sFH, sROT, sOS, sOL, sXB = "s75", "s76", "s77", "s78", "s79"
sPC = "s[0:1]"; sFLG = "s3"
sPS0, sPS1, sPLM, sPLH = "s36", "s37", "s38", "s39"
sPP, sOP, sG1, sG2 = "s44", "s45", "s46", "s47"
sOST, sOLD, sOUT, sSIG = "s52", "s53", "s54", "s55"
sMASK = "s[82:83]"
sPERM, sX0 = sOS, sOL
sW2R, sW2H, sW2S = sOQ, sOE, sXT
ORDERS = ["014235678", "125306487", "236014578", "301245687", "012734568", "123805647", "230156478", "301264587"]
if OPT["perm"] == 0: ORDERS = ["012345678"] * 8
if OPT["perm"] == 3: ORDERS = ["013245678", "124036587", "205134678", "012635478", "120743568", "201845367", "012345678", "120453687"]
if OPT["perm"] == 5: ORDERS = ["012534678", "123640578", "234701568", "340812567", "401235678", "012346785", "123407856", "234018567"]
if OPT["perm"] == 6: ORDERS = ["013245678", "120435678", "201354678", "012346578", "120345768", "201345687", "012345678", "120345678"]
if OPT["perm"] == 9: ORDERS = ["013245678", "120435678", "201354678", "012345678", "012346578", "120345768", "201345687", "120345678"]
if OPT["perm"] == 7: ORDERS = ["014235678", "123504678", "230164578", "301247568", "012345867", "123045678", "230145678", "301245678"]
if OPT["perm"] == 2: ORDERS = ["021345678", "103245678", "012435678", "102354678", "012346578", "102345768", "012345687", "102345678"]
if OPT["perm"] == 8: ORDERS = ["012345678", "123456780", "234567801", "345678012", "456780123", "567801234", "670812345", "708123456"]
for o in ORDERS: assert sorted(o) == list("012345678")
def perm_word(o): return sum(int(ch) << (4 * k) for k, ch in enumerate(o[1:]))
vR2, vW2, vHW, vHR, vGA, vC, vK, vTD, vONE, vR2P, vCA, vTW2, vIDX, vPA, vTMP = range(1, 16)
HOWN = [16, 24, 40]; GT = 32
ACCV = 48
PROJ = 48; XR = 72; WRING = 136; GATE = 168
(vW1, vWQ, vWQT, vEX, vX, vX2, vR1a, vR1b, vR1xa, vR1xb, vTID, vXR0, vXR1, vXR2, vXR3, vW1H, vG4, vW1B,
 vPW, vPWP, vPW2, vPQ, vPV, vS1, vS2, vS3, vQF, vT0, vT1, vT2, vBR, vGX) = range(191, 223)
AW = [192, 200, 240, 248]; AHP = [208, 216]; AQ = 224; AQR = 232

def hp(s, T): return ("v", 224 + 16 * s + 4 * T) if s < 2 else ("a", 16 * (s - 2) + 4 * T)
ORD = [(t, o) for t in range(9) for o in range(2)]
ATILES = ORD[6:11]
def acc2(t, o):
    n = ORD.index((t, o))
    if (t, o) in ATILES: return ("a", 112 + 16 * (n - 6))
    return ("v", ACCV + 16 * (n if n < 6 else n - 5))
def packed(t, o): return ACCV + 8 * ORD.index((t, o))

P = []; OUTL = []
def em(*x): P.extend(flat(x))
nst = [0]
def stamp(mask=1):
    if not (OPT["stamps"] & mask): return []
    k = nst[0]; nst[0] += 1
    assert k < 16
    return list(flat([f"{'s_memtime' if OPT.get('cyc') else 's_memrealtime'} s[80:81]", "s_waitcnt lgkmcnt(0)", f"s_mov_b32 s{84+k}, s80"]))

nlab = [0]
def spin_check(load_text, cmp_text, sleep=2):
    k = nlab[0]; nlab[0] += 1
    OUTL.extend(flat([f"""
L_spin{k}:
s_mov_b32 {sSP}, {OPT['spin']}
L_spin{k}_l:
{'s_sleep %d' % sleep if sleep else ''}
{load_text}
s_sub_u32 {sSP}, {sSP}, 1
s_waitcnt vmcnt(0)
s_cbranch_scc1 L_back{k}
{cmp_text}
s_nop 1
s_cbranch_vccnz L_spin{k}_l
s_branch L_back{k}
"""]))
    c = I(cmp_text); b = I(f"s_cbranch_vccnz L_spin{k}"); b.deps = [c]
    return [c], [b, I(f"L_back{k}:")]

nsync = [0]
def sync(vm):
    if not OPT["sync"]:
        return [], [], [], [W(vm=vm, lgkm0=True), I("s_barrier")]
    nsync[0] += 1; k = nlab[0]; nlab[0] += 1
    cmp_text = f"v_cmp_le_u32 vcc, {4*nsync[0]}, v{vC}"
    OUTL.extend(flat([f"""
L_spin{k}:
s_mov_b32 {sSP}, {OPT['spin'] * 16}
L_spin{k}_l:
ds_read_b32 v{vC}, v{vCA}
s_sub_u32 {sSP}, {sSP}, 1
s_waitcnt lgkmcnt(0)
s_cbranch_scc1 L_back{k}
{cmp_text}
s_nop 1
s_cbranch_vccz L_spin{k}_l
s_branch L_back{k}
"""]))
    rd = I(f"ds_read_b32 v{vC}, v{vCA}")
    c = I(cmp_text); b = I(f"s_cbranch_vccz L_spin{k}"); b.deps = [c]
    return [W(vm=vm), I(f"ds_add_u32 v{vCA}, v{vONE}")], [rd], [W(lgkm=[rd]), c], [b, I(f"L_back{k}:")]

def front(slot, items):
    slot[1:1] = list(flat([items]))
def put(slots, k, pre, op):
    pre = list(flat([pre])); free = []
    for j in range(k - 1, max(-1, k - 5), -1):
        if any(z.kind == "vmem" for z in slots[j]): break
        if not (len(slots[j]) > 1 and slots[j][1].kind == "salu"): free.insert(0, j)
    m = 0
    while m < len(pre) and pre[m].kind == "salu": m += 1
    m = min(m, len(free))
    for y, j in zip(pre[:m], free[len(free) - m:]): slots[j].insert(1, y)
    slots[k - 1] += pre[m:]
    slots[k].append(op)

def flag():
    if OPT["f1"] == 2:
        return [I(f"v_lshlrev_b32 v{vTMP}, 2, v0"), I("s_mov_b32 exec_hi, 0"), I(f"buffer_store_dword v{vONE}, v{vTMP}, {SWS}, {sFLG} offen sc1"), I("s_mov_b32 exec_hi, -1")]
    st = I(f"buffer_store_dword v{vONE}, off, {SWS}, {sFLG} sc1")
    return [I("s_mov_b64 exec, 1"), st, I("s_mov_b64 exec, -1")] if OPT["f1"] else [st]
def code_touch():
    return link([[f"""
s_lshl_b32 s62, {sN}, 2
s_add_u32 s62, s62, {sW}
s_lshl_b32 s62, s62, 9
v_lshrrev_b32 v{vTMP}, 4, v0
v_lshl_add_u32 v{vTMP}, v{vTMP}, 7, s62
v_min_u32 v{vTMP}, L_codeend-L_pc-4, v{vTMP}
""", I(f"global_load_dword v{vTD}, v{vTMP}, {sPC}")]])

SIZES = {4: 2359296, 8: 5308416, 12: 663552, 16: 20736, 36: 9216, 20: 5308416, 24: 663552, 28: 268435456, 32: 2359296, 40: 1152, 44: 1152, 48: 256}
def srd(*bs): return [f"s_mov_b32 s{b+2}, {SIZES[b]}\ns_mov_b32 s{b+3}, 0x20000" for b in bs]

if OPT["stamps"]: em(f"{'s_memtime' if OPT.get('cyc') else 's_memrealtime'} s[84:85]"); nst[0] = 1
CTL = f"global_load_dword v{vTD}, v{vTMP}, s[62:63]"
CT0 = {0: "", 1: f"""v_lshrrev_b32 v1, 7, v0
v_lshrrev_b32 v3, 3, v0
v_mul_u32_u24 v1, {sN}, v1
v_lshl_add_u32 v1, v1, 4, v3
v_lshlrev_b32 v1, 7, v1
v_min_u32 v{vTMP}, L_codeend-L_pc-4, v1
{CTL}""", 2: f"""v_lshrrev_b32 v1, 4, v0
v_lshl_add_u32 v1, {sN}, 4, v1
v_lshlrev_b32 v1, 7, v1
v_min_u32 v{vTMP}, L_codeend-L_pc-4, v1
{CTL}""", 3: f"""v_lshrrev_b32 v1, 7, v0
v_lshl_add_u32 v1, {sN}, 1, v1
v_lshlrev_b32 v{vTMP}, 7, v1
{CTL}""", 4: f"""v_lshrrev_b32 v1, 3, v0
v_lshlrev_b32 v{vTMP}, 7, v1
{CTL}"""}[OPT["ct"]]
NT = {k: (" nt" if OPT["nt" + k] else "") for k in ("w1", "x", "q", "w2", "wo")}
em(f"""
s_getpc_b64 s[62:63]
L_pc:
s_cmp_ge_u32 s2, 256
s_cbranch_scc1 L_end
s_load_dwordx4 s[52:55], s[0:1], 0
s_load_dwordx2 s[8:9], s[0:1], 48
s_lshr_b32 {sN}, s2, 3
{CT0}
s_load_dwordx4 s[16:19], s[0:1], 16
s_load_dwordx2 s[36:37], s[0:1], 56
v_lshrrev_b32 v1, 6, v0
v_mov_b32 v{vTID}, v0
v_readfirstlane_b32 {sW}, v1
v_and_b32 v0, 63, v0
s_and_b32 {sI}, s2, 1
s_lshl_b32 {sI}, {sI}, 3
s_and_b32 s60, {sN}, 7
s_add_u32 {sI}, {sI}, s60
s_bfe_u32 {sJ}, s2, 0x20001
s_lshl_b32 {sJ}, {sJ}, 2
s_lshr_b32 {sROT}, s2, 6
s_add_u32 {sJ}, {sJ}, {sROT}
s_add_u32 {sPERM}, {sI}, {sJ}
s_and_b32 {sPERM}, {sPERM}, 7
s_lshl_b32 s60, {sPERM}, 2
s_lshr_b32 {sOE}, {hex(sum(int(o[0]) << (4*k) for k, o in enumerate(ORDERS)))}, s60
s_and_b32 {sOE}, {sOE}, 15
s_lshl_b32 {sX0}, {sOE}, 7
s_add_u32 {sXT}, {sX0}, {16*1152}
s_lshl_b32 {sXB}, {sW}, 12
s_lshl_b32 s60, {sI}, 2
s_add_u32 s60, s60, {sW}
s_mul_i32 s60, s60, {32*1152}
v_lshrrev_b32 v2, 4, v0
v_lshrrev_b32 v1, 3, v0
v_mul_u32_u24 v5, 1152, v1
v_add_u32 v1, 2, v2
v_xor_b32 v1, v1, v0
v_and_b32 v1, 7, v1
v_add_u32 v5, s60, v5
v_lshl_add_u32 v{vX}, v1, 4, v5
""", srd(4))
kwait = ["s_waitcnt lgkmcnt(0)", "s_mov_b64 s[4:5], s[52:53]", stamp(16)]
def p1_loads(c):
    sl = (c % 3) * SLOT; o = []; w = []
    for n in range(4):
        o.append([[I(f"s_add_u32 m0, {sXB}, {XB + 16384*(c%2) + 1024*n}")],
                  I(f"buffer_load_dwordx4 v{vX2 if n%2 else vX}, {SX}, {sXT if n >= 2 else sX0} offen{NT['x']} lds")])
    o = [o[0], o[2], o[1], o[3]]
    for n in range(8):
        w.append([[I(f"s_add_u32 m0, {sWB}, {sl + 1024*n - 128*(n//2)}")], I(f"buffer_load_dwordx4 v{vW1B if n%2 else vW1}, {SW1}, {sO1} offen offset:{128*(n//2)}{NT['w1']} lds")])
    w.append([[I(f"s_add_u32 m0, {sWB}, {sl + 8192}")], I(f"buffer_load_dwordx4 v{vW1H}, {SW1}, {sO1} offen{NT['w1']} lds")])
    w.append([[I(f"s_add_u32 m0, {sWB}, {sl + 9216}")], I(f"buffer_load_dwordx4 v{vWQ}, {SWQ}, {sOQ} offen{NT['q']} lds")])
    w.append([[I(f"s_add_u32 m0, {sWB}, {sl + 10240}")], I(f"buffer_load_dword v{vWQT}, {SWQ}, {sOQ} offen{NT['q']} lds")])
    w.append([[I(f"s_add_u32 m0, {sWB}, {sl + 10496}")], I(f"buffer_load_dword v{vEX}, {SEX}, {sOE} offen lds")])
    o.append([None, I(f"buffer_load_dword v{GATE + 4 + c%2}, v{vG4}, {SGW}, {sX0} offen")])
    if c == 0: return o[:4] + w + o[4:]
    so = [I(f"s_bfe_u32 {sOE}, {sPERM}, {hex(0x40000 + 4*(c-1))}"), I(f"s_mul_i32 {sO1}, {sOE}, {64*9216}"), I(f"s_mul_i32 {sOQ}, {sOE}, {64*1152}"),
          I(f"s_lshl_b32 {sX0}, {sOE}, 7"), I(f"s_add_u32 {sXT}, {sX0}, {16*1152}"), I(f"s_mul_i32 {sOE}, {sOE}, {64*36}")]
    if c == 1:
        o[0][0] = so + o[0][0]; return o + w
    w[0][0] = so[:2] + w[0][0]
    for k in range(4): w[1 + k][0] = [so[2 + k]] + w[1 + k][0]
    return w + o
def p2_loads(s):
    sl = (s % 3) * SLOT
    first = [I(f"s_add_u32 {sW2S}, {sWB}, {sl}"), I(f"s_add_u32 m0, {sW2S}, {8192 - 1024}")]
    if s > 0: first.append(I(f"v_add_u32 v{vW2}, {36864 if s < 8 else sW2H}, v{vW2}"))
    o = [[first, I(f"buffer_load_dwordx4 v{vW2}, {SW2}, 0 offen offset:1024{NT['w2']} lds")]]
    for n in range(8):
        o.append([[I(f"s_xor_b32 {sO1}, {sW2R}, {128*n}"), I(f"s_lshl3_add_u32 m0, {sO1}, {sW2S}")], I(f"buffer_load_dwordx4 v{vW2}, {SW2}, {sO1} offen{NT['w2']} lds")])
    return o
w2pre = link([[[f"s_and_b32 {sW2H}, {sJ}, 1", f"s_mul_i32 {sW2H}, {sW2H}, {-9*36864}"], I(f"s_add_u32 {sW2H}, {sW2H}, 36864")],
              [f"s_and_b32 {sW2R}, {sN}, {7 if OPT['w2r'] else 0}", I(f"s_lshl_b32 {sW2R}, {sW2R}, 7")]])
LOADS = [link(p1_loads(c)) for c in range(9)] + [link(p2_loads(s)) for s in range(9)]
def last(c): return LOADS[c][-1][1]

def weave(pairs, fill):
    fill = stream(fill); n = len(pairs); k = 0
    for q, (pre, op) in enumerate(pairs):
        e = (q + 1) * len(fill) // n
        while e < len(fill) and fill[e].mn.startswith("s_cselect"): e += 1
        e = max(e, k)
        em(pre, fill[k:e], op); k = e

bl = I(f"buffer_load_dword v7, v6, {SB1}, s61 offen")
psel = [f"s_mov_b32 s60, {hex(perm_word(ORDERS[0]))}"]
for k in range(1, 8): psel += [f"s_cmp_eq_u32 {sPERM}, {k}", f"s_cselect_b32 {'s60' if k < 7 else sPERM}, {hex(perm_word(ORDERS[k]))}, s60"]
L0 = LOADS[0]
if OPT["nt0"]:
    for pre, op in L0[:15]:
        if " nt" not in op.text and ((OPT["nt0"] & 1 and SW1 in op.text) or (OPT["nt0"] & 2 and SX in op.text) or (OPT["nt0"] & 4 and SWQ in op.text)): op.text = op.text.replace(" lds", " nt lds")
c_x2 = [f"v_xor_b32 v1, 4, v1", f"v_lshl_add_u32 v{vX2}, v1, 4, v5", f"v_add_u32 v{vX2}, {8*1152}, v{vX2}", f"v_bfe_u32 v1, v0, 2, 3"]
c_sl = """
s_load_dwordx2 s[20:21], s[0:1], 64
s_load_dwordx2 s[24:25], s[0:1], 32
s_load_dwordx2 s[28:29], s[0:1], 104
s_load_dwordx2 s[32:33], s[0:1], 88
s_load_dwordx2 s[40:41], s[0:1], 72
s_load_dwordx2 s[44:45], s[0:1], 80
s_load_dwordx2 s[48:49], s[0:1], 96
"""
c_w1 = [srd(8), f"""
s_mul_i32 {sWB}, {sW}, {WR}
s_mul_i32 {sO1}, {sOE}, {64*9216}
v_lshl_add_u32 v1, {sW}, 4, v1
v_mul_u32_u24 v1, 9216, v1
v_and_b32 v4, 3, v0
v_lshl_add_u32 v1, v4, 4, v1
v_lshrrev_b32 v5, 5, v0
v_lshl_add_u32 v1, v5, 6, v1
s_mul_i32 s61, {sJ}, 576
s_and_b32 {sFH}, {sJ}, 1
s_lshl_b32 s60, {sFH}, 6
s_add_u32 s60, s60, s61
v_add_u32 v{vW1}, s60, v1
v_add_u32 v{vW1B}, {8*9216}, v{vW1}
"""]
c_rest = [f"""
v_lshrrev_b32 v1, 2, v{vTID}
s_xor_b32 s60, {sFH}, 1
s_lshl_b32 s60, s60, 9
s_add_u32 s60, s60, s61
v_mul_u32_u24 v5, 9216, v1
v_lshl_add_u32 v5, v4, 4, v5
v_add_u32 v{vW1H}, s60, v5
s_mul_i32 {sOQ}, {sOE}, {64*1152}
s_mul_i32 {sOE}, {sOE}, {64*36}
s_mul_i32 s60, {sJ}, 72
v_mul_u32_u24 v5, 1152, v1
v_add_u32 v5, s60, v5
v_lshl_add_u32 v{vWQ}, v4, 4, v5
v_lshl_add_u32 v{vWQT}, v4, 2, v5
v_add_u32 v{vWQT}, 56, v{vWQT}
s_lshl_b32 s60, {sFH}, 4
s_cmp_ge_u32 {sJ}, 4
s_cselect_b32 s60, 20, s60
v_mul_u32_u24 v5, 36, v1
v_lshl_add_u32 v5, v4, 2, v5
v_add_u32 v{vEX}, s60, v5
v_min_u32 v6, 143, v{vTID}
v_lshlrev_b32 v6, 2, v6
""", srd(12, 36)]
c_ptr = f"""
s_mov_b64 s[12:13], s[54:55]
s_lshr_b32 s60, 0x2c, {sJ}
s_bitcmp1_b32 s60, 0
s_cselect_b32 s16, s18, s16
s_cselect_b32 s17, s19, s17
s_cmp_lt_u32 {sJ}, 6
s_cselect_b32 s18, {SIZES[16]}, 0
s_mov_b32 s19, 0x20000
"""
if OPT["tlb"]:
    em(c_sl, f"v_mov_b32 v10, 0", f"v_lshlrev_b32 v11, 20, v0", f"v_min_u32 v12, {SIZES[4]-4}, v11", f"v_min_u32 v13, {SIZES[8]-4}, v11"); c_sl = ""
    tl = lambda off, p: f"global_load_dword v{vTD}, v{off}, s[{p}:{p+1}]"
    kwait += [tl(13, 8), tl(12, 52), tl(10, 54), tl(10, 16), tl(10, 18), tl(10, 36), tl(10, 44)]
    if OPT["tlb"] >= 2: kwait += [tl(13, 20), tl(10, 24), tl(10, 40), tl(12, 32), tl(10, 48), f"v_add_u32 v11, 0x2f000, v11", tl(11, 28)]
if OPT["hoist"] == 0:
    em(kwait); weave(L0[:4], c_x2); em(c_w1); weave(L0[4:12], [c_rest, c_ptr, c_sl])
elif OPT["hoist"] == 1:
    em(c_x2, c_w1, kwait); weave(L0[:12], [c_rest, c_ptr, c_sl])
else:
    em(c_x2, c_w1, c_rest, kwait); weave(L0[:12], [c_sl, c_ptr])
em(stamp(16), bl)
weave(L0[12:16], [psel, "s_waitcnt lgkmcnt(0)", f"s_mov_b64 {sPC}, s[62:63]", srd(44), f"v_and_b32 v{vG4}, 31, v0", f"v_lshlrev_b32 v{vG4}, 2, v{vG4}", f"v_lshlrev_b32 v3, 5, v0"])
em(L0[16][1], f"buffer_load_dword v{vTD}, v3, {SGW}, 0 offen", code_touch() if OPT["ct"] in (0, 3, 4) else [])
weave(LOADS[1][:OPT['n1']], [f"""
s_mul_i32 s63, {sFH}, -128
s_and_b32 {sFH}, {sW}, 1
v_bfe_u32 v5, v0, 2, 2
v_mul_u32_u24 v{vR1a}, {WR}, v2
v_lshl_add_u32 v{vR1xa}, v5, 4, v{vR1a}
v_lshl_add_u32 v{vR1a}, v5, 6, v{vR1a}
v_lshl_add_u32 v{vR1a}, v4, 3, v{vR1a}
s_lshl_b32 s62, {sFH}, 5
v_add_u32 v{vR1a}, s62, v{vR1a}
v_add_u32 v{vR1b}, {2*SLOT}, v{vR1a}
v_lshrrev_b32 v5, 1, v4
v_and_b32 v1, 1, v4
v_lshl_add_u32 v{vR1xa}, v5, 8, v{vR1xa}
v_lshl_add_u32 v{vR1xa}, v1, 3, v{vR1xa}
v_add_u32 v{vR1xa}, 10240, v{vR1xa}
v_add_u32 v{vR1xb}, {2*SLOT}, v{vR1xa}
v_bfe_u32 v5, v0, 1, 3
v_add_u32 v5, 2, v5
v_lshlrev_b32 v1, 1, v2
v_xor_b32 v5, v5, v1
v_and_b32 v5, 7, v5
v_and_b32 v1, 15, v0
v_lshlrev_b32 v1, 7, v1
v_lshl_add_u32 v5, v5, 4, v1
s_add_u32 s62, {sXB}, {XB}
v_add_u32 v{vXR0}, s62, v5
v_xor_b32 v{vXR1}, 16, v{vXR0}
s_xor_b32 s62, {sXB}, 4096
s_add_u32 s62, s62, {XB}
v_add_u32 v{vXR2}, s62, v5
v_xor_b32 v{vXR3}, 16, v{vXR2}
s_lshl_b32 s62, {sFH}, 6
s_add_u32 s62, s62, {BIAS}
v_lshl_add_u32 v{vBR}, v2, 4, s62
v_lshl_add_u32 v5, v6, 1, s63
v_add_u32 v1, 1152, v5
v_min_u32 v5, v5, v1
v_add_u32 v5, {BIAS}, v5
v_mov_b32 v{vCA}, {LOOB}
s_mov_b32 s62, {CNT}
v_writelane_b32 v{vCA}, s62, 0
v_mov_b32 v{vONE}, 0
s_lshl_b32 s62, {sJ}, 2
s_add_u32 s62, s62, {sW}
s_add_u32 s63, s62, 2
s_and_b32 s63, s63, 7
s_lshl_b32 s63, s63, 4
v_lshlrev_b32 v1, 2, v0
v_xor_b32 v1, s63, v1
s_lshl_b32 s62, s62, 8
s_add_u32 s62, s62, {XB}
v_add_u32 v{vGX}, s62, v1
v_mov_b32 v{GATE + 9}, 0
""", srd(20, 24, 28, 32, 40, 48)])
em(stamp(16))
em(f"ds_write_b32 v{vCA}, v{vONE}", W(vm=[bl]), f"""
v_lshlrev_b32 v6, 16, v7
v_and_b32 v7, 0xffff0000, v7
v_mov_b32 v{vONE}, 1
ds_write_b64 v5, v[6:7]
""", W(vm=[last(0)], lgkm0=True), stamp(16), "s_barrier", stamp(19))

def p1_reads(c, t):
    sl = c % 3; ring = WRING + 8 * ((11 * c + t) % 4); o = []
    for s in range(2):
        for rho in range(2):
            if t > 0:
                ad = vR1a if sl < 2 else vR1b
                n = 9 if t == 1 else t - 2
                off = (sl % 2) * SLOT + 256 * rho + (1024 * n + 512 * s if n >= 8 else 2048 * (n // 2) + 1024 * s + 512 * (n % 2))
            else:
                ad = vR1xa if sl < 2 else vR1xb
                off = (sl % 2) * SLOT + 128 * s + 64 * rho
            o.append(I(f"ds_read_b64_tr_b16 {v(ring + 4*s + 2*rho, 2)}, v{ad} offset:{off}"))
    return o
def p1_acc(t, T): return hp(t - 2, T) if t >= 2 else ("v", PROJ + (16 if t == 0 else 0) + 4 * T)
RD = {(c, t): p1_reads(c, t) for c in range(9) for t in range(11)}
def xreg(c, T, s): return v(XR + 32*(c%2) + 8*T + 4*s, 4)
XRD = {c: [I(f"ds_read_b128 {xreg(c, T, s)}, v{vXR0 + 2*(T//2) + s} offset:{16384*(c%2) + 2048*(T%2)}") for T in (1, 0, 3, 2) for s in range(2)] for c in range(9)}
BRD = [I(f"ds_read_b128 {rg(hp(s, 0), 0, 4)}, v{vBR} offset:{128*s}") for s in range(9)]
def p2_reads(s, t):
    return [I(f"ds_read_b64_tr_b16 {a_(AW[(9*s+t)%4] + 4*k + 2*rho, 2)}, v{vR2P if k else vR2} offset:{512*t + 256*rho}") for k in range(2) for rho in range(2)]
RD2 = {(s, t): p2_reads(s, t) for s in range(9) for t in range(9)}

g_acc = GATE + 9; g0, g1, g2, g3 = GATE + 10, GATE + 11, GATE + 12, GATE + 13
GXR = {c: I(f"ds_read_b32 v{GATE + 6}, v{vGX} offset:{16384*(c%2)}") for c in range(9)}
def gate_math(c):
    xx = GATE + 6; ww = GATE + 4 + c % 2
    return [f"v_lshlrev_b32 v{g0}, 16, v{xx}", f"v_lshlrev_b32 v{g1}, 16, v{ww}", f"v_and_b32 v{g2}, 0xffff0000, v{xx}", f"v_and_b32 v{g3}, 0xffff0000, v{ww}",
            f"v_fmac_f32 v{g_acc}, v{g0}, v{g1}", f"v_fmac_f32 v{g_acc}, v{g2}, v{g3}"]
GA = -2 * math.sqrt(2 / math.pi) * math.log2(math.e)
fill_a = f"""
s_lshl_b32 s62, {sI}, 4
s_add_u32 s62, s62, {sJ}
s_lshl_b32 s63, s62, 10
s_add_u32 s63, s63, {WS_G}
v_lshl_add_u32 v{vT2}, v{vTID}, 2, s63
s_lshl_b32 s62, s62, 2
s_add_u32 s62, s62, {sW}
s_lshl_b32 s62, s62, 7
s_add_u32 {sFLG}, s62, {WS_PF}
s_lshl_b32 s62, {sI}, 13
s_add_u32 s62, s62, {WS_PF}
s_lshr_b32 s63, {sJ}, 1
s_mul_i32 s63, s63, {WS_OF - WS_PF}
s_add_u32 s62, s62, s63
s_and_b32 s63, {sJ}, 1
s_lshl_b32 s63, s63, 12
s_add_u32 s62, s62, s63
s_cmp_lt_u32 {sJ}, 6
s_cselect_b32 s62, s62, {OOB}
v_lshl_add_u32 v{GATE + 7}, v{vTID}, 4, s62
v_mov_b32 v{vGA}, {hex(f2u(GA))}
v_mov_b32 v{vIDX}, 0xdddddddd
v_lshlrev_b32 v{vK}, 4, v0
v_and_b32 v{vPA}, 0xf0, v{vK}
s_mov_b32 {sGB}, {hex(f2u(GA * 0.044715))}
v_mov_b32 v{GATE}, 0
v_mov_b32 v{GATE+1}, 0
v_mov_b32 v{GATE+2}, 0
v_mov_b32 v{GATE+3}, 0
"""
clr = I(f"buffer_store_dwordx4 {v(GATE, 4)}, v{GATE + 7}, {SWS}, 0 offen sc1")
dpp = [f"v_add_f32_dpp v{g_acc}, v{g_acc}, v{g_acc} row_shr:{k} row_mask:0xf bank_mask:0xf bound_ctrl:1" for k in (1, 2, 4, 8)] + \
      [f"v_add_f32_dpp v{g_acc}, v{g_acc}, v{g_acc} row_bcast:15 row_mask:0xa bank_mask:0xf"]
gate_fin = [f"v_mul_f32 v{g_acc}, {hex(f2u(-math.log2(math.e)))}, v{g_acc}", f"v_exp_f32 v{g_acc}, v{g_acc}", f"v_add_f32 v{g_acc}, 1.0, v{g_acc}", f"v_rcp_f32 v{g_acc}, v{g_acc}"]
gst = I(f"buffer_store_dword v{g_acc}, v{vT2}, {SWS}, 0 offen sc1")
fill_p2 = f"""
s_mul_i32 s62, {sJ}, 288
s_lshl_b32 s63, {sW}, 3
s_add_u32 s62, s62, s63
s_and_b32 s63, {sJ}, 1
s_lshl_b32 s63, s63, 5
s_add_u32 s62, s62, s63
v_bfe_u32 v{vS1}, v0, 2, 3
v_add_u32 v{vS1}, s62, v{vS1}
v_mul_u32_u24 v{vW2}, 1152, v{vS1}
v_lshrrev_b32 v{vS2}, 5, v0
v_lshl_add_u32 v{vW2}, v{vS2}, 6, v{vW2}
v_and_b32 v{vS1}, 3, v0
v_lshl_add_u32 v{vW2}, v{vS1}, 4, v{vW2}
v_mul_u32_u24 v{vR2}, {WR}, v{vS2}
v_bfe_u32 v{vS1}, v0, 2, 2
v_lshl_add_u32 v{vR2}, v{vS1}, 6, v{vR2}
v_bfe_u32 v{vS1}, v0, 4, 1
v_lshl_add_u32 v{vR2}, v{vS1}, 5, v{vR2}
v_and_b32 v{vS1}, 1, v0
v_lshl_add_u32 v{vR2}, v{vS1}, 4, v{vR2}
v_bfe_u32 v{vS1}, v0, 1, 1
v_lshl_add_u32 v{vR2}, v{vS1}, 3, v{vR2}
s_mul_i32 s62, {sFH}, {4608 - 2*WR}
s_add_u32 s62, s62, {2*WR}
v_add_u32 v{vR2P}, s62, v{vR2}
s_mul_i32 s62, {sFH}, {4608 + 2*WR}
v_add_u32 v{vR2}, s62, v{vR2}
s_lshl_b32 s62, {sW}, 11
s_add_u32 s63, s62, {HB}
v_lshl_add_u32 v{vHW}, v0, 4, s63
s_xor_b32 s62, s62, 2048
s_add_u32 s63, s62, {HB}
v_lshl_add_u32 v{vHR}, v0, 4, s63
"""
fill_pe = f"""
s_mov_b32 {sQS}, {hex(f2u(math.log2(math.e)/math.sqrt(18)))}
s_mul_i32 s62, {sW}, 3072
s_add_u32 s62, s62, {TMP}
v_and_b32 v{vT0}, 15, v0
v_lshrrev_b32 v{vT1}, 4, v0
v_mul_u32_u24 v{vPW2}, 96, v{vT0}
v_add_u32 v{vPW2}, s62, v{vPW2}
v_lshl_add_u32 v{vPW}, v{vT1}, 3, v{vPW2}
s_lshl_b32 s63, {sFH}, 5
v_add_u32 v{vPW}, s63, v{vPW}
s_mul_i32 s63, {sFH}, -6144
s_add_u32 s63, s63, 3072
v_add_u32 v{vPWP}, s63, v{vPW}
v_cmp_gt_u32 {sMASK}, 32, v0
v_xor_b32 v{vS3}, 1, v{vT1}
v_mov_b32 v{vQF}, {sQS}
v_cndmask_b32 v{vS3}, v{vT1}, v{vS3}, {sMASK}
v_cndmask_b32 v{vQF}, 1.0, v{vQF}, {sMASK}
v_lshl_add_u32 v{vPW2}, v{vS3}, 3, v{vPW2}
v_and_b32 v{vS3}, 31, v0
v_mul_u32_u24 v{vPQ}, 96, v{vS3}
v_add_u32 v{vPQ}, s62, v{vPQ}
v_bfe_u32 v{vPV}, v0, 2, 2
v_lshl_add_u32 v{vPV}, v{vT1}, 3, v{vPV}
v_mul_u32_u24 v{vPV}, 96, v{vPV}
v_and_b32 v{vS1}, 3, v0
v_lshl_add_u32 v{vPV}, v{vS1}, 3, v{vPV}
v_add_u32 v{vPV}, s62, v{vPV}
s_mul_i32 s60, {sI}, {CH}
s_lshl_b32 s62, {sW}, 10
s_lshl_b32 s63, {sJ}, 9
s_add_u32 s62, s62, s63
s_add_u32 s62, s62, s60
s_cmp_lt_u32 {sJ}, 2
s_cselect_b32 s62, s62, {OOB}
v_lshl_add_u32 v{vS1}, v{vS3}, 4, s62
s_lshr_b32 s62, {sW}, 1
s_lshl_b32 s62, s62, 8
s_lshl_b32 s63, {sFH}, 2
s_add_u32 s62, s62, s63
s_add_u32 s62, s62, s60
s_add_u32 s62, s62, 4096
s_cmp_eq_u32 {sJ}, 4
s_cselect_b32 s62, s62, {OOB}
v_lshl_add_u32 v{vS2}, v{vS3}, 3, s62
v_mov_b32 v{vBR}, {OOB}
v_cndmask_b32 v{vS1}, v{vBR}, v{vS1}, {sMASK}
v_cndmask_b32 v{vS2}, v{vBR}, v{vS2}, {sMASK}
"""
fill_pe2 = f"""
s_mul_i32 s62, {sW}, 1216
s_add_u32 s62, s62, s60
s_add_u32 s62, s62, {4608 - 128}
s_cmp_eq_u32 {sJ}, 3
s_cselect_b32 s63, 128, 0
s_cmp_eq_u32 {sJ}, 5
s_cselect_b32 s63, 160, s63
s_cselect_b32 s61, 13, 8
s_cselect_b32 s60, 13, 99
s_add_u32 s62, s62, s63
s_lshr_b32 s63, 0x2c, {sJ}
s_bitcmp1_b32 s63, 0
s_cselect_b32 s61, s61, 99
v_mul_u32_u24 v{vS3}, 304, v{vT1}
v_lshl_add_u32 v{vS3}, v{vT0}, 4, v{vS3}
v_add_u32 v{vS3}, s62, v{vS3}
v_cmp_eq_u32 {sMASK}, s60, v{vT0}
v_add_u32 v{vT1}, 48, v{vS3}
v_cmp_le_u32 vcc, s61, v{vT0}
v_cndmask_b32 v{vS3}, v{vS3}, v{vT1}, {sMASK}
v_mov_b32 v{vT0}, 0x3f803f80
v_cndmask_b32 v{vS3}, v{vBR}, v{vS3}, vcc
v_lshrrev_b32 v{vT1}, 5, v0
v_lshl_add_u32 v{vT1}, v{vT1}, 4, v{vPQ}
"""
fill_s = f"""
s_lshl_b32 {sWKV}, {sW}, 10
s_mul_i32 {sWWO}, {sW}, {WOR}
s_add_u32 {sWWO}, {sWWO}, {WOB}
s_lshl_b32 {sSIG}, {sI}, 4
s_cmp_lt_u32 {sJ}, 6
s_cselect_b32 {sSIG}, {sSIG}, 0x1000
s_cmp_eq_u32 {sW}, 0
s_cselect_b32 {sSIG}, {sSIG}, 0x1000
s_lshr_b32 s62, {sW}, 1
s_lshl_b32 s63, {sI}, 1
s_add_u32 s62, s62, s63
s_lshl_b32 s62, s62, 4
s_add_u32 s62, s62, {sJ}
s_mul_i32 s62, s62, {R}
s_mul_i32 {sPS0}, {sFH}, {36864 + 512}
s_add_u32 {sPS0}, {sPS0}, s62
s_add_u32 {sPS0}, {sPS0}, {WS_P}
s_xor_b32 {sPS1}, {sPS0}, 512
s_lshr_b32 s62, {sJ}, 3
s_add_u32 s63, s63, s62
s_mul_i32 {sPLM}, s63, {16*R}
s_lshl_b32 {sOUT}, s63, 2
s_add_u32 {sOUT}, {sOUT}, {sW}
s_lshl_b32 {sG2}, {sOUT}, 11
s_add_u32 {sG2}, {sG2}, {WS_G + 124}
s_lshr_b32 {sOLD}, {sOUT}, 1
s_mul_i32 {sOLD}, {sOLD}, 36864
s_add_u32 {sOLD}, {sOLD}, {WS_O}
s_mul_i32 {sOUT}, {sOUT}, {16*1152}
s_lshl_b32 {sOP}, {sI}, 5
s_add_u32 {sOP}, {sOP}, s62
s_lshl_b32 {sOP}, {sOP}, 1
s_bfe_u32 s62, {sJ}, 0x10002
s_add_u32 {sPP}, {sOP}, s62
s_lshl_b32 {sPP}, {sPP}, 7
s_add_u32 {sPP}, {sPP}, {WS_PF}
s_lshr_b32 s62, {sW}, 1
s_add_u32 {sOP}, {sOP}, s62
s_lshl_b32 {sOP}, {sOP}, 7
s_add_u32 {sOP}, {sOP}, {WS_OF}
s_lshl_b32 s62, {sI}, 2
s_add_u32 s62, s62, {sW}
s_lshl_b32 {sG1}, s62, 12
s_add_u32 {sG1}, {sG1}, {WS_G + 124}
s_mul_i32 {sOST}, s62, 36864
s_add_u32 {sOST}, {sOST}, {WS_O}
"""
fill_s2 = f"""
s_and_b32 s62, {sJ}, 7
s_mul_i32 s62, s62, 144
s_add_u32 {sOUT}, {sOUT}, s62
s_and_b32 s63, {sJ}, 1
s_lshl_b32 {sCM}, s63, 4
s_add_u32 {sCM}, {sCM}, s62
s_xor_b32 s63, s63, 1
s_lshl_b32 {sCH}, s63, 7
s_add_u32 {sCH}, {sCH}, s62
s_lshl_b32 s62, {sW}, 8
s_add_u32 {sPLM}, {sPLM}, s62
s_add_u32 {sPLM}, {sPLM}, {WS_P}
s_lshl_b32 s62, {sCH}, 6
s_add_u32 {sPLH}, {sPLM}, s62
s_lshl_b32 s62, {sCM}, 6
s_add_u32 {sPLM}, {sPLM}, s62
s_lshl_b32 {sROT}, {sROT}, {1 if OPT['rot'] else 3}
"""

def gelu(s):
    o = []; H = HOWN[s % 3]
    for T in range(4):
        src = hp(s, T); t = [GT + 4 + e for e in range(4)]
        if src[0] == "a":
            u = [GT + e for e in range(4)]
            o += [f"v_accvgpr_read_b32 v{u[e]}, a{src[1]+e}" for e in range(4)]
        else: u = [src[1] + e for e in range(4)]
        o += [f"v_mul_f32 v{t[e]}, v{u[e]}, v{u[e]}" for e in range(4)]
        o += [f"v_fma_f32 v{t[e]}, v{t[e]}, {sGB}, v{vGA}" for e in range(4)]
        o += [f"v_mul_f32 v{t[e]}, v{t[e]}, v{u[e]}" for e in range(4)]
        o += [f"v_exp_f32 v{t[e]}, v{t[e]}" for e in range(4)]
        o += [f"v_add_f32 v{t[e]}, 1.0, v{t[e]}" for e in range(4)]
        o += [f"v_rcp_f32 v{t[e]}, v{t[e]}" for e in range(4)]
        o += [f"v_mul_f32 v{t[e]}, v{t[e]}, v{u[e]}" for e in range(4)]
        o += [f"v_cvt_pk_bf16_f32 v{H + 2*T + r}, v{t[2*r]}, v{t[2*r+1]}" for r in range(2)]
        if T % 2:
            b = H + 4 * (T // 2)
            o.append(("late", [f"v_permlane16_swap_b32 v{b+r}, v{b+2+r}" for r in range(2)] +
                      [f"ds_write_b128 v{vHW}, {v(b, 4)} offset:{8192*(s%2) + 1024*(1 - T//2)}"]))
    res = []; pend = None; cnt = 0
    for x in o:
        if isinstance(x, tuple): pend = x[1]; cnt = 0; continue
        res.append(x)
        if pend:
            cnt += 1
            if cnt == 2: res += pend; pend = None
    if pend: res += ["s_nop 0"] + pend
    return list(flat(res))
HR = {s: [I(f"ds_read_b128 {a_(AHP[s%2] + 4*o, 4)}, v{vHR} offset:{8192*(s%2) + 1024*o}") for o in range(2)] for s in range(9)}

D1 = GATE; D2 = GATE + 16
def pe_tile(b, fac, ad, off):
    return [f"v_mul_f32 v{b+e}, {fac}, v{b+e}" for e in range(4)] + [f"v_cvt_pk_bf16_f32 v{b+r}, v{b+2*r}, v{b+2*r+1}" for r in range(2)] + \
           [f"ds_write_b64 v{ad}, {v(b, 2)} offset:{off}"]
kvrd = [I(f"ds_read_b128 {v(D1,4)}, v{vPQ} offset:80"), I(f"ds_read_b64_tr_b16 {v(D2,2)}, v{vPV} offset:64"), I(f"ds_read_b64_tr_b16 {v(D2+2,2)}, v{vPV} offset:{64 + 4*96}")]
kvst = [I(f"buffer_store_dwordx4 {v(D1,4)}, v{vS1}, {SWS}, 0 offen sc1"), I(f"buffer_store_dword v{D1+3}, v{vS2}, {SWS}, 0 offen sc1"),
        I(f"buffer_store_dwordx4 {v(D2,4)}, v{vS3}, {SWS}, 0 offen sc1")]
pe = [pe_tile(PROJ + 16 + 4*T, f"v{vQF}", vPW2, 64 + 1536*T) for T in (1, 0)] + [kvrd] + \
     [pe_tile(PROJ + 4*T, sQS, vPW if T < 2 else vPWP, 1536*(T%2)) for T in (3, 2, 1, 0)] + \
     [W(lgkm=kvrd), [f"v_cndmask_b32 v{D2+e}, v{D2+e}, v{vT0}, {sMASK}" for e in range(4)], kvst]
g0s = gelu(0)

em(XRD[0][:4], RD[0, 0], XRD[0][4:], W(lgkm=XRD[0][:2]), RD[0, 1], W(lgkm=RD[0, 0]), RD[0, 2], BRD[0], GXR[0])
TS = [0] + [4 + 8 * t for t in range(11)]
queue = stream([fill_a, fill_p2, fill_pe, fill_pe2]); queue2 = stream([fill_s, fill_s2])
for c in range(9):
    slots = []
    for t in range(11):
        ring = WRING + 8 * ((11 * c + t) % 4)
        for T in ((3, 2, 1, 0) if t else (1, 0)):
            for s in range(2):
                d = p1_acc(t, T); cc = rg(d, 0, 4)
                if c == 0 and s == 0: cc = rg(p1_acc(t, 0), 0, 4) if t >= 2 else "0"
                slots.append([I(f"v_mfma_f32_16x16x32_bf16 {rg(d,0,4)}, {v(ring + 4*s, 4)}, {xreg(c, T, s)}, {cc}")])
    arr, frd, fcmp, fbr = sync([last(min(c + 1, 8))])
    for t in range(11):
        b = TS[t]; e = TS[t + 1] - 1
        if t < 10:
            tg = RD[c, t + 1] + (XRD[c] + ([GXR[c]] if c else []) if t == 0 else []) + ([BRD[t - 1]] if c == 0 and t >= 1 else []) + ([GXR[0]] if (c, t) == (0, 1) else [])
            slots[e].append(W(lgkm=tg))
        if t < 8:
            for m in range(4): slots[b + (m if t in (0, 7) else 2 * m)].append(RD[c, t + 3][m])
            if c == 0: slots[b + (3 if t in (0, 7) else 7)].append(BRD[t + 1])
    slots[56] += arr; slots[61] += frd
    front(slots[66], fcmp[:1]); slots[66] += fcmp[1:]
    front(slots[68], fbr + stamp(2 if c > 3 else 18))
    if c < 8:
        nx = XRD[c + 1][:4] + RD[c + 1, 0] + [GXR[c + 1]] + XRD[c + 1][4:] + RD[c + 1, 1] + RD[c + 1, 2]
        pos = [68, 68, 70, 70, 72, 72, 74, 74, 76, 76, 77, 77, 78, 78, 79, 79, 80, 81, 81, 82, 82]
        slots[83].append(W(lgkm=XRD[c + 1][:4] + RD[c + 1, 0]))
        for y, k in zip(nx, pos): slots[k].append(y)
    pairs = list(LOADS[c + 2]); late = []
    if c < 7: pairs, late = pairs[:12], pairs[12:]
    if c == 0: pairs = LOADS[1][OPT['n1']:] + pairs
    if c == 3: pairs = pairs + [[None, clr]]
    if c == 7: pairs = w2pre + pairs + code_touch()
    cand = [k for k in range(5, 66 if c == 0 else OPT["c1"] + 1, 2) if k not in (53, 55, 61)]
    if c == 7: cand = cand[:20]
    for k, (pre, op) in enumerate(pairs): put(slots, cand[(k * len(cand)) // len(pairs)], pre, op)
    for (pre, op), k in zip(late, (69, 71, 73, 75, 76)): put(slots, k, pre, op)
    assert not spread2(slots, gate_math(c), 12 if c == 0 else 4, 30, 16)
    if 1 <= c < 7: queue = spread2(slots, queue, 2, 65, 16)
    if c == 2: assert all("v%d," % (GATE + 3) not in y.text for y in queue)
    if c == 6: assert not queue, [y.text for y in queue[:6]] + [len(queue)]
    if c == 7: queue2 = spread2(slots, queue2, 44, 84, 16)
    if c == 8:
        assert not spread2(slots, queue2, 0, 84, 16)
        k0 = 2 + max(k for k in range(84) if any(y.mn == "v_fmac_f32" for y in slots[k]))
        for k, y in enumerate(dpp + gate_fin): slots[k0 + 2 * k].append(I(y))
        slots[k0 + 19].append(gst)
        spread(slots, pe, 14, 56, 16)
        spread(slots, g0s[:44], 56, 84, 16)
    em(slots)
em(stamp())
qrd = f"""
ds_read_b128 {a_(AQ,4)}, v{vT1}
ds_read_b128 {a_(AQ+4,4)}, v{vT1} offset:36
ds_read_b32 a{AQR}, v{vPQ} offset:32
ds_read_b32 a{AQR+1}, v{vPQ} offset:68
"""
g1s = gelu(1)
em(g0s[44:], W(vm=[last(9)], lgkm0=True), "s_barrier", RD2[0, 0], HR[0], RD2[0, 1], g1s[:12], RD2[0, 2], g1s[12:24], W(lgkm=HR[0]), stamp(7))

def kv_dma(d):
    return link([[[I(f"s_add_u32 {sOM}, {sWKV}, {WS_KV + d*DC + 4096*n}"), I(f"s_add_u32 m0, {sWKV}, {KVS[d%3] + 4096*n}")],
                  I(f"buffer_load_dwordx4 v{vK}, {SWS}, {sOM} offen sc1 lds")] for n in range(5)])
KVD = {d: kv_dma(d) for d in range(8)}
sig1 = I(f"buffer_atomic_add v{vONE}, v{vTMP}, {SDBG}, {sSIG} offen sc1")
poll1_t = f"buffer_load_dword v{vTMP}, v{vPA}, {SDBG}, 0 offen sc1"
poll1 = I(poll1_t)
def convert(t, o):
    src = acc2(t, o); d = packed(t, o); r = []
    if src[0] == "v":
        return [f"v_cvt_pk_bf16_f32 v{d+e}, v{src[1]+2*e}, v{src[1]+2*e+1}" for e in range(8)]
    for h in range(2):
        r += [f"v_accvgpr_read_b32 v{GT+e}, a{src[1]+8*h+e}" for e in range(8)]
        r += [f"v_cvt_pk_bf16_f32 v{d+4*h+e}, v{GT+2*e}, v{GT+2*e+1}" for e in range(4)]
    return r

vK2, vV, vPS = vW2, vHW, vGA
AK = [32, 36]; AK2 = [40, 42]; AV = [44, 52]; AO = [0, 16]; APL = 64
SB = [192, 208, 224]; CR = [240, 16]; Q2 = 32
def kv_off(kt):
    d, r = divmod(kt, 8)
    return KVS[d % 3] + (r // 4) * CH, r % 4
def k_read(kt):
    base, r = kv_off(kt); o = [I(f"ds_read_b128 {a_(AK[kt%2], 4)}, v{vK} offset:{base + 1024*r}")]
    if r == 0: o.append(I(f"ds_read_b64 {a_(AK2[(kt//4)%2], 2)}, v{vK2} offset:{base + 4096}"))
    return o
def v_read(kt):
    base, r = kv_off(kt)
    return [I(f"ds_read_b128 {a_(AV[kt%2] + 4*e, 4)}, v{vV} offset:{base + 4608 + 1216*r + 608*e}") for e in range(2)]
KR = {kt: k_read(kt) for kt in range(64)}; VR = {kt: v_read(kt) for kt in range(64)}

slots = []
for s in range(9):
    for t in range(9):
        wf = AW[(9 * s + t) % 4]
        for o in range(2):
            for k in range(2):
                d = rg(acc2(t, o), 0, 16)
                b = v(HOWN[s % 3] + 4 * o, 4) if k == 0 else a_(AHP[s % 2] + 4 * o, 4)
                slots.append([I(f"v_mfma_f32_32x32x16_bf16 {d}, {a_(wf + 4*k, 4)}, {b}, {'0' if s == 0 and k == 0 else d}")])
step = lambda s: (SLOT if (s + 1) % 3 else -2 * SLOT) & 0xffffffff
p1c, p1b = spin_check(poll1_t, f"v_cmp_gt_u32 vcc, 6, v{vTMP}")
wot = [[f"""
s_mul_i32 s62, {sN}, 18
s_mul_i32 s63, {sW}, 9
s_lshr_b32 s63, s63, 1
s_add_u32 s62, s62, s63
s_lshl_b32 s62, s62, 1
s_bfe_u32 s63, {sJ}, 0x10002
s_add_u32 s62, s62, s63
s_mul_i32 s62, s62, 576
v_lshrrev_b32 v{vTMP}, 3, v0
v_min_u32 v{vTMP}, 4, v{vTMP}
v_and_b32 v{vTW2}, 7, v0
v_lshlrev_b32 v{vTW2}, 7, v{vTW2}
v_min_u32 v{vTW2}, 572, v{vTW2}
v_mul_u32_u24 v{vTMP}, 1152, v{vTMP}
v_add_u32 v{vTMP}, v{vTMP}, v{vTW2}
""", I(f"buffer_load_dword v{vTD}, v{vTMP}, {SWO}, s62 offen{NT['wo']}")]] if OPT["touch"] else []
kvt = link([[f"""
s_lshl_b32 s62, {sN}, 2
s_add_u32 s62, s62, {sW}
s_mul_i32 s62, s62, 1280
v_mul_u32_u24 v{vTMP}, 10, v0
v_lshrrev_b32 v{vTMP}, 6, v{vTMP}
v_lshlrev_b32 v{vTMP}, 7, v{vTMP}
""", I(f"buffer_load_dword v{vTD}, v{vTMP}, {SWS}, s62 offen sc1")]]) if OPT["kvt"] else []
LATE = {}
for s in range(9):
    B = 36 * s
    vm = [last(9 + s + 1)] if s < 8 else [KVD[0][-1][1]]
    if s == OPT['kvw']: vm += kvst + [clr, gst]
    if s == 6: vm += [poll1]
    arr, frd, fcmp, fbr = sync(vm)
    for t in range(9):
        b = B + 4 * t
        n1 = (s, t + 1) if t < 8 else (s + 1, 0)
        if n1[0] < 9: slots[b + 3].append(W(lgkm=RD2[n1] + (HR[s + 1] if t == 8 else [])))
        if t < 6: slots[b] += RD2[s, t + 3][:2]; slots[b + 1] += RD2[s, t + 3][2:]
    LATE[s] = arr + ([I(f"v_add_u32 v{vR2}, {step(s)}, v{vR2}"), I(f"v_add_u32 v{vR2P}, {step(s)}, v{vR2P}")] if s < 8 else [])
    slots[B + 25][1:1] = frd
    if fcmp: slots[B + 27][1].lg += fcmp[0].lg
    LATE[s, "c"] = fcmp[1:]
    front(slots[B + 28], fbr + stamp(4))
    if s < 8:
        nx = RD2[s + 1, 0] + HR[s + 1] + RD2[s + 1, 1] + RD2[s + 1, 2]
        for k, y in enumerate(nx): slots[B + 28 + k // 2].append(y)
    else:
        slots[B + 28] += KR[0]; slots[B + 29] += VR[0]
    if s <= 6:
        pos = [2, 6, 10, 14, 18, 21, 24, 26, 35]
        if OPT["p2e"]: pos = [-5, -2, 2, 4, 7, 10, 12, 15, 18] if s else [2, 4, 6, 8, 10, 12, 14, 16, 18]
        for k, (pre, op) in enumerate(LOADS[9 + s + 2]): put(slots, B + pos[k], pre, op)
    if s >= 7:
        for k, (pre, op) in enumerate(KVD[s - 7]): put(slots, B + 4 * k + 2, pre, op)
put(slots, 36 * OPT['kvw'] + 29, I(f"v_lshlrev_b32 v{vTMP}, 8, v0"), sig1)
put(slots, 36 * 5 + 20, None, poll1)
for k, y in enumerate(flat([qrd])): slots[[2, 6, 10, 11][k]].append(y)
spread(slots, g1s[24:], 0, 22, 32)
for s in range(1, 8): spread(slots, gelu(s + 1), 36 * s - 13, 36 * s + 22, 32)
for s in range(9):
    B = 36 * s
    front(slots[B + 22], LATE[s]); slots[B + 27][2:2] = LATE[s, "c"]
front(slots[36 * 6 + 29], p1c); front(slots[36 * 6 + 30], p1b)
b8 = 36 * 8
at_addr = [f"""
v_lshlrev_b32 v{vK2}, 3, v0
v_bfe_u32 v{vPS}, v0, 3, 2
v_and_b32 v{vTMP}, 3, v0
v_lshl_add_u32 v{vPS}, v{vPS}, 2, v{vTMP}
v_bfe_u32 v{vTMP}, v0, 2, 1
v_cmp_eq_u32 {sMASK}, 9, v{vPS}
v_mad_u32_u24 v{vV}, v{vTMP}, 9, v{vPS}
v_lshrrev_b32 v{vTMP}, 5, v0
v_cndmask_b32 v{vV}, v{vV}, 18, {sMASK}
v_cmp_lt_u32 {sMASK}, 9, v{vPS}
v_mad_u32_u24 v{vV}, v{vTMP}, 19, v{vV}
v_lshlrev_b32 v{vV}, 4, v{vV}
v_lshl_add_u32 v{vPS}, v{vTMP}, 9, v{vK}
v_mov_b32 v{vTMP}, {LOOB}
v_cndmask_b32 v{vV}, v{vV}, v{vTMP}, {sMASK}
""", [f"ds_read_b128 {a_(4*e, 4)}, v{vTMP}" for e in range(8)], kvt, wot, code_touch()]
spread(slots, at_addr, b8 - 13, b8 + 4, 32)
for n, (t, o) in enumerate(ORD[:15]):
    s0 = b8 + 2 * n + 5
    spread(slots, convert(t, o), s0, min(s0 + 2, b8 + 36), 32)
em(slots)
def q2(h, kt): return Q2 + 8 * h + 2 * (kt % 4)
def q2_build(h):
    b = Q2 + 8 * h
    return f"""
v_accvgpr_read_b32 v{vTMP}, a{AQR+h}
v_mov_b32 v{b+1}, 0
v_mov_b32 v{b+2}, 0
v_mov_b32 v{b+5}, 0
v_mov_b32 v{b+6}, 0
v_cndmask_b32 v{b}, 0, v{vTMP}, vcc
v_cndmask_b32 v{b+3}, 0, v{vTMP}, vcc
v_cndmask_b32 v{b+4}, v{vTMP}, 0, vcc
v_cndmask_b32 v{b+7}, v{vTMP}, 0, vcc
"""
def qk(h, kt, d, c, ka=None, k2=None):
    ka = ka or a_(AK[kt % 2], 4); k2 = k2 or a_(AK2[(kt // 4) % 2], 2)
    return (I(f"v_mfma_f32_32x32x16_bf16 {v(d,16)}, {ka}, {a_(AQ + 4*h, 4)}, {c}"),
            I(f"v_mfma_f32_32x32x8_bf16 {v(d,16)}, {k2}, {v(q2(h, kt), 2)}, {v(d,16)}"))
def maxtree(s, dst, init=None):
    o = [f"v_max3_f32 v{dst}, v{s}, v{s+1}, {('v%d' % init) if init is not None else 'v%d' % (s+1)}"]
    o += [f"v_max3_f32 v{dst}, v{s+2*e}, v{s+2*e+1}, v{dst}" for e in range(1, 8)]
    return o
def set_c(h, m, tmp):
    return [f"v_mov_b32 v{tmp}, v{m}", "s_nop 1", f"v_permlane32_swap_b32 v{m}, v{tmp}", f"v_max_f32 v{m}, v{m}, v{tmp}"] + \
           [f"v_sub_f32 v{CR[h]+e}, 0, v{m}" for e in range(16)]

m0, m1_ = qk(0, 0, SB[0], "0"), qk(1, 0, SB[1], "0")
em("v_cmp_gt_u32 vcc, 32, v0", convert(*ORD[15]), q2_build(0), W(lgkm0=True), m0[0], q2_build(1), m0[1], convert(*ORD[16]), m1_[0], convert(*ORD[17]), m1_[1], stamp(13))
vM = [vR2, vR2P]
em(maxtree(SB[0], vM[0]), set_c(0, vM[0], vTMP))
u0 = qk(0, 0, SB[0], v(CR[0], 16))
em(maxtree(SB[1], vM[1])[:2], u0[0], maxtree(SB[1], vM[1])[2:], u0[1], set_c(1, vM[1], vTMP))

slots = []
for n in range(128):
    kt, h = divmod(n, 2); s0 = SB[n % 3]
    ex = [I(f"v_exp_f32 v{s0+e}, v{s0+e}") for e in range(16)]
    m1, m2 = qk((n + 1) % 2, (n + 1) // 2, SB[(n + 1) % 3], v(CR[(n + 1) % 2], 16)) if n < 127 else (None, None)
    p2 = None
    if n > 0:
        km, hm = divmod(n - 1, 2)
        p2 = I(f"v_smfmac_f32_32x32x32_bf16 {a_(AO[hm],16)}, {a_(AV[km%2] + 4, 4)}, {v(SB[(n-1)%3] + 8, 8)}, v{vIDX}")
    p1 = I(f"v_smfmac_f32_32x32x32_bf16 {a_(AO[h],16)}, {a_(AV[kt%2], 4)}, {v(s0, 8)}, v{vIDX}")
    u = [[m1], [m2], [p2], [p1]]
    if h == 0 and kt < 63:
        u[0] += KR[kt + 1]; u[2] += VR[kt + 1]; u[3].append(W(lgkm=KR[kt + 1]))
    if h == 1 and kt < 63: u[3].append(W(lgkm=VR[kt + 1]))
    slots.append((u, ex))
events = {}
def sched(pairs, n0, n1):
    for k, pr in enumerate(pairs):
        events.setdefault(n0 + (k * (n1 - n0)) // len(pairs), []).append(pr)
for d in range(2, 8): sched(KVD[d], 16 * (d - 2) + 1, 16 * (d - 2) + 11)
pa = [0, 1, 5, 6, 9, 10, 14, 15]; pb = [p for p in range(18) if p not in pa]
PST = []
for grp in (pa, pb):
    for o in range(2):
        for k, p in enumerate(grp):
            t, pi = divmod(p, 2)
            PST.append([I(f"s_add_u32 {sOS}, {sPS1 if o else sPS0}, {4096*t}") if k == 0 or grp[k-1] // 2 != t else None,
                        I(f"buffer_store_dwordx4 {v(packed(t,o) + 4*pi, 4)}, v{vPS}, {SWS}, {sOS} offen offset:{2048*pi} sc1")])
PST = link(PST); sched(PST, 0, OPT["st_end"])
sched([[W(vm=[PST[15][1]]), flag()]], OPT["fa"], OPT["fa"] + 1)
sched(link([[[I(f"s_add_u32 {sFLG}, {sFLG}, {WS_PF2 - WS_PF}"), W(vm=[PST[-1][1]])], flag()]]), OPT["fl"], OPT["fl"] + 1)
vWOa, vWOb, vPL, vL4 = vR2, vR2P, vHR, vTW2
WOD = []
for c in range(9):
    if c == 0: pre = f"""
v_lshrrev_b32 v{vWOa}, 5, v0
v_bfe_u32 v{vWOb}, v0, 2, 3
v_mad_u32_u24 v{vWOa}, v{vWOa}, 36, v{vWOb}
v_mad_u32_u24 v{vWOa}, {sW}, 9, v{vWOa}
v_mul_u32_u24 v{vWOa}, 1152, v{vWOa}
v_and_b32 v{vL4}, 3, v0
v_lshl_add_u32 v{vWOb}, v{vL4}, 2, v{vWOa}
"""
    elif c == 8: pre = f"""
v_lshrrev_b32 v{vWOa}, 4, v0
v_lshl_add_u32 v{vWOa}, {sW}, 2, v{vWOa}
v_bfe_u32 v{vWOb}, v0, 2, 1
v_lshl_add_u32 v{vWOa}, v{vWOa}, 1, v{vWOb}
v_bfe_u32 v{vWOb}, v0, 3, 1
v_lshl_add_u32 v{vWOa}, v{vWOa}, 1, v{vWOb}
v_mad_u32_u24 v{vWOa}, v{vWOa}, 9, 8
v_mul_u32_u24 v{vWOa}, 1152, v{vWOa}
v_lshl_add_u32 v{vWOb}, v{vL4}, 2, v{vWOa}
"""
    if c in (0, 8): WOD.append([pre, I(f"v_lshl_add_u32 v{vWOa}, v{vL4}, 4, v{vWOa}")])
    if c < 8:
        so = [I(f"s_add_u32 {sOE}, {sROT}, {c}"), I(f"s_and_b32 {sOE}, {sOE}, 7"), I(f"s_mul_i32 {sOE}, {sOE}, {72*1152}"), I(f"s_add_u32 {sOQ}, {sOE}, {sCM}")]
        so2 = I(f"s_add_u32 {sOE}, {sOE}, {sCH}"); r1, r2 = sOQ, sOE
    else: so = []; so2 = None; r1, r2 = sCM, sCH
    WOD.append([so + [I(f"s_add_u32 m0, {sWWO}, {2304*c}")], I(f"buffer_load_dwordx4 v{vWOa}, {SWO}, {r1} offen{NT['wo']} lds")])
    WOD.append([[so2, I(f"s_add_u32 m0, {sWWO}, {2304*c + 1024 - 64}")], I(f"buffer_load_dwordx4 v{vWOa}, {SWO}, {r1} offen offset:64{NT['wo']} lds")])
    WOD.append([I(f"s_add_u32 m0, {sWWO}, {2304*c + 2048}"), I(f"buffer_load_dword v{vWOb}, {SWO}, {r2} offen lds")])
WOD = link(WOD); sched(WOD, OPT["wo0"], OPT["wo0"] + 48)
TACC = 68; TSEL = 88; TB2 = 172 + 0; vTA, vTB, vPP, vG1, vG2, vOL, vOLR, vO0, vO1, vO2, vOW, vOWH, vWR, vWRH = range(48, 62); OF = 100; TW = 172
poll2_t = f"buffer_load_dword v{vTB}, v{vPP}, {SWS}, {sPP} offen sc1"
PLI = [(m, c) for m in range(4) for c in range(4)] + [(m, c) for m in range(4) for c in range(4, 9)]
PLD = link([[I(f"s_add_u32 {sOL}, {sPLM if c < 8 else sPLH}, {m*4*R + (4096 if 4 <= c < 8 else 0)}") if c % 4 == 0 else None,
             I(f"buffer_load_dwordx4 {a_(APL + 4*(9*m + c), 4)}, v{vPL}, {SWS}, {sOL} offen offset:{1024*(c%4)} sc1")] for m, c in PLI])
for stg, pl in enumerate((OPT["pa"], OPT["pl"])):
    poll2 = I(poll2_t)
    pre = f"""
v_lshlrev_b32 v{vPP}, 5, v{vPA}
v_lshrrev_b32 v{vTA}, 4, v0
v_mul_u32_u24 v{vPL}, {R}, v{vTA}
v_add_u32 v{vPL}, v{vPL}, v{vPA}
""" if stg == 0 else f"s_add_u32 {sPP}, {sPP}, {WS_PF2 - WS_PF}"
    sched(link([[pre, poll2]]), pl, pl + 1)
    p2c, p2b = spin_check(poll2_t, f"v_cmp_ne_u32 vcc, 1, v{vTB}")
    sched([[[W(vm=[poll2])], p2c], [None, p2b]], pl + 5, pl + 6)
sched(PLD[:16], OPT["pa"] + 6, OPT["pl"] + 6); sched(PLD[16:], OPT["pl"] + 6, OPT["ld_end"])
gld1 = I(f"buffer_load_dword v{vG1}, v{vTB}, {SWS}, {sG1} offen sc1"); gld2 = I(f"buffer_load_dword v{vG2}, v{vTB}, {SWS}, {sG2} offen sc1")
b2l = [I(f"buffer_load_dwordx2 {v(TB2 + 2*t, 2)}, v{vTB}, {SB2}, {sCM if t < 4 else sCH} offen offset:{32*(t%4)}") for t in range(5)]
misc = [[f"v_and_b32 v{vTB}, 31, v0\nv_lshlrev_b32 v{vTB}, 7, v{vTB}", gld1], [f"v_lshlrev_b32 v{vTB}, 3, v{vPA}", gld2],
        [f"v_lshlrev_b32 v{vTB}, 3, v{vTA}", b2l[0]]] + [[None, x] for x in b2l[1:]] + code_touch()
sched(link(misc), 96, 112)
for d in range(7):
    arr, frd, fcmp, fbr = sync([KVD[d + 1][-1][1]])
    n = 16 * d + 12
    if arr:
        slots[n][0][3][1].vm += arr[0].vm; slots[n][0][3].append(arr[1])
        slots[n + 1][0][1] += frd
        slots[n + 1][0][3][1].lg += fcmp[0].lg; slots[n + 1][0][3].append(fcmp[1])
    front(slots[n + 2][0][0], fbr)
arr, frd, fcmp, fbr = sync([WOD[-1][1]])
if arr:
    slots[124][0][3][1].vm += arr[0].vm; slots[124][0][3].append(arr[1])
    slots[126][0][2] += frd; slots[127][0][2] += fcmp
front(slots[127][0][3], fbr)
pos = [slots[n][0][p] for n in range(128) for p in (0, 2, 3)]
cur = 0; prevop = -1
for n in range(128):
    for pre, op in events.get(n, []):
        pre = list(flat([pre])); ops = list(flat([op]))
        k = max(cur, 3 * n + (2 if n % 2 == 0 else 0))
        while k % 6 in (0, 1) and k % 6 != OPT.get("evp", 9): k += 1
        m = 0
        while m < len(pre) and pre[m].kind == "salu" and not isinstance(pre[m], W): m += 1
        free = []
        for j in range(k - 1, max(prevop, k - 7), -1):
            if pos[j][0] is not None and not any(y.label for y in pos[j]): free = [j] * max(nfree(pos[j])[0], 0) + free
        m = min(m, len(free))
        for y, j in zip(pre[:m], free[len(free) - m:]): pos[j].insert(nfree(pos[j])[1], y)
        rest = pre[m:]
        if rest and all(y.kind == "salu" for y in rest) and not any(y.label for y in pos[k]): pos[k][nfree(pos[k])[1]:nfree(pos[k])[1]] = rest; rest = []
        pos[k] += rest + ops
        prevop = k; cur = k + (2 if "store_dwordx4" in ops[0].mn else 1)
for n in range(128):
    u, ex = slots[n]
    if n in (1, 17, 33, 37, 49, 61, 65, 73, 81, 89, 93, 113): u[0] += stamp(8)
    em(u[0], ex[0:4], u[1], ex[4:8], u[2], ex[8:12], u[3], ex[12:])
em(f"s_lshl_b32 {sOS}, {sJ}, 11", f"s_add_u32 {sOS}, {sOS}, {sOST}", f"v_smfmac_f32_32x32x32_bf16 {a_(AO[1],16)}, {a_(AV[1] + 4, 4)}, {v(SB[127%3] + 8, 8)}, v{vIDX}")
em(stamp(9))

OV = [SB[0], SB[2]]; XT = CR[0]
lim = f2u(2.0 ** 60) if not OPT["force_fb"] else f2u(0.5)
def o_read(h): return [f"v_accvgpr_read_b32 v{OV[h]+e}, a{AO[h]+e}" for e in range(10)]
def o_max(h):
    return [f"v_max3_f32 v{SB[1]+h}, |v{OV[h]}|, |v{OV[h]+1}|, |v{OV[h]+2}|"] + [f"v_max3_f32 v{SB[1]+h}, |v{OV[h]+e}|, |v{OV[h]+e+1}|, v{SB[1]+h}" for e in (3, 5, 7)]
em(f"""
s_lshl_b32 {sOL}, {sJ}, 8
s_add_u32 {sOL}, {sOL}, {sOST}
s_add_u32 {sOL}, {sOL}, 32768
""", o_read(0), f"v_rcp_f32 v{SB[1]+2}, v{OV[0]+9}", o_max(0), o_read(1), f"v_rcp_f32 v{SB[1]+3}, v{OV[1]+9}", o_max(1), f"""
v_max_f32 v{SB[1]}, v{SB[1]}, v{SB[1]+1}
v_add_f32 v{SB[1]+1}, v{OV[0]+9}, v{OV[1]+9}
v_fmac_f32 v{SB[1]+1}, {hex(f2u(2.0**-60))}, v{SB[1]}
v_cmp_ngt_f32 vcc, {hex(lim)}, v{SB[1]+1}
""", W(vm=[gld1]), f"""
s_cbranch_vccnz L_fb
L_fbdone:
v_mul_f32 v{SB[1]+2}, v{SB[1]+2}, v{vG1}
v_mul_f32 v{SB[1]+3}, v{SB[1]+3}, v{vG1}
""")
ost = []
for h in range(2):
    em([f"v_mul_f32 v{OV[h]+e}, v{OV[h]+e}, v{SB[1]+2+h}" for e in range(9)])
    em([f"v_cvt_pk_bf16_f32 v{OV[h]+12+e}, v{OV[h]+2*e}, v{OV[h]+2*e+1}" for e in range(4)])
    ost.append(I(f"buffer_store_dwordx4 {v(OV[h]+12, 4)}, v{vK}, {SWS}, {sOS} offen offset:{1024*h} sc1")); em(ost[-1])
ost.append(I(f"buffer_store_dword v{SB[1]}, v{vOL}, {SWS}, {sOL} offen sc1"))
em(f"""
v_cvt_pk_bf16_f32 v{SB[1]}, v{OV[0]+8}, v{OV[1]+8}
v_and_b32 v{vOL}, 31, v0
v_lshrrev_b32 v{vOLR}, 5, v0
v_lshlrev_b32 v{vOLR}, 2, v{vOLR}
v_lshl_add_u32 v{vOL}, v{vOL}, 3, v{vOLR}
""", ost[-1], stamp(32))
em(f"""
s_sub_u32 {sFLG}, {sFLG}, {WS_PF2 - WS_OF}
v_and_b32 v{vWR}, 16, v{vK}
v_mov_b32 v{vWRH}, 0x3f80
v_lshlrev_b32 v{vWRH}, v{vWR}, v{vWRH}
v_lshrrev_b32 v{vWR}, 5, v{vPA}
""", W(vm=b2l + [PLD[-1][1]]))
for e in range(10):
    if e < 8: em(f"v_cmp_eq_u32 vcc, {e}, v{vWR}")
    em(f"v_lshlrev_b32 v{TACC + 2*e}, 16, v{TB2 + e}", f"v_and_b32 v{TACC + 2*e + 1}, 0xffff0000, v{TB2 + e}")
    if e < 8: em(f"v_cndmask_b32 v{TSEL + e}, 0, v{vWRH}, vcc")
red = []
for t in range(5):
    for m in range(4):
        for c in ((2 * t, 2 * t + 1) if t < 4 else (8,)):
            red.append([I(f"v_mfma_f32_16x16x32_bf16 {v(TACC + 4*t, 4)}, {v(TSEL + 4*(c%2), 4)}, {a_(APL + 4*(9*m + c), 4)}, {v(TACC + 4*t, 4)}")])
tail_addr = f"""
v_mul_u32_u24 v{vWR}, {WOR}, v{vTA}
v_add_u32 v{vWR}, {WOB}, v{vWR}
v_bfe_u32 v{vTB}, v0, 2, 2
v_lshl_add_u32 v{vWRH}, v{vTB}, 4, v{vWR}
v_lshl_add_u32 v{vWR}, v{vTB}, 6, v{vWR}
v_lshl_add_u32 v{vWR}, v{vL4}, 3, v{vWR}
v_and_b32 v{vTB}, 1, v0
v_lshl_add_u32 v{vWRH}, v{vTB}, 3, v{vWRH}
s_lshl_b32 s62, {sFH}, 8
v_add_u32 v{vOL}, s62, v{vPA}
v_lshrrev_b32 v{vOLR}, 1, v{vOL}
v_lshl_add_u32 v{vOLR}, v{vTA}, 10, v{vOLR}
v_lshl_add_u32 v{vOL}, v{vTA}, 9, v{vOL}
v_sub_f32 v{vG2}, 1.0, v{vG2}
s_mul_i32 s62, {sW}, 2304
v_mul_u32_u24 v{vOW}, 9, v{vPA}
v_lshl_add_u32 v{vOW}, v{vTA}, 3, v{vOW}
v_add_u32 v{vOW}, s62, v{vOW}
s_and_b32 s63, {sJ}, 1
s_xor_b32 s63, s63, 1
s_lshl_b32 s63, s63, 7
v_lshrrev_b32 v{vTB}, 5, v0
v_lshl_add_u32 v{vOWH}, v{vTB}, 18, v{vOW}
v_add_u32 v{vOWH}, s63, v{vOWH}
s_and_b32 s63, {sJ}, 1
s_lshl_b32 s63, s63, 4
v_add_u32 v{vOW}, s63, v{vOW}
v_add_u32 v{vK2}, s62, v{vK}
"""
out_addr = []
for n in range(3):
    o = vO0 + n
    out_addr += [f"v_add_u32 v{vTMP}, {64*n}, v0", f"v_mul_u32_u24 v{o}, 7282, v{vTMP}", f"v_lshrrev_b32 v{o}, 16, v{o}", f"v_mul_u32_u24 v{o}, 1008, v{o}", f"v_lshl_add_u32 v{o}, v{vTMP}, 4, v{o}"]
out_addr += [f"v_lshl_add_u32 v{vO2}, v{vTA}, 28, v{vO2}"]
FR = [("a", 4 * k) for k in range(16)] + [("a", 208 + 4 * k) for k in range(12)] + [("a", 64 + 4 * k) for k in range(36)] + [("v", TW + 4 * (k % 20)) for k in range(26)]
def wo_read(n):
    c, r = divmod(n, 10); t, s = divmod(r, 2); o = []
    for rho in range(2):
        d = rg(FR[n], 2 * rho, 2)
        if t < 4: o.append(I(f"ds_read_b64_tr_b16 {d}, v{vWR} offset:{2304*c + 1024*(t//2) + 512*s + 256*rho + 32*(t%2)}"))
        else: o.append(I(f"ds_read_b64_tr_b16 {d}, v{vWRH} offset:{2304*c + 2048 + 128*s + 64*rho}"))
    return o
WRD = [wo_read(n) for n in range(90)]
def wo_batch(n0, n1):
    o = []
    for n in range(n0, n1):
        if n >= 6 and n % 2 == 0: o.append(W(lgkm=WRD[n - 5]))
        o += WRD[n]
    return o
spread(red, [tail_addr], 0, 18, 16)
red[18] += [W(vm=ost)] + flag() + stamp(32)
for k in range(17): red[19 + k] += wo_batch(k, k + 1)
em(red)
poll3_t = f"buffer_load_dword v{vTB}, v{vPP}, {SWS}, {sOP} offen sc1"
poll3 = I(poll3_t)
p3c, p3b = spin_check(poll3_t, f"v_cmp_ne_u32 vcc, 1, v{vTB}", sleep=0)
em(poll3, wo_batch(17, 28), [f"v_mul_f32 v{TACC+e}, v{TACC+e}, v{vG2}" for e in range(20)], out_addr, wo_batch(28, 50), stamp(33), W(vm=[poll3]), p3c, "s_nop 0", p3b, stamp(33))
OLD = []
for ks in range(16):
    pre = [f"s_add_u32 {sOL}, {sROT}, {ks//2}", f"s_and_b32 {sOL}, {sOL}, 7", f"s_lshl_b32 {sOL}, {sOL}, 12", f"s_add_u32 {sOL}, {sOL}, {sOLD}"] if ks % 2 == 0 else None
    OLD.append([pre, I(f"buffer_load_dwordx4 {v(OF + 4*ks, 4)}, v{vOL}, {SWS}, {sOL} offen offset:{2048*(ks%2)} sc1")])
for e in range(4):
    OLD.append([f"s_add_u32 {sOL}, {sOLD}, 32768" if e == 0 else None, I(f"buffer_load_dwordx2 {v(OF + 64 + 2*e, 2)}, v{vOLR}, {SWS}, {sOL} offen offset:{256*e} sc1")])
OLD = link(OLD)
em(OLD[:10], wo_batch(50, 84), stamp(32))
fin = []
for n in range(90):
    c, r = divmod(n, 10); t, s = divmod(r, 2)
    fin.append([I(f"v_mfma_f32_16x16x32_bf16 {v(TACC + 4*t, 4)}, {rg(FR[n], 0, 4)}, {v(OF + 8*c + 4*s, 4)}, {v(TACC + 4*t, 4)}")])
    if r == 9 and c < 8: fin[n].append(W(vm=[OLD[2 * c + 3][1] if c < 7 else OLD[-1][1]], lgkm0=(c in (4, 7))))
    if 64 <= n < 70: fin[n] += WRD[n + 20]
for k, p in enumerate((4, 6, 14, 16, 24, 26, 32, 34, 36, 38)): put(fin, p, *OLD[10 + k])
em(W(vm=[OLD[1][1]], lgkm=WRD[49]), stamp(32), fin)
em(stamp(32))
for t in range(5):
    em([f"v_cvt_pk_bf16_f32 v{TACC + 4*t + r}, v{TACC + 4*t + 2*r}, v{TACC + 4*t + 2*r + 1}" for r in range(2)])
    em(f"ds_write_b64 v{vOW if t < 4 else vOWH}, {v(TACC + 4*t, 2)} offset:{32*(t%4)}")
ord_ = [I(f"ds_read_b128 {v(OF + 4*n, 4)}, v{vK2} offset:{1024*n}") for n in range(3)]
em(ord_)
for n in range(3):
    em(W(lgkm=[ord_[n]]), f"buffer_store_dwordx4 {v(OF + 4*n, 4)}, v{vO0 + n}, {SOUT}, {sOUT} offen" + ["", " sc1", " nt", " sc0 sc1"][OPT["outsc"]])
if OPT["stamps"]:
    em("s_waitcnt vmcnt(0)", stamp(63), f"v_mov_b32 v1, 0")
    for k in range(nst[0]): em(f"v_writelane_b32 v1, s{84+k}, {k}")
    em(f"""
s_lshl_b32 s62, s2, 2
s_add_u32 s62, s62, {sW}
s_lshl_b32 s62, s62, 6
s_add_u32 s62, s62, {WS_ST}
v_cmp_gt_u32 vcc, 16, v0
v_lshlrev_b32 v2, 2, v0
v_mov_b32 v3, {OOB}
v_cndmask_b32 v2, v3, v2, vcc
buffer_store_dword v1, v2, {SWS}, s62 offen
""")
if "delay" in OPT:
    em(f"""
s_add_u32 s62, s{84 + OPT['delay']}, 7000
s_mov_b32 {sSP}, 100000
L_dly:
s_memrealtime s[80:81]
s_sub_u32 {sSP}, {sSP}, 1
s_cbranch_scc1 L_end
s_waitcnt lgkmcnt(0)
s_sub_u32 s63, s80, s62
s_cmp_lt_i32 s63, 0
s_cbranch_scc1 L_dly
""")
em("L_end:", "s_endpgm")

FK, FK2, FV, FM = 100, 116, 120, 152
fb = [f"""
L_fb:
v_cmp_gt_u32 vcc, {LOOB}, v{vV}
v_mov_b32 v{FM}, {OOB}
s_mov_b32 s62, {WS_KV}
v_cndmask_b32 v{vV}, v{FM}, v{vV}, vcc
v_mov_b32 v{FM}, 0xff7fffff
v_mov_b32 v{FM+1}, 0xff7fffff
L_fb1:
s_add_u32 s63, s62, 4096
"""]
fbk = [f"buffer_load_dwordx4 {v(FK + 4*r, 4)}, v{vK}, {SWS}, s62 offen offset:{1024*r} sc1" for r in range(4)] + [f"buffer_load_dwordx2 {v(FK2, 2)}, v{vK2}, {SWS}, s63 offen sc1"]
fb += fbk + ["s_waitcnt vmcnt(0)"]
for r in range(4):
    fb += [qk(0, r, SB[0], "0", v(FK + 4 * r, 4), v(FK2, 2)), qk(1, r, SB[1], "0", v(FK + 4 * r, 4), v(FK2, 2)), "s_nop 15",
           maxtree(SB[0], FM, FM), maxtree(SB[1], FM + 1, FM + 1)]
fb += [f"""
s_add_u32 s62, s62, {CH}
s_cmp_lt_u32 s62, {WS_KV + 16*CH}
s_cbranch_scc1 L_fb1
""", set_c(0, FM, FM + 2), set_c(1, FM + 1, FM + 2), [f"v_accvgpr_write_b32 a{e}, 0" for e in range(32)], f"""
s_mov_b32 s62, {WS_KV}
L_fb2:
s_add_u32 s63, s62, 4096
"""] + fbk + [f"s_add_u32 s63, s62, 4608"]
for r in range(4):
    if r == 2: fb += [f"s_add_u32 s63, s63, 2432"]
    fb += [f"buffer_load_dwordx4 {v(FV + 8*r + 4*e, 4)}, v{vV}, {SWS}, s63 offen offset:{1216*(r%2) + 608*e} sc1" for e in range(2)]
fb += ["s_waitcnt vmcnt(0)"]
for r in range(4):
    fb += [qk(0, r, SB[0], v(CR[0], 16), v(FK + 4 * r, 4), v(FK2, 2)), qk(1, r, SB[1], v(CR[1], 16), v(FK + 4 * r, 4), v(FK2, 2)), "s_nop 15"]
    for h in range(2):
        fb += [[f"v_exp_f32 v{SB[h]+e}, v{SB[h]+e}" for e in range(16)], "s_nop 1"]
        fb += [f"v_smfmac_f32_32x32x32_bf16 {a_(AO[h],16)}, {v(FV + 8*r + 4*e, 4)}, {v(SB[h] + 8*e, 8)}, v{vIDX}" for e in range(2)]
fb += [f"""
s_add_u32 s62, s62, {CH}
s_cmp_lt_u32 s62, {WS_KV + 16*CH}
s_cbranch_scc1 L_fb2
s_nop 15
""", o_read(0), o_read(1), f"v_rcp_f32 v{SB[1]+2}, v{OV[0]+9}", f"v_rcp_f32 v{SB[1]+3}, v{OV[1]+9}", "s_nop 1", "s_branch L_fbdone"]
OUTL.extend(flat(fb))

resolve_waits(P)
P2 = check(P)
O2 = check(OUTL)
if OPT.get("x_nospin"): P2 = [x for x in P2 if x.mn != "s_cbranch_vccnz"]
if OPT.get("x_nodma"): P2 = [x for x in P2 if not (getattr(x, "dma", False) and any(s in x.text for s in (SW1, SX, SWQ, SEX, SW2)))]
if OPT.get("x_nosync"): P2 = [x for x in P2 if not (x.mn in ("ds_add_u32", "s_cbranch_vccz") or x.text.startswith((f"ds_read_b32 v{vC},", "v_cmp_le_u32 vcc")))]
if OPT.get("x_nobr"): P2 = [x for x in P2 if x.mn != "s_cbranch_vccz"]
if OPT.get("x_notr"): P2 = [x for x in P2 if x.mn != "ds_read_b64_tr_b16"]
if OPT.get("x_nogelu"): P2 = [x for x in P2 if not (x.kind in ("valu", "trans") and x.wr and x.wr[0][0] == "v" and 32 <= x.wr[0][1] < 40 and "cndmask" not in x.mn and "mov" not in x.mn)]
if OPT.get("x_nost"): P2 = [x for x in P2 if not (x.mn == "buffer_store_dwordx4" and f"v{vPS}," in x.text)]
if OPT.get("x_nold"): P2 = [x for x in P2 if not (x.mn == "buffer_load_dwordx4" and x.text.split()[1].startswith("a["))]
if OPT.get("x_nokv"): P2 = [x for x in P2 if not any(x is KVD[d][n][1] for d in range(2, 8) for n in range(5))]
if OPT.get("x_nowo"): P2 = [x for x in P2 if not (getattr(x, "dma", False) and SWO in x.text)]
hdr = open(os.path.join(os.path.dirname(os.path.abspath(__file__)), "..", "cdna_kernels", NAME + ".s.ref")).read().split("; Override launch")[0]
src = hdr + f"""; Generated by gen/gen.py (hand-written generator).
; @launch grid=(256,1,1) block=(256,1,1) lds={LDS_BYTES}
.amdgcn_target "amdgcn-amd-amdhsa--gfx950"
.text
.globl {NAME}_kernel
.p2align 8
.type {NAME}_kernel,@function
{NAME}_kernel:
""" + render(P2) + render(O2) + f"""L_codeend:
    s_endpgm
.section .rodata,"a"
.p2align 6
.amdhsa_kernel {NAME}_kernel
  .amdhsa_next_free_vgpr 512
  .amdhsa_next_free_sgpr 102
  .amdhsa_accum_offset 256
  .amdhsa_group_segment_fixed_size 0
  .amdhsa_kernarg_size 112
  .amdhsa_user_sgpr_count 2
  .amdhsa_user_sgpr_kernarg_segment_ptr 1
  .amdhsa_system_sgpr_workgroup_id_x 1
.end_amdhsa_kernel
"""
open(sys.argv[1], "w").write(src)
print("instrs:", len(P2), len(O2))
```

```python
import sys, math, struct, os
from asm import *

NAME = "gated_mix__grouped_kv_mqa__dense_activation_gelu__prompt"
OPT = dict(lpos=245, spos=13, sgap=1, slp=0, lp=1, twin=0, early=0, fk=14, pk=46, npre=56, np2=70, tlb=0, ct=1, hoist=0, nt0=0, c1=65, p2e=0, kvw=1, w2r=1, kvt=1, f1=2, ntw1=0, ntx=0, ntq=0, ntw2=0, ntwo=0, n1=6, perm=6, ta=0, tb=0, tc=0, c7=13, c70=0, stamps=0, force_fb=0, spin=1 << 18, sync=1, touch=1, st_end=64, fa=35, fl=70, pa=58, pl=90, ld_end=124, wo0=66, rot=1, outsc=2)
for a in sys.argv[2:]:
    k, v = a.split("="); OPT[k] = int(v)

def f2u(x): return struct.unpack("<I", struct.pack("<f", x))[0]
def v(a, n=1): return f"v{a}" if n == 1 else f"v[{a}:{a+n-1}]"
def a_(a, n=1): return f"a{a}" if n == 1 else f"a[{a}:{a+n-1}]"
def rg(r, off=0, n=1): return (v if r[0] == "v" else a_)(r[1] + off, n)

WS_KV = 0; CH = 9472; DC = 2 * CH
WS_G = 0x300000
WS_PF = 0x30000
WS_OF = 0x50000
WS_PF2 = 0x70000
WS_ST = 0x90000
WS_O = 0xa0000
WS_P = 0x400000; R = 73728
OOB = 0x40000000
WR = 10784; SLOT = 4 * WR; TOP = 3 * SLOT
XB = TOP; HB = TOP; TMP = TOP + 16384; BIAS = TOP + 32768; CNT = BIAS + 1152
KVS = [0, 20480, 40960]
WOR = 20768; WOB = 61440
LDS_BYTES = 163840; LOOB = 0x40000
SX, SW1, SWQ, SEX, SW2, SWO, SWS, SOUT, SB1, SB2, SGW, SDBG = [f"s[{4+4*k}:{7+4*k}]" for k in range(12)]
sI, sJ, sW, sWB = "s56", "s57", "s58", "s59"
sCM, sCH = "s60", "s61"
sO1, sOQ, sOE, sOM, sXT, sN = "s64", "s65", "s66", "s67", "s68", "s69"
sGB, sQS, sWKV, sWWO, sSP = "s70", "s71", "s72", "s73", "s74"
sFH, sROT, sOS, sOL, sXB = "s75", "s76", "s77", "s78", "s79"
sPC = "s[0:1]"; sFLG = "s3"
sPS0, sPS1, sPLM, sPLH = "s36", "s37", "s38", "s39"
sPP, sOP, sG1, sG2 = "s44", "s45", "s46", "s47"
sOST, sOLD, sOUT, sSIG = "s52", "s53", "s54", "s55"
sMASK = "s[82:83]"
sPERM, sX0 = sOS, sOL
sO1A, sO1B, sWBA, sWBB = "s71", "s72", "s73", "s67"
sW2R, sW2H, sW2S = sOQ, sOE, sXT
ORDERS = ["014235678", "125306487", "236014578", "301245687", "012734568", "123805647", "230156478", "301264587"]
if OPT["perm"] == 0: ORDERS = ["012345678"] * 8
if OPT["perm"] == 3: ORDERS = ["013245678", "124036587", "205134678", "012635478", "120743568", "201845367", "012345678", "120453687"]
if OPT["perm"] == 5: ORDERS = ["012534678", "123640578", "234701568", "340812567", "401235678", "012346785", "123407856", "234018567"]
if OPT["perm"] == 6: ORDERS = ["013245678", "120435678", "201354678", "012346578", "120345768", "201345687", "012345678", "120345678"]
if OPT["perm"] == 9: ORDERS = ["013245678", "120435678", "201354678", "012345678", "012346578", "120345768", "201345687", "120345678"]
if OPT["perm"] == 7: ORDERS = ["014235678", "123504678", "230164578", "301247568", "012345867", "123045678", "230145678", "301245678"]
if OPT["perm"] == 2: ORDERS = ["021345678", "103245678", "012435678", "102354678", "012346578", "102345768", "012345687", "102345678"]
if OPT["perm"] == 8: ORDERS = ["012345678", "123456780", "234567801", "345678012", "456780123", "567801234", "670812345", "708123456"]
for o in ORDERS: assert sorted(o) == list("012345678")
def perm_word(o): return sum(int(ch) << (4 * k) for k, ch in enumerate(o[1:]))
vR2, vW2, vHW, vHR, vGA, vC, vK, vTD, vONE, vR2P, vCA, vTW2, vIDX, vPA, vTMP = range(1, 16)
GT = 32; vHO = 44
ACCV = 48
PROJ = 48; XR = 72; WRING = 136; GATE = 168
(vW1, vWQ, vWQT, vEX, vX, vX2, vR1a, vR1b, vR1xa, vR1xb, vTID, vXR0, vXR1, vXR2, vXR3, vW1H, vG4, vW1B,
 vPW, vPWP, vPW2, vPQ, vPV, vS1, vS2, vS3, vQF, vT0, vT1, vT2, vBR, vGX) = range(191, 223)
AW = [192, 200, 240, 248]; AH = [176, 208]; AQ = 224; AQR = 232

def hp(s, T): return ("v", 224 + 16 * s + 4 * T) if s < 2 else ("a", 16 * (s - 2) + 4 * T)
ORD = [(t, o) for t in range(9) for o in range(2)]
ATILES = ORD[6:11]
def acc2(t, o):
    n = ORD.index((t, o))
    if n == 10: return ("v", 16)
    if (t, o) in ATILES: return ("a", 112 + 16 * (n - 6))
    return ("v", ACCV + 16 * (n if n < 6 else n - 5))
def packed(t, o): return ACCV + 8 * ORD.index((t, o))

P = []; OUTL = []
def em(*x): P.extend(flat(x))
nst = [0]
def stamp(mask=1):
    if not (OPT["stamps"] & mask): return []
    k = nst[0]; nst[0] += 1
    assert k < 16
    return list(flat([f"{'s_memtime' if OPT.get('cyc') else 's_memrealtime'} s[80:81]", "s_waitcnt lgkmcnt(0)", f"s_mov_b32 s{84+k}, s80"]))

nlab = [0]
def spin_check(load_text, cmp_text, sleep=2):
    k = nlab[0]; nlab[0] += 1
    OUTL.extend(flat([f"""
L_spin{k}:
s_mov_b32 {sSP}, {OPT['spin']}
L_spin{k}_l:
{'s_sleep %d' % sleep if sleep else ''}
{'s_mov_b64 exec, vcc' if OPT['lp'] else ''}
{load_text}
s_sub_u32 {sSP}, {sSP}, 1
s_waitcnt vmcnt(0)
s_mov_b64 exec, -1
s_cbranch_scc1 L_back{k}
{cmp_text}
s_nop 1
s_cbranch_vccnz L_spin{k}_l
s_branch L_back{k}
"""]))
    c = I(cmp_text); b = I(f"s_cbranch_vccnz L_spin{k}"); b.deps = [c]
    return [c], [b, I(f"L_back{k}:")]

nsync = [0]
def sync(vm):
    if not OPT["sync"]:
        return [], [], [], [W(vm=vm, lgkm0=True), I("s_barrier")]
    nsync[0] += 1; k = nlab[0]; nlab[0] += 1
    cmp_text = f"v_cmp_le_u32 vcc, {4*nsync[0]}, v{vC}"
    OUTL.extend(flat([f"""
L_spin{k}:
s_mov_b32 {sSP}, {OPT['spin'] * 16}
L_spin{k}_l:
ds_read_b32 v{vC}, v{vCA}
s_sub_u32 {sSP}, {sSP}, 1
s_waitcnt lgkmcnt(0)
s_cbranch_scc1 L_back{k}
{cmp_text}
s_nop 1
s_cbranch_vccz L_spin{k}_l
s_branch L_back{k}
"""]))
    rd = I(f"ds_read_b32 v{vC}, v{vCA}")
    c = I(cmp_text); b = I(f"s_cbranch_vccz L_spin{k}"); b.deps = [c]
    return [W(vm=vm), I(f"ds_add_u32 v{vCA}, v{vONE}")], [rd], [W(lgkm=[rd]), c], [b, I(f"L_back{k}:")]

def front(slot, items):
    slot[1:1] = list(flat([items]))
def put(slots, k, pre, op):
    pre = list(flat([pre])); free = []
    for j in range(k - 1, max(-1, k - 5), -1):
        if any(z.kind == "vmem" for z in slots[j]): break
        if not (len(slots[j]) > 1 and slots[j][1].kind == "salu"): free.insert(0, j)
    m = 0
    while m < len(pre) and pre[m].kind == "salu": m += 1
    m = min(m, len(free))
    for y, j in zip(pre[:m], free[len(free) - m:]): slots[j].insert(1, y)
    slots[k - 1] += pre[m:]
    slots[k].append(op)

def flag():
    if OPT["f1"] == 2:
        return [I(f"v_lshlrev_b32 v{vTMP}, 2, v0"), I("s_mov_b32 exec_hi, 0"), I(f"buffer_store_dword v{vONE}, v{vTMP}, {SWS}, {sFLG} offen sc1"), I("s_mov_b32 exec_hi, -1")]
    st = I(f"buffer_store_dword v{vONE}, off, {SWS}, {sFLG} sc1")
    return [I("s_mov_b64 exec, 1"), st, I("s_mov_b64 exec, -1")] if OPT["f1"] else [st]
def poll16(op):
    if not OPT["lp"]: return [op]
    return [I(f"v_mov_b32 {op.ops[0]}, 1"), I("s_mov_b64 exec, 0xffff"), op, I("s_mov_b64 exec, -1")]
def code_touch():
    return link([[f"""
s_lshl_b32 s62, {sN}, 2
s_add_u32 s62, s62, {sW}
s_lshl_b32 s62, s62, 9
v_lshrrev_b32 v{vTMP}, 4, v0
v_lshl_add_u32 v{vTMP}, v{vTMP}, 7, s62
v_min_u32 v{vTMP}, L_codeend-L_pc-4, v{vTMP}
""", I(f"global_load_dword v{vTD}, v{vTMP}, {sPC}")]])

SIZES = {4: 2359296, 8: 5308416, 12: 663552, 16: 20736, 36: 9216, 20: 5308416, 24: 663552, 28: 268435456, 32: 2359296, 40: 1152, 44: 1152, 48: 256}
def srd(*bs): return [f"s_mov_b32 s{b+2}, {SIZES[b]}\ns_mov_b32 s{b+3}, 0x20000" for b in bs]

if OPT["stamps"]: em(f"{'s_memtime' if OPT.get('cyc') else 's_memrealtime'} s[84:85]"); nst[0] = 1
CTL = f"global_load_dword v{vTD}, v{vTMP}, s[62:63]"
CT0 = {0: "", 1: f"""v_lshrrev_b32 v1, 7, v0
v_lshrrev_b32 v3, 3, v0
v_mul_u32_u24 v1, {sN}, v1
v_lshl_add_u32 v1, v1, 4, v3
v_lshlrev_b32 v1, 7, v1
v_min_u32 v{vTMP}, L_codeend-L_pc-4, v1
{CTL}""", 2: f"""v_lshrrev_b32 v1, 4, v0
v_lshl_add_u32 v1, {sN}, 4, v1
v_lshlrev_b32 v1, 7, v1
v_min_u32 v{vTMP}, L_codeend-L_pc-4, v1
{CTL}""", 3: f"""v_lshrrev_b32 v1, 7, v0
v_lshl_add_u32 v1, {sN}, 1, v1
v_lshlrev_b32 v{vTMP}, 7, v1
{CTL}""", 4: f"""v_lshrrev_b32 v1, 3, v0
v_lshlrev_b32 v{vTMP}, 7, v1
{CTL}"""}[OPT["ct"]]
NT = {k: (" nt" if OPT["nt" + k] else "") for k in ("w1", "x", "q", "w2", "wo")}
em(f"""
s_getpc_b64 s[62:63]
L_pc:
s_cmp_ge_u32 s2, 256
s_cbranch_scc1 L_end
s_load_dwordx4 s[52:55], s[0:1], 0
s_load_dwordx2 s[8:9], s[0:1], 48
s_lshr_b32 {sN}, s2, 3
{CT0}
s_load_dwordx4 s[16:19], s[0:1], 16
s_load_dwordx2 s[36:37], s[0:1], 56
v_lshrrev_b32 v1, 6, v0
v_mov_b32 v{vTID}, v0
v_readfirstlane_b32 {sW}, v1
v_and_b32 v0, 63, v0
s_and_b32 {sI}, s2, 1
s_lshl_b32 {sI}, {sI}, 3
s_and_b32 s60, {sN}, 7
s_add_u32 {sI}, {sI}, s60
s_bfe_u32 {sJ}, s2, 0x20001
s_lshl_b32 {sJ}, {sJ}, 2
s_lshr_b32 {sROT}, s2, 6
s_add_u32 {sJ}, {sJ}, {sROT}
s_add_u32 {sPERM}, {sI}, {sJ}
s_and_b32 {sPERM}, {sPERM}, 7
s_lshl_b32 s60, {sPERM}, 2
s_lshr_b32 {sOE}, {hex(sum(int(o[0]) << (4*k) for k, o in enumerate(ORDERS)))}, s60
s_and_b32 {sOE}, {sOE}, 15
s_lshl_b32 {sX0}, {sOE}, 7
s_add_u32 {sXT}, {sX0}, {16*1152}
s_lshl_b32 {sXB}, {sW}, 12
s_lshl_b32 s60, {sI}, 2
s_add_u32 s60, s60, {sW}
s_mul_i32 s60, s60, {32*1152}
v_lshrrev_b32 v2, 4, v0
v_lshrrev_b32 v1, 3, v0
v_mul_u32_u24 v5, 1152, v1
v_add_u32 v1, 2, v2
v_xor_b32 v1, v1, v0
v_and_b32 v1, 7, v1
v_add_u32 v5, s60, v5
v_lshl_add_u32 v{vX}, v1, 4, v5
""", srd(4))
kwait = ["s_waitcnt lgkmcnt(0)", "s_mov_b64 s[4:5], s[52:53]", stamp(16)]
def p1_loads(c):
    sl = (c % 3) * SLOT; o = []; w = []
    for n in range(4):
        o.append([[I(f"s_add_u32 m0, {sXB}, {XB + 16384*(c%2) + 1024*n}")],
                  I(f"buffer_load_dwordx4 v{vX2 if n%2 else vX}, {SX}, {sXT if n >= 2 else sX0} offen{NT['x']} lds")])
    o = [o[0], o[2], o[1], o[3]]
    for n in range(8):
        pre = [I(f"s_add_u32 {sO1A}, {sO1}, {sO1B}")] if n == 0 else [I(f"s_xor_b32 {sO1A}, {sO1A}, 256")] if n == 4 else []
        w.append([pre + [I(f"s_add_u32 m0, {sWBB if n >= 4 else sWBA}, {sl + 1024*(n%4) - 128*(n//2%2)}")],
                  I(f"buffer_load_dwordx4 v{vW1B if n%2 else vW1}, {SW1}, {sO1A} offen offset:{128*(n//2%2)}{NT['w1']} lds")])
    w.append([[I(f"s_add_u32 m0, {sWB}, {sl + 8192}")], I(f"buffer_load_dwordx4 v{vW1H}, {SW1}, {sO1} offen{NT['w1']} lds")])
    w.append([[I(f"s_add_u32 m0, {sWB}, {sl + 9216}")], I(f"buffer_load_dwordx4 v{vWQ}, {SWQ}, {sOQ} offen{NT['q']} lds")])
    w.append([[I(f"s_add_u32 m0, {sWB}, {sl + 10240}")], I(f"buffer_load_dword v{vWQT}, {SWQ}, {sOQ} offen{NT['q']} lds")])
    w.append([[I(f"s_add_u32 m0, {sWB}, {sl + 10496}")], I(f"buffer_load_dword v{vEX}, {SEX}, {sOE} offen lds")])
    o.append([None, I(f"buffer_load_dword v{GATE + 4 + c%2}, v{vG4}, {SGW}, {sX0} offen")])
    if c == 0: return o[:4] + w + o[4:]
    so = [I(f"s_bfe_u32 {sOE}, {sPERM}, {hex(0x40000 + 4*(c-1))}"), I(f"s_mul_i32 {sO1}, {sOE}, {64*9216}"), I(f"s_mul_i32 {sOQ}, {sOE}, {64*1152}"),
          I(f"s_lshl_b32 {sX0}, {sOE}, 7"), I(f"s_add_u32 {sXT}, {sX0}, {16*1152}"), I(f"s_mul_i32 {sOE}, {sOE}, {64*36}")]
    if c == 1:
        o[0][0] = so + o[0][0]; return o + w
    w[0][0] = so[:2] + w[0][0]
    for k in range(4): w[[1, 2, 3, 5][k]][0] = [so[2 + k]] + w[[1, 2, 3, 5][k]][0]
    return w + o
def p2_loads(s):
    sl = (s % 3) * SLOT
    first = [I(f"s_add_u32 {sW2S}, {sWB}, {sl}"), I(f"s_add_u32 m0, {sW2S}, {8192 - 1024}")]
    if s > 0: first.append(I(f"v_add_u32 v{vW2}, {36864 if s < 8 else sW2H}, v{vW2}"))
    o = [[first, I(f"buffer_load_dwordx4 v{vW2}, {SW2}, 0 offen offset:1024{NT['w2']} lds")]]
    for n in range(8):
        o.append([[I(f"s_xor_b32 {sO1}, {sW2R}, {128*n}"), I(f"s_lshl3_add_u32 m0, {sO1}, {sW2S}")], I(f"buffer_load_dwordx4 v{vW2}, {SW2}, {sO1} offen{NT['w2']} lds")])
    return o
w2pre = link([[[f"s_and_b32 {sW2H}, {sJ}, 1", f"s_mul_i32 {sW2H}, {sW2H}, {-9*36864}"], I(f"s_add_u32 {sW2H}, {sW2H}, 36864")],
              [f"s_and_b32 {sW2R}, {sN}, {7 if OPT['w2r'] else 0}", I(f"s_lshl_b32 {sW2R}, {sW2R}, 7")]])
LOADS = [link(p1_loads(c)) for c in range(9)] + [link(p2_loads(s)) for s in range(9)]
def last(c): return LOADS[c][-1][1]

def weave(pairs, fill):
    fill = stream(fill); n = len(pairs); k = 0
    for q, (pre, op) in enumerate(pairs):
        e = (q + 1) * len(fill) // n
        while e < len(fill) and fill[e].mn.startswith("s_cselect"): e += 1
        e = max(e, k)
        em(pre, fill[k:e], op); k = e

bl = I(f"buffer_load_dword v7, v6, {SB1}, s61 offen")
psel = [f"s_mov_b32 s60, {hex(perm_word(ORDERS[0]))}"]
for k in range(1, 8): psel += [f"s_cmp_eq_u32 {sPERM}, {k}", f"s_cselect_b32 {'s60' if k < 7 else sPERM}, {hex(perm_word(ORDERS[k]))}, s60"]
L0 = LOADS[0]
if OPT["nt0"]:
    for pre, op in L0[:15]:
        if " nt" not in op.text and ((OPT["nt0"] & 1 and SW1 in op.text) or (OPT["nt0"] & 2 and SX in op.text) or (OPT["nt0"] & 4 and SWQ in op.text)): op.text = op.text.replace(" lds", " nt lds")
c_x2 = [f"v_xor_b32 v1, 4, v1", f"v_lshl_add_u32 v{vX2}, v1, 4, v5", f"v_add_u32 v{vX2}, {8*1152}, v{vX2}", f"v_bfe_u32 v1, v0, 2, 3"]
c_sl = """
s_load_dwordx2 s[20:21], s[0:1], 64
s_load_dwordx2 s[24:25], s[0:1], 32
s_load_dwordx2 s[28:29], s[0:1], 104
s_load_dwordx2 s[32:33], s[0:1], 88
s_load_dwordx2 s[40:41], s[0:1], 72
s_load_dwordx2 s[44:45], s[0:1], 80
s_load_dwordx2 s[48:49], s[0:1], 96
"""
c_w1 = [srd(8), f"""
s_mul_i32 {sWB}, {sW}, {WR}
s_mul_i32 {sO1}, {sOE}, {64*9216}
s_and_b32 {sO1B}, {sI}, {8 if OPT['twin'] else 0}
s_lshl_b32 {sO1B}, {sO1B}, 5
s_lshl4_add_u32 {sWBA}, {sO1B}, {sWB}
s_xor_b32 {sWBB}, {sO1B}, 256
s_lshl4_add_u32 {sWBB}, {sWBB}, {sWB}
v_lshl_add_u32 v1, {sW}, 4, v1
v_mul_u32_u24 v1, 9216, v1
v_and_b32 v4, 3, v0
v_lshl_add_u32 v1, v4, 4, v1
v_lshrrev_b32 v5, 5, v0
v_lshl_add_u32 v1, v5, 6, v1
s_mul_i32 s61, {sJ}, 576
s_and_b32 {sFH}, {sJ}, 1
s_lshl_b32 s60, {sFH}, 6
s_add_u32 s60, s60, s61
v_add_u32 v{vW1}, s60, v1
v_add_u32 v{vW1B}, {8*9216}, v{vW1}
"""]
c_rest = [f"""
v_lshrrev_b32 v1, 2, v{vTID}
s_xor_b32 s60, {sFH}, 1
s_lshl_b32 s60, s60, 9
s_add_u32 s60, s60, s61
v_mul_u32_u24 v5, 9216, v1
v_lshl_add_u32 v5, v4, 4, v5
v_add_u32 v{vW1H}, s60, v5
s_mul_i32 {sOQ}, {sOE}, {64*1152}
s_mul_i32 {sOE}, {sOE}, {64*36}
s_mul_i32 s60, {sJ}, 72
v_mul_u32_u24 v5, 1152, v1
v_add_u32 v5, s60, v5
v_lshl_add_u32 v{vWQ}, v4, 4, v5
v_lshl_add_u32 v{vWQT}, v4, 2, v5
v_add_u32 v{vWQT}, 56, v{vWQT}
s_lshl_b32 s60, {sFH}, 4
s_cmp_ge_u32 {sJ}, 4
s_cselect_b32 s60, 20, s60
v_mul_u32_u24 v5, 36, v1
v_lshl_add_u32 v5, v4, 2, v5
v_add_u32 v{vEX}, s60, v5
v_min_u32 v6, 143, v{vTID}
v_lshlrev_b32 v6, 2, v6
""", srd(12, 36)]
c_ptr = f"""
s_mov_b64 s[12:13], s[54:55]
s_lshr_b32 s60, 0x2c, {sJ}
s_bitcmp1_b32 s60, 0
s_cselect_b32 s16, s18, s16
s_cselect_b32 s17, s19, s17
s_cmp_lt_u32 {sJ}, 6
s_cselect_b32 s18, {SIZES[16]}, 0
s_mov_b32 s19, 0x20000
"""
if OPT["tlb"]:
    em(c_sl, f"v_mov_b32 v10, 0", f"v_lshlrev_b32 v11, 20, v0", f"v_min_u32 v12, {SIZES[4]-4}, v11", f"v_min_u32 v13, {SIZES[8]-4}, v11"); c_sl = ""
    tl = lambda off, p: f"global_load_dword v{vTD}, v{off}, s[{p}:{p+1}]"
    kwait += [tl(13, 8), tl(12, 52), tl(10, 54), tl(10, 16), tl(10, 18), tl(10, 36), tl(10, 44)]
    if OPT["tlb"] >= 2: kwait += [tl(13, 20), tl(10, 24), tl(10, 40), tl(12, 32), tl(10, 48), f"v_add_u32 v11, 0x2f000, v11", tl(11, 28)]
if OPT["hoist"] == 0:
    em(kwait); weave(L0[:4], c_x2); em(c_w1); weave(L0[4:12], [c_rest, c_ptr, c_sl])
elif OPT["hoist"] == 1:
    em(c_x2, c_w1, kwait); weave(L0[:12], [c_rest, c_ptr, c_sl])
else:
    em(c_x2, c_w1, c_rest, kwait); weave(L0[:12], [c_sl, c_ptr])
em(stamp(16), bl)
weave(L0[12:16], [psel, "s_waitcnt lgkmcnt(0)", f"s_mov_b64 {sPC}, s[62:63]", srd(44), f"v_and_b32 v{vG4}, 31, v0", f"v_lshlrev_b32 v{vG4}, 2, v{vG4}", f"v_lshlrev_b32 v3, 5, v0"])
em(L0[16][1], f"buffer_load_dword v{vTD}, v3, {SGW}, 0 offen", code_touch() if OPT["ct"] in (0, 3, 4) else [])
weave(LOADS[1][:OPT['n1']], [f"""
s_mul_i32 s63, {sFH}, -128
s_and_b32 {sFH}, {sW}, 1
v_bfe_u32 v5, v0, 2, 2
v_mul_u32_u24 v{vR1a}, {WR}, v2
v_lshl_add_u32 v{vR1xa}, v5, 4, v{vR1a}
v_lshl_add_u32 v{vR1a}, v5, 6, v{vR1a}
v_lshl_add_u32 v{vR1a}, v4, 3, v{vR1a}
s_lshl_b32 s62, {sFH}, 5
v_add_u32 v{vR1a}, s62, v{vR1a}
v_add_u32 v{vR1b}, {2*SLOT}, v{vR1a}
v_lshrrev_b32 v5, 1, v4
v_and_b32 v1, 1, v4
v_lshl_add_u32 v{vR1xa}, v5, 8, v{vR1xa}
v_lshl_add_u32 v{vR1xa}, v1, 3, v{vR1xa}
v_add_u32 v{vR1xa}, 10240, v{vR1xa}
v_add_u32 v{vR1xb}, {2*SLOT}, v{vR1xa}
v_bfe_u32 v5, v0, 1, 3
v_add_u32 v5, 2, v5
v_lshlrev_b32 v1, 1, v2
v_xor_b32 v5, v5, v1
v_and_b32 v5, 7, v5
v_and_b32 v1, 15, v0
v_lshlrev_b32 v1, 7, v1
v_lshl_add_u32 v5, v5, 4, v1
s_add_u32 s62, {sXB}, {XB}
v_add_u32 v{vXR0}, s62, v5
v_xor_b32 v{vXR1}, 16, v{vXR0}
s_xor_b32 s62, {sXB}, 4096
s_add_u32 s62, s62, {XB}
v_add_u32 v{vXR2}, s62, v5
v_xor_b32 v{vXR3}, 16, v{vXR2}
s_lshl_b32 s62, {sFH}, 6
s_add_u32 s62, s62, {BIAS}
v_lshl_add_u32 v{vBR}, v2, 4, s62
v_lshl_add_u32 v5, v6, 1, s63
v_add_u32 v1, 1152, v5
v_min_u32 v5, v5, v1
v_add_u32 v5, {BIAS}, v5
v_mov_b32 v{vCA}, {LOOB}
s_mov_b32 s62, {CNT}
v_writelane_b32 v{vCA}, s62, 0
v_mov_b32 v{vONE}, 0
s_lshl_b32 s62, {sJ}, 2
s_add_u32 s62, s62, {sW}
s_add_u32 s63, s62, 2
s_and_b32 s63, s63, 7
s_lshl_b32 s63, s63, 4
v_lshlrev_b32 v1, 2, v0
v_xor_b32 v1, s63, v1
s_lshl_b32 s62, s62, 8
s_add_u32 s62, s62, {XB}
v_add_u32 v{vGX}, s62, v1
v_mov_b32 v{GATE + 9}, 0
""", srd(20, 24, 28, 32, 40, 48)])
em(stamp(16))
em(f"ds_write_b32 v{vCA}, v{vONE}", W(vm=[bl]), f"""
v_lshlrev_b32 v6, 16, v7
v_and_b32 v7, 0xffff0000, v7
v_mov_b32 v{vONE}, 1
ds_write_b64 v5, v[6:7]
""", W(vm=[last(0)], lgkm0=True), stamp(16), "s_barrier", stamp(19))

def p1_reads(c, t):
    sl = c % 3; ring = WRING + 8 * ((11 * c + t) % 4); o = []
    for s in range(2):
        for rho in range(2):
            if t > 0:
                ad = vR1a if sl < 2 else vR1b
                n = 9 if t == 1 else t - 2
                off = (sl % 2) * SLOT + 256 * rho + (1024 * n + 512 * s if n >= 8 else 2048 * (n // 2) + 1024 * s + 512 * (n % 2))
            else:
                ad = vR1xa if sl < 2 else vR1xb
                off = (sl % 2) * SLOT + 128 * s + 64 * rho
            o.append(I(f"ds_read_b64_tr_b16 {v(ring + 4*s + 2*rho, 2)}, v{ad} offset:{off}"))
    return o
def p1_acc(t, T): return hp(t - 2, T) if t >= 2 else ("v", PROJ + (16 if t == 0 else 0) + 4 * T)
RD = {(c, t): p1_reads(c, t) for c in range(9) for t in range(11)}
def xreg(c, T, s): return v(XR + 32*(c%2) + 8*T + 4*s, 4)
XRD = {c: [I(f"ds_read_b128 {xreg(c, T, s)}, v{vXR0 + 2*(T//2) + s} offset:{16384*(c%2) + 2048*(T%2)}") for T in (1, 0, 3, 2) for s in range(2)] for c in range(9)}
BRD = [I(f"ds_read_b128 {rg(hp(s, 0), 0, 4)}, v{vBR} offset:{128*s}") for s in range(9)]
def p2_reads(s, t):
    return [I(f"ds_read_b64_tr_b16 {a_(AW[(9*s+t)%4] + 4*k + 2*rho, 2)}, v{vR2P if k else vR2} offset:{512*t + 256*rho}") for k in range(2) for rho in range(2)]
RD2 = {(s, t): p2_reads(s, t) for s in range(9) for t in range(9)}

g_acc = GATE + 9; g0, g1, g2, g3 = GATE + 10, GATE + 11, GATE + 12, GATE + 13
GXR = {c: I(f"ds_read_b32 v{GATE + 6}, v{vGX} offset:{16384*(c%2)}") for c in range(9)}
def gate_math(c):
    xx = GATE + 6; ww = GATE + 4 + c % 2
    return [f"v_lshlrev_b32 v{g0}, 16, v{xx}", f"v_lshlrev_b32 v{g1}, 16, v{ww}", f"v_and_b32 v{g2}, 0xffff0000, v{xx}", f"v_and_b32 v{g3}, 0xffff0000, v{ww}",
            f"v_fmac_f32 v{g_acc}, v{g0}, v{g1}", f"v_fmac_f32 v{g_acc}, v{g2}, v{g3}"]
GA = -2 * math.sqrt(2 / math.pi) * math.log2(math.e)
fill_a = f"""
s_lshl_b32 s62, {sI}, 4
s_add_u32 s62, s62, {sJ}
s_lshl_b32 s63, s62, 10
s_add_u32 s63, s63, {WS_G}
v_lshl_add_u32 v{vT2}, v{vTID}, 2, s63
s_lshl_b32 s62, s62, 2
s_add_u32 s62, s62, {sW}
s_lshl_b32 s62, s62, 7
s_add_u32 {sFLG}, s62, {WS_PF}
s_lshl_b32 s62, {sI}, 13
s_add_u32 s62, s62, {WS_PF}
s_lshr_b32 s63, {sJ}, 1
s_mul_i32 s63, s63, {WS_OF - WS_PF}
s_add_u32 s62, s62, s63
s_and_b32 s63, {sJ}, 1
s_lshl_b32 s63, s63, 12
s_add_u32 s62, s62, s63
s_cmp_lt_u32 {sJ}, 6
s_cselect_b32 s62, s62, {OOB}
v_lshl_add_u32 v{GATE + 7}, v{vTID}, 4, s62
v_mov_b32 v{vGA}, {hex(f2u(GA))}
v_mov_b32 v{vIDX}, 0xdddddddd
v_lshlrev_b32 v{vK}, 4, v0
v_and_b32 v{vPA}, 0xf0, v{vK}
s_mov_b32 {sGB}, {hex(f2u(GA * 0.044715))}
v_mov_b32 v{GATE}, 0
v_mov_b32 v{GATE+1}, 0
v_mov_b32 v{GATE+2}, 0
v_mov_b32 v{GATE+3}, 0
"""
clr = I(f"buffer_store_dwordx4 {v(GATE, 4)}, v{GATE + 7}, {SWS}, 0 offen sc1")
dpp = [f"v_add_f32_dpp v{g_acc}, v{g_acc}, v{g_acc} row_shr:{k} row_mask:0xf bank_mask:0xf bound_ctrl:1" for k in (1, 2, 4, 8)] + \
      [f"v_add_f32_dpp v{g_acc}, v{g_acc}, v{g_acc} row_bcast:15 row_mask:0xa bank_mask:0xf"]
gate_fin = [f"v_mul_f32 v{g_acc}, {hex(f2u(-math.log2(math.e)))}, v{g_acc}", f"v_exp_f32 v{g_acc}, v{g_acc}", f"v_add_f32 v{g_acc}, 1.0, v{g_acc}", f"v_rcp_f32 v{g_acc}, v{g_acc}"]
gst = I(f"buffer_store_dword v{g_acc}, v{vT2}, {SWS}, 0 offen sc1")
fill_p2 = f"""
s_mul_i32 s62, {sJ}, 288
s_lshl_b32 s63, {sW}, 3
s_add_u32 s62, s62, s63
s_and_b32 s63, {sJ}, 1
s_lshl_b32 s63, s63, 5
s_add_u32 s62, s62, s63
v_bfe_u32 v{vS1}, v0, 2, 3
v_add_u32 v{vS1}, s62, v{vS1}
v_mul_u32_u24 v{vW2}, 1152, v{vS1}
v_lshrrev_b32 v{vS2}, 5, v0
v_lshl_add_u32 v{vW2}, v{vS2}, 6, v{vW2}
v_and_b32 v{vS1}, 3, v0
v_lshl_add_u32 v{vW2}, v{vS1}, 4, v{vW2}
v_mul_u32_u24 v{vR2}, {WR}, v{vS2}
v_bfe_u32 v{vS1}, v0, 2, 2
v_lshl_add_u32 v{vR2}, v{vS1}, 6, v{vR2}
v_bfe_u32 v{vS1}, v0, 4, 1
v_lshl_add_u32 v{vR2}, v{vS1}, 5, v{vR2}
v_and_b32 v{vS1}, 1, v0
v_lshl_add_u32 v{vR2}, v{vS1}, 4, v{vR2}
v_bfe_u32 v{vS1}, v0, 1, 1
v_lshl_add_u32 v{vR2}, v{vS1}, 3, v{vR2}
s_mul_i32 s62, {sFH}, {4608 - 2*WR}
s_add_u32 s62, s62, {2*WR}
v_add_u32 v{vR2P}, s62, v{vR2}
s_mul_i32 s62, {sFH}, {4608 + 2*WR}
v_add_u32 v{vR2}, s62, v{vR2}
s_lshl_b32 s62, {sW}, 11
s_add_u32 s63, s62, {HB}
v_lshl_add_u32 v{vHO}, v0, 4, s63
v_and_b32 v{vS1}, 0x2f, v0
v_lshl_add_u32 v{vHW}, v{vS1}, 4, s63
v_bfe_u32 v{vS1}, v0, 4, 1
v_lshl_add_u32 v{vHW}, v{vS1}, 3, v{vHW}
s_xor_b32 s62, s62, 2048
s_add_u32 s63, s62, {HB}
v_lshl_add_u32 v{vHR}, v0, 4, s63
"""
def w2t_addr(dst, s0, s1):
    per = -(-(s1 - s0) * 288 // 64)
    return f"""
s_lshl_b32 s62, {sI}, 2
s_add_u32 s62, s62, {sW}
s_mul_i32 s62, s62, {(s1 - s0) * 9}
s_lshr_b32 s62, s62, 1
s_and_b32 s63, {sJ}, 1
s_add_u32 s63, s63, {s0}
s_mul_i32 s63, s63, 288
s_add_u32 s62, s62, s63
v_mul_u32_u24 v{dst}, {per}, v0
v_lshrrev_b32 v{dst}, 6, v{dst}
v_add_u32 v{dst}, s62, v{dst}
v_subrev_u32 v{vS1}, 2592, v{dst}
v_min_u32 v{dst}, v{dst}, v{vS1}
s_mul_i32 s62, {sJ}, {288*1152}
v_lshl_add_u32 v{dst}, v{dst}, 7, s62
"""
TP = [tuple(int(ch) for ch in "%03d" % OPT[k]) for k in ("ta", "tb", "tc") if OPT[k]]
TR = [vTW2, 45, 46]
fill_w2t = [w2t_addr(r, s0, s1) for r, (s0, s1, p) in zip(TR, TP)]
def w2t(p): return [[None, I(f"buffer_load_dword v{vTD}, v{r}, {SW2}, 0 offen")] for r, t in zip(TR, TP) if t[2] == p]
QS = hex(f2u(math.log2(math.e)/math.sqrt(18)))
fill_pe = f"""
s_mul_i32 s62, {sW}, 3328
s_add_u32 s62, s62, {TMP}
v_and_b32 v{vT0}, 15, v0
v_lshrrev_b32 v{vT1}, 4, v0
v_mul_u32_u24 v{vPW2}, 104, v{vT0}
v_add_u32 v{vPW2}, s62, v{vPW2}
v_lshl_add_u32 v{vPW}, v{vT1}, 3, v{vPW2}
s_lshl_b32 s63, {sFH}, 5
v_add_u32 v{vPW}, s63, v{vPW}
s_mul_i32 s63, {sFH}, -6656
s_add_u32 s63, s63, 3328
v_add_u32 v{vPWP}, s63, v{vPW}
v_cmp_gt_u32 {sMASK}, 32, v0
v_xor_b32 v{vS3}, 1, v{vT1}
v_mov_b32 v{vQF}, {QS}
v_cndmask_b32 v{vS3}, v{vT1}, v{vS3}, {sMASK}
v_cndmask_b32 v{vQF}, 1.0, v{vQF}, {sMASK}
v_lshl_add_u32 v{vPW2}, v{vS3}, 3, v{vPW2}
v_and_b32 v{vS3}, 31, v0
v_mul_u32_u24 v{vPQ}, 104, v{vS3}
v_add_u32 v{vPQ}, s62, v{vPQ}
v_bfe_u32 v{vPV}, v0, 2, 2
v_lshl_add_u32 v{vPV}, v{vT1}, 3, v{vPV}
v_mul_u32_u24 v{vPV}, 104, v{vPV}
v_and_b32 v{vS1}, 3, v0
v_lshl_add_u32 v{vPV}, v{vS1}, 3, v{vPV}
v_add_u32 v{vPV}, s62, v{vPV}
s_mul_i32 s60, {sI}, {CH}
s_lshl_b32 s62, {sW}, 10
s_lshl_b32 s63, {sJ}, 9
s_add_u32 s62, s62, s63
s_add_u32 s62, s62, s60
s_cmp_lt_u32 {sJ}, 2
s_cselect_b32 s62, s62, {OOB}
v_lshl_add_u32 v{vS1}, v{vS3}, 4, s62
s_lshr_b32 s62, {sW}, 1
s_lshl_b32 s62, s62, 8
s_lshl_b32 s63, {sFH}, 2
s_add_u32 s62, s62, s63
s_add_u32 s62, s62, s60
s_add_u32 s62, s62, 4096
s_cmp_eq_u32 {sJ}, 4
s_cselect_b32 s62, s62, {OOB}
v_lshl_add_u32 v{vS2}, v{vS3}, 3, s62
v_mov_b32 v{vBR}, {OOB}
v_cndmask_b32 v{vS1}, v{vBR}, v{vS1}, {sMASK}
v_cndmask_b32 v{vS2}, v{vBR}, v{vS2}, {sMASK}
"""
fill_pe2 = f"""
s_mul_i32 s62, {sW}, 1216
s_add_u32 s62, s62, s60
s_add_u32 s62, s62, {4608 - 128}
s_cmp_eq_u32 {sJ}, 3
s_cselect_b32 s63, 128, 0
s_cmp_eq_u32 {sJ}, 5
s_cselect_b32 s63, 160, s63
s_cselect_b32 s61, 13, 8
s_cselect_b32 s60, 13, 99
s_add_u32 s62, s62, s63
s_lshr_b32 s63, 0x2c, {sJ}
s_bitcmp1_b32 s63, 0
s_cselect_b32 s61, s61, 99
v_mul_u32_u24 v{vS3}, 304, v{vT1}
v_lshl_add_u32 v{vS3}, v{vT0}, 4, v{vS3}
v_add_u32 v{vS3}, s62, v{vS3}
v_cmp_eq_u32 {sMASK}, s60, v{vT0}
v_add_u32 v{vT1}, 48, v{vS3}
v_cmp_le_u32 vcc, s61, v{vT0}
v_cndmask_b32 v{vS3}, v{vS3}, v{vT1}, {sMASK}
v_mov_b32 v{vT0}, 0x3f803f80
v_cndmask_b32 v{vS3}, v{vBR}, v{vS3}, vcc
v_lshrrev_b32 v{vT1}, 5, v0
v_lshl_add_u32 v{vT1}, v{vT1}, 4, v{vPQ}
"""
fill_s = f"""
s_lshl_b32 {sWKV}, {sW}, 10
s_mul_i32 {sWWO}, {sW}, {WOR}
s_add_u32 {sWWO}, {sWWO}, {WOB}
s_lshl_b32 {sSIG}, {sI}, 4
s_cmp_lt_u32 {sJ}, 6
s_cselect_b32 {sSIG}, {sSIG}, 0x1000
s_cmp_eq_u32 {sW}, 0
s_cselect_b32 {sSIG}, {sSIG}, 0x1000
s_lshr_b32 s62, {sW}, 1
s_lshl_b32 s63, {sI}, 1
s_add_u32 s62, s62, s63
s_lshl_b32 s62, s62, 4
s_add_u32 s62, s62, {sJ}
s_mul_i32 s62, s62, {R}
s_mul_i32 {sPS0}, {sFH}, {36864 + 512}
s_add_u32 {sPS0}, {sPS0}, s62
s_add_u32 {sPS0}, {sPS0}, {WS_P}
s_xor_b32 {sPS1}, {sPS0}, 512
s_lshr_b32 s62, {sJ}, 3
s_add_u32 s63, s63, s62
s_mul_i32 {sPLM}, s63, {16*R}
s_lshl_b32 {sOUT}, s63, 2
s_add_u32 {sOUT}, {sOUT}, {sW}
s_lshl_b32 {sG2}, {sOUT}, 11
s_add_u32 {sG2}, {sG2}, {WS_G + 124}
s_lshr_b32 {sOLD}, {sOUT}, 1
s_mul_i32 {sOLD}, {sOLD}, 36864
s_add_u32 {sOLD}, {sOLD}, {WS_O}
s_mul_i32 {sOUT}, {sOUT}, {16*1152}
s_lshl_b32 {sOP}, {sI}, 5
s_add_u32 {sOP}, {sOP}, s62
s_lshl_b32 {sOP}, {sOP}, 1
s_bfe_u32 s62, {sJ}, 0x10002
s_add_u32 {sPP}, {sOP}, s62
s_lshl_b32 {sPP}, {sPP}, 7
s_add_u32 {sPP}, {sPP}, {WS_PF}
s_lshr_b32 s62, {sW}, 1
s_add_u32 {sOP}, {sOP}, s62
s_lshl_b32 {sOP}, {sOP}, 7
s_add_u32 {sOP}, {sOP}, {WS_OF}
s_lshl_b32 s62, {sI}, 2
s_add_u32 s62, s62, {sW}
s_lshl_b32 {sG1}, s62, 12
s_add_u32 {sG1}, {sG1}, {WS_G + 124}
s_mul_i32 {sOST}, s62, 36864
s_add_u32 {sOST}, {sOST}, {WS_O}
"""
fill_s2 = f"""
s_and_b32 s62, {sJ}, 7
s_mul_i32 s62, s62, 144
s_add_u32 {sOUT}, {sOUT}, s62
s_and_b32 s63, {sJ}, 1
s_lshl_b32 {sCM}, s63, 4
s_add_u32 {sCM}, {sCM}, s62
s_xor_b32 s63, s63, 1
s_lshl_b32 {sCH}, s63, 7
s_add_u32 {sCH}, {sCH}, s62
s_lshl_b32 s62, {sW}, 8
s_add_u32 {sPLM}, {sPLM}, s62
s_add_u32 {sPLM}, {sPLM}, {WS_P}
s_lshl_b32 s62, {sCH}, 6
s_add_u32 {sPLH}, {sPLM}, s62
s_lshl_b32 s62, {sCM}, 6
s_add_u32 {sPLM}, {sPLM}, s62
s_lshl_b32 {sROT}, {sROT}, {1 if OPT['rot'] else 3}
"""

def gelu(s):
    o = []
    for T in range(4):
        src = hp(s, T); t = [GT + 4 + e for e in range(4)]; H = GT + 8 + 2 * (T % 2)
        if src[0] == "a":
            u = [GT + e for e in range(4)]
            o += [f"v_accvgpr_read_b32 v{u[e]}, a{src[1]+e}" for e in range(4)]
        else: u = [src[1] + e for e in range(4)]
        o += [f"v_mul_f32 v{t[e]}, v{u[e]}, v{u[e]}" for e in range(4)]
        o += [f"v_fma_f32 v{t[e]}, v{t[e]}, {sGB}, v{vGA}" for e in range(4)]
        o += [f"v_mul_f32 v{t[e]}, v{t[e]}, v{u[e]}" for e in range(4)]
        o += [f"v_exp_f32 v{t[e]}, v{t[e]}" for e in range(4)]
        o += [f"v_add_f32 v{t[e]}, 1.0, v{t[e]}" for e in range(4)]
        o += [f"v_rcp_f32 v{t[e]}, v{t[e]}" for e in range(4)]
        o += [f"v_mul_f32 v{t[e]}, v{t[e]}, v{u[e]}" for e in range(4)]
        o += [f"v_cvt_pk_bf16_f32 v{H + r}, v{t[2*r]}, v{t[2*r+1]}" for r in range(2)]
        o += [f"ds_write_b64 v{vHW}, {v(H, 2)} offset:{8192*(s%2) + 1024*(T//2) + 256*(T%2)}"]
    return list(flat(o))
HR = {s: [I(f"ds_read_b128 {a_(AH[s%2] + 8*o + 4*k, 4)}, v{vHR if k else vHO} offset:{8192*(s%2) + 1024*(o ^ k)}") for o in range(2) for k in range(2)] for s in range(9)}

D1 = GATE; D2 = GATE + 16
def pe_tile(b, fac, ad, off):
    return [f"v_mul_f32 v{b+e}, {fac}, v{b+e}" for e in range(4)] + [f"v_cvt_pk_bf16_f32 v{b+r}, v{b+2*r}, v{b+2*r+1}" for r in range(2)] + \
           [f"ds_write_b64 v{ad}, {v(b, 2)} offset:{off}"]
kvrd = [I(f"ds_read2_b64 {v(D1,4)}, v{vPQ} offset0:10 offset1:11"), I(f"ds_read_b64_tr_b16 {v(D2,2)}, v{vPV} offset:64"), I(f"ds_read_b64_tr_b16 {v(D2+2,2)}, v{vPV} offset:{64 + 4*104}")]
kvst = [I(f"buffer_store_dwordx4 {v(D1,4)}, v{vS1}, {SWS}, 0 offen sc1"), I(f"buffer_store_dword v{D1+3}, v{vS2}, {SWS}, 0 offen sc1"),
        I(f"buffer_store_dwordx4 {v(D2,4)}, v{vS3}, {SWS}, 0 offen sc1")]
pe = [pe_tile(PROJ + 16 + 4*T, f"v{vQF}", vPW2, 64 + 1664*T) for T in (1, 0)] + [kvrd] + \
     [pe_tile(PROJ + 4*T, QS, vPW if T < 2 else vPWP, 1664*(T%2)) for T in (3, 2, 1, 0)] + \
     [W(lgkm=kvrd), [f"v_cndmask_b32 v{D2+e}, v{D2+e}, v{vT0}, {sMASK}" for e in range(4)], kvst]
g0s = gelu(0)

em(RD[0, 0], XRD[0][:4], RD[0, 1], GXR[0], BRD[0], W(lgkm=XRD[0][:4]))
TS = [0] + [4 + 8 * t for t in range(11)]
queue = stream([fill_a, fill_p2, fill_w2t, fill_pe, fill_pe2]); queue2 = stream([fill_s, fill_s2])
for c in range(9):
    slots = []
    for t in range(11):
        ring = WRING + 8 * ((11 * c + t) % 4)
        for T in ((3, 2, 1, 0) if t > 1 else (1, 0, 3, 2) if t else (1, 0)):
            for s in range(2):
                d = p1_acc(t, T); cc = rg(d, 0, 4)
                if c == 0 and s == 0: cc = rg(p1_acc(t, 0), 0, 4) if t >= 2 else "0"
                slots.append([I(f"v_mfma_f32_16x16x32_bf16 {rg(d,0,4)}, {v(ring + 4*s, 4)}, {xreg(c, T, s)}, {cc}")])
                slots[-1][0].deps = RD[c, t][2*s:2*s+2] + [XRD[c][2 * (T ^ 1) + s]]
    arr, frd, fcmp, fbr = sync([last(min(c + 1, 8))])
    for t in range(10):
        slots[TS[t + 1] - 1].append(W(lgkm=RD[c, t + 1] + ([GXR[c]] if t == 0 else []) + ([BRD[t - 1]] if c == 0 and t >= 1 else [])))
    slots[7].append(W(lgkm=XRD[c]))
    rq = XRD[c][4:] + [y for t in range(2, 11) for y in (RD[c, t] + ([BRD[t - 1]] if c == 0 and t < 10 else []))]
    RP = [0, 1, 2, 3, 4, 4, 5, 6] + [k for k in range(8, 56) if k % 3 != 1]
    if c == 0: RP = [0, 1, 2, 3, 4, 4, 5, 6, 7] + [k for k in range(8, 56) if k % 12 not in (1, 7)]
    assert len(RP) >= len(rq) and len(RP) - len(rq) < 3, (len(RP), len(rq))
    for y, k in zip(rq, RP): slots[k].append(y)
    slots[56] += arr; slots[61] += frd
    front(slots[66], fcmp[:1]); slots[66] += fcmp[1:]
    front(slots[68], fbr + stamp(2 if c > 3 else 18))
    if c < 8:
        nx = XRD[c + 1][:4] + RD[c + 1, 0] + RD[c + 1, 1] + [GXR[c + 1]]
        pos = [68, 70, 72, 74, 76, 76, 78, 78, 79, 79, 80, 81, 82]
        slots[83].append(W(lgkm=XRD[c + 1][:4] + RD[c + 1, 0]))
        for y, k in zip(nx, pos): slots[k].append(y)
    pairs = list(LOADS[c + 2]); late = []
    if c < 7: pairs, late = pairs[:12], pairs[12:]
    if OPT["early"]:
        if 0 < c < 7: pairs = pairs[1:]
        if c < 6: late = late + LOADS[c + 3][:1]
    if c == 0: pairs = LOADS[1][OPT['n1']:] + pairs
    if c == 3: pairs = pairs + [[None, clr]]
    if c == 6: late = late + w2t(0)
    if c == 7: pairs = w2pre + code_touch() + pairs + w2t(1)
    if c == 8: pairs = pairs + w2t(2)
    cand = [k for k in range(7, 56, 3)] + [58, 60, 63, 65]
    if OPT["early"] and c < 7: cand = [3] + cand[:OPT.get("ce", 17)]
    if c == 0: cand = list(range(5, 66, 2))
    if c == 7: cand = cand[:3] + cand[3 + OPT["c70"]:3 + OPT["c70"] + OPT["c7"]]
    if c == 8: cand = cand[:OPT.get("c8", 21)]
    for k, (pre, op) in enumerate(pairs): put(slots, cand[(k * len(cand)) // len(pairs)], pre, op)
    for (pre, op), k in zip(late, (69, 71, 73, 75, 77, 83)): put(slots, k, pre, op)
    assert not spread2(slots, gate_math(c), 12 if c == 0 else 4, 30, 16)
    if 1 <= c < 7: queue = spread2(slots, queue, 2, 65, 16)
    if c == 2: assert all("v%d," % (GATE + 3) not in y.text for y in queue)
    if c == 6: assert not queue, [y.text for y in queue[:6]] + [len(queue)]
    if c == 7: queue2 = spread2(slots, queue2, 24, 84, 16)
    if c == 8:
        assert not spread2(slots, queue2, 0, 84, 16)
        k0 = 2 + max(k for k in range(84) if any(y.mn == "v_fmac_f32" for y in slots[k]))
        for k, y in enumerate(dpp + gate_fin): slots[k0 + 2 * k].append(I(y))
        slots[k0 + 19].append(gst)
        spread(slots, pe, 14, 56, 16)
        spread(slots, g0s[:30], 56, 72, 16); spread(slots, g0s[30:48], 72, 84, 16)
    em(slots)
em(stamp())
qrd = f"""
ds_read2_b64 {a_(AQ,4)}, v{vT1} offset0:0 offset1:1
ds_read2_b32 {a_(AQ+4,2)}, v{vT1} offset0:9 offset1:10
ds_read2_b32 {a_(AQ+6,2)}, v{vT1} offset0:11 offset1:12
ds_read2_b32 {a_(AQR,2)}, v{vPQ} offset0:8 offset1:17
"""
g1s = gelu(1)
em(g0s[48:], W(vm=[last(9)], lgkm0=True), "s_barrier", RD2[0, 0], HR[0], RD2[0, 1], g1s[:24], W(lgkm=HR[0]), RD2[0, 2], stamp(7))

def kv_dma(d):
    return link([[[I(f"s_add_u32 {sOM}, {sWKV}, {WS_KV + d*DC + 4096*n}"), I(f"s_add_u32 m0, {sWKV}, {KVS[d%3] + 4096*n}")],
                  I(f"buffer_load_dwordx4 v{vK}, {SWS}, {sOM} offen sc1 lds")] for n in range(5)])
KVD = {d: kv_dma(d) for d in range(8)}
sig1 = I(f"buffer_atomic_add v{vONE}, v{vTMP}, {SDBG}, {sSIG} offen sc1")
poll1_t = f"buffer_load_dword v{vTMP}, v{vPA}, {SDBG}, 0 offen sc1"
poll1 = I(poll1_t)
def convert(t, o):
    src = acc2(t, o); d = packed(t, o); r = []
    if src[0] == "v":
        return [f"v_cvt_pk_bf16_f32 v{d+e}, v{src[1]+2*e}, v{src[1]+2*e+1}" for e in range(8)]
    for h in range(2):
        r += [f"v_accvgpr_read_b32 v{GT+e}, a{src[1]+8*h+e}" for e in range(8)]
        r += [f"v_cvt_pk_bf16_f32 v{d+4*h+e}, v{GT+2*e}, v{GT+2*e+1}" for e in range(4)]
    return r

vK2, vV, vPS = vW2, vHW, vGA
AK = [32, 36]; AK2 = [40, 42]; AV = [44, 52]; AO = [0, 16]; APL = 64
SB = [192, 208, 224]; CR = [240, 16]; Q2 = 32
def kv_off(kt):
    d, r = divmod(kt, 8)
    return KVS[d % 3] + (r // 4) * CH, r % 4
def k_read(kt):
    base, r = kv_off(kt); o = [I(f"ds_read_b128 {a_(AK[kt%2], 4)}, v{vK} offset:{base + 1024*r}")]
    if r == 0: o.append(I(f"ds_read_b64 {a_(AK2[(kt//4)%2], 2)}, v{vK2} offset:{base + 4096}"))
    return o
def v_read(kt):
    base, r = kv_off(kt)
    return [I(f"ds_read_b128 {a_(AV[kt%2] + 4*e, 4)}, v{vV} offset:{base + 4608 + 1216*r + 608*e}") for e in range(2)]
KR = {kt: k_read(kt) for kt in range(64)}; VR = {kt: v_read(kt) for kt in range(64)}

slots = []
for s in range(9):
    for t in range(9):
        wf = AW[(9 * s + t) % 4]
        for o in range(2):
            for k in range(2):
                d = rg(acc2(t, o), 0, 16)
                b = a_(AH[s % 2] + 8 * o + 4 * k, 4)
                slots.append([I(f"v_mfma_f32_32x32x16_bf16 {d}, {a_(wf + 4*k, 4)}, {b}, {'0' if s == 0 and k == 0 else d}")])
                slots[-1][0].deps = RD2[s, t][2*k:2*k+2] + [HR[s][2*o + k]]
step = lambda s: (SLOT if (s + 1) % 3 else -2 * SLOT) & 0xffffffff
p1c, p1b = spin_check(poll1_t, f"v_cmp_gt_u32 vcc, 6, v{vTMP}")
wot = [[f"""
s_mul_i32 s62, {sN}, 18
s_mul_i32 s63, {sW}, 9
s_lshr_b32 s63, s63, 1
s_add_u32 s62, s62, s63
s_lshl_b32 s62, s62, 1
s_bfe_u32 s63, {sJ}, 0x10002
s_add_u32 s62, s62, s63
s_mul_i32 s62, s62, 576
v_lshrrev_b32 v{vTMP}, 3, v0
v_min_u32 v{vTMP}, 4, v{vTMP}
v_and_b32 v{vTW2}, 7, v0
v_lshlrev_b32 v{vTW2}, 7, v{vTW2}
v_min_u32 v{vTW2}, 572, v{vTW2}
v_mul_u32_u24 v{vTMP}, 1152, v{vTMP}
v_add_u32 v{vTMP}, v{vTMP}, v{vTW2}
""", I(f"buffer_load_dword v{vTD}, v{vTMP}, {SWO}, s62 offen{NT['wo']}")]] if OPT["touch"] else []
kvt = link([[f"""
s_lshl_b32 s62, {sN}, 2
s_add_u32 s62, s62, {sW}
s_mul_i32 s62, s62, 1280
v_mul_u32_u24 v{vTMP}, 10, v0
v_lshrrev_b32 v{vTMP}, 6, v{vTMP}
v_lshlrev_b32 v{vTMP}, 7, v{vTMP}
""", I(f"buffer_load_dword v{vTD}, v{vTMP}, {SWS}, s62 offen sc1")]]) if OPT["kvt"] else []
LATE = {}
for s in range(9):
    B = 36 * s
    vm = [last(9 + s + 1)] if s < 8 else [KVD[0][-1][1]]
    if s == OPT['kvw']: vm += kvst + [clr, gst]
    if s == 6: vm += [poll1]
    arr, frd, fcmp, fbr = sync(vm)
    for t in range(9):
        b = B + 4 * t
        n1 = (s, t + 1) if t < 8 else (s + 1, 0)
        if n1[0] < 9: slots[b + 3].append(W(lgkm=RD2[n1] + (HR[s + 1] if t == 8 else [])))
        if t < 6: slots[b] += RD2[s, t + 3][:2]; slots[b + 1] += RD2[s, t + 3][2:]
    LATE[s] = arr + ([I(f"v_add_u32 v{vR2}, {step(s)}, v{vR2}"), I(f"v_add_u32 v{vR2P}, {step(s)}, v{vR2P}")] if s < 8 else [])
    slots[B + 25][1:1] = frd
    if fcmp: slots[B + 27][1].lg += fcmp[0].lg
    LATE[s, "c"] = fcmp[1:]
    front(slots[B + 28], fbr + stamp(4))
    if s < 8:
        nx = RD2[s + 1, 0] + HR[s + 1] + RD2[s + 1, 1] + RD2[s + 1, 2]
        for k, y in enumerate(nx): slots[B + 28 + k // 2].append(y)
    else:
        slots[B + 28] += KR[0]; slots[B + 29] += VR[0]
    if s <= 6:
        pos = [2, 6, 10, 14, 18, 21, 24, 26, 35]
        if OPT["p2e"] or w2t(3 + s): pos = [-5, -2, 2, 4, 7, 10, 12, 15, 18, 20] if s else [2, 4, 6, 8, 10, 12, 14, 16, 18, 20]
        for k, (pre, op) in enumerate(LOADS[9 + s + 2] + w2t(3 + s)): put(slots, B + pos[k], pre, op)
    if s >= 7:
        for k, (pre, op) in enumerate(KVD[s - 7]): put(slots, B + 4 * k + 2, pre, op)
put(slots, 36 * OPT['kvw'] + 29, I(f"v_lshlrev_b32 v{vTMP}, 8, v0"), sig1)
put(slots, 36 * 5 + 20, None, poll1)
for k, y in enumerate(flat([qrd])): slots[[2, 6, 10, 14][k]].append(y)
spread(slots, g1s[24:], 0, 22, 32)
for s in range(1, 8): spread(slots, gelu(s + 1), 36 * s - 13, 36 * s + 22, 32)
for s in range(9):
    B = 36 * s
    front(slots[B + 22], LATE[s]); slots[B + 27][2:2] = LATE[s, "c"]
front(slots[36 * 6 + 29], p1c); front(slots[36 * 6 + 30], p1b)
b8 = 36 * 8
at_addr = [f"""
v_lshlrev_b32 v{vK2}, 3, v0
v_bfe_u32 v{vPS}, v0, 3, 2
v_and_b32 v{vTMP}, 3, v0
v_lshl_add_u32 v{vPS}, v{vPS}, 2, v{vTMP}
v_bfe_u32 v{vTMP}, v0, 2, 1
v_cmp_eq_u32 {sMASK}, 9, v{vPS}
v_mad_u32_u24 v{vV}, v{vTMP}, 9, v{vPS}
v_lshrrev_b32 v{vTMP}, 5, v0
v_cndmask_b32 v{vV}, v{vV}, 18, {sMASK}
v_cmp_lt_u32 {sMASK}, 9, v{vPS}
v_mad_u32_u24 v{vV}, v{vTMP}, 19, v{vV}
v_lshlrev_b32 v{vV}, 4, v{vV}
v_lshl_add_u32 v{vPS}, v{vTMP}, 9, v{vK}
v_mov_b32 v{vTMP}, {LOOB}
v_cndmask_b32 v{vV}, v{vV}, v{vTMP}, {sMASK}
""", [f"ds_read_b128 {a_(4*e, 4)}, v{vTMP}" for e in range(8)], kvt, wot, code_touch()]
spread(slots, at_addr, b8 - 13, b8 + 4, 32)
for n, (t, o) in enumerate(ORD[:15]):
    s0 = b8 + 2 * n + 5
    spread(slots, convert(t, o), s0, min(s0 + 2, b8 + 36), 32)
em(slots)
def q2(h, kt): return Q2 + 8 * h + 2 * (kt % 4)
def q2_build(h):
    b = Q2 + 8 * h
    return f"""
v_accvgpr_read_b32 v{vTMP}, a{AQR+h}
v_mov_b32 v{b+1}, 0
v_mov_b32 v{b+2}, 0
v_mov_b32 v{b+5}, 0
v_mov_b32 v{b+6}, 0
v_cndmask_b32 v{b}, 0, v{vTMP}, vcc
v_cndmask_b32 v{b+3}, 0, v{vTMP}, vcc
v_cndmask_b32 v{b+4}, v{vTMP}, 0, vcc
v_cndmask_b32 v{b+7}, v{vTMP}, 0, vcc
"""
def qk(h, kt, d, c, ka=None, k2=None):
    ka = ka or a_(AK[kt % 2], 4); k2 = k2 or a_(AK2[(kt // 4) % 2], 2)
    return (I(f"v_mfma_f32_32x32x16_bf16 {v(d,16)}, {ka}, {a_(AQ + 4*h, 4)}, {c}"),
            I(f"v_mfma_f32_32x32x8_bf16 {v(d,16)}, {k2}, {v(q2(h, kt), 2)}, {v(d,16)}"))
def maxtree(s, dst, init=None):
    o = [f"v_max3_f32 v{dst}, v{s}, v{s+1}, {('v%d' % init) if init is not None else 'v%d' % (s+1)}"]
    o += [f"v_max3_f32 v{dst}, v{s+2*e}, v{s+2*e+1}, v{dst}" for e in range(1, 8)]
    return o
def set_c(h, m, tmp):
    return [f"v_mov_b32 v{tmp}, v{m}", "s_nop 1", f"v_permlane32_swap_b32 v{m}, v{tmp}", f"v_max_f32 v{m}, v{m}, v{tmp}"] + \
           [f"v_sub_f32 v{CR[h]+e}, 0, v{m}" for e in range(16)]

m0, m1_ = qk(0, 0, SB[0], "0"), qk(1, 0, SB[1], "0")
em("v_cmp_gt_u32 vcc, 32, v0", convert(*ORD[15]), q2_build(0), W(lgkm0=True), m0[0], q2_build(1), m0[1], convert(*ORD[16]), m1_[0], convert(*ORD[17]), m1_[1], stamp(13 + 64))
vM = [vR2, vR2P]
em(maxtree(SB[0], vM[0]), set_c(0, vM[0], vTMP))
u0 = qk(0, 0, SB[0], v(CR[0], 16))
em(maxtree(SB[1], vM[1])[:2], u0[0], maxtree(SB[1], vM[1])[2:], u0[1], set_c(1, vM[1], vTMP))

slots = []
for n in range(128):
    kt, h = divmod(n, 2); s0 = SB[n % 3]
    ex = [I(f"v_exp_f32 v{s0+e}, v{s0+e}") for e in range(16)]
    m1, m2 = qk((n + 1) % 2, (n + 1) // 2, SB[(n + 1) % 3], v(CR[(n + 1) % 2], 16)) if n < 127 else (None, None)
    p2 = None
    if n > 0:
        km, hm = divmod(n - 1, 2)
        p2 = I(f"v_smfmac_f32_32x32x32_bf16 {a_(AO[hm],16)}, {a_(AV[km%2] + 4, 4)}, {v(SB[(n-1)%3] + 8, 8)}, v{vIDX}")
    p1 = I(f"v_smfmac_f32_32x32x32_bf16 {a_(AO[h],16)}, {a_(AV[kt%2], 4)}, {v(s0, 8)}, v{vIDX}")
    if m1: m1.deps = [KR[(n + 1) // 2][0]]; m2.deps = [KR[(n + 1) // 8 * 4][1]]
    if p2: p2.deps = [VR[km][1]]
    p1.deps = [VR[kt][0]]
    u = [[m1], [m2], [p2], [p1]]
    if h == 0 and kt < 63:
        u[0] += KR[kt + 1]; u[2] += VR[kt + 1]; u[3].append(W(lgkm=KR[kt + 1]))
    if h == 1 and kt < 63: u[3].append(W(lgkm=VR[kt + 1]))
    slots.append((u, ex))
events = {}
def sched(pairs, n0, n1):
    for k, pr in enumerate(pairs):
        events.setdefault(n0 + (k * (n1 - n0)) // len(pairs), []).append(pr)
for d in range(2, 8): sched(KVD[d], 16 * (d - 2) + 1, 16 * (d - 2) + 11)
pa = [0, 1, 5, 6, 9, 10, 14, 15]; pb = [p for p in range(18) if p not in pa]
PST = []
for grp in (pa, pb):
    for o in range(2):
        for k, p in enumerate(grp):
            t, pi = divmod(p, 2)
            PST.append([I(f"s_add_u32 {sOS}, {sPS1 if o else sPS0}, {4096*t}") if k == 0 or grp[k-1] // 2 != t else None,
                        I(f"buffer_store_dwordx4 {v(packed(t,o) + 4*pi, 4)}, v{vPS}, {SWS}, {sOS} offen offset:{2048*pi} sc1")])
PST = link(PST); sched(PST, 0, OPT["st_end"])
sched([[W(vm=[PST[15][1]]), flag()]], OPT["fa"], OPT["fa"] + 1)
sched(link([[[I(f"s_add_u32 {sFLG}, {sFLG}, {WS_PF2 - WS_PF}"), W(vm=[PST[-1][1]])], flag()]]), OPT["fl"], OPT["fl"] + 1)
vWOa, vWOb, vPL, vL4 = vR2, vR2P, vHR, vTW2
WOD = []
for c in range(9):
    if c == 0: pre = f"""
v_lshrrev_b32 v{vWOa}, 5, v0
v_bfe_u32 v{vWOb}, v0, 2, 3
v_mad_u32_u24 v{vWOa}, v{vWOa}, 36, v{vWOb}
v_mad_u32_u24 v{vWOa}, {sW}, 9, v{vWOa}
v_mul_u32_u24 v{vWOa}, 1152, v{vWOa}
v_and_b32 v{vL4}, 3, v0
v_lshl_add_u32 v{vWOb}, v{vL4}, 2, v{vWOa}
"""
    elif c == 8: pre = f"""
v_lshrrev_b32 v{vWOa}, 4, v0
v_lshl_add_u32 v{vWOa}, {sW}, 2, v{vWOa}
v_bfe_u32 v{vWOb}, v0, 2, 1
v_lshl_add_u32 v{vWOa}, v{vWOa}, 1, v{vWOb}
v_bfe_u32 v{vWOb}, v0, 3, 1
v_lshl_add_u32 v{vWOa}, v{vWOa}, 1, v{vWOb}
v_mad_u32_u24 v{vWOa}, v{vWOa}, 9, 8
v_mul_u32_u24 v{vWOa}, 1152, v{vWOa}
v_lshl_add_u32 v{vWOb}, v{vL4}, 2, v{vWOa}
"""
    if c in (0, 8): WOD.append([pre, I(f"v_lshl_add_u32 v{vWOa}, v{vL4}, 4, v{vWOa}")])
    if c < 8:
        so = [I(f"s_add_u32 {sOE}, {sROT}, {c}"), I(f"s_and_b32 {sOE}, {sOE}, 7"), I(f"s_mul_i32 {sOE}, {sOE}, {72*1152}"), I(f"s_add_u32 {sOQ}, {sOE}, {sCM}")]
        so2 = I(f"s_add_u32 {sOE}, {sOE}, {sCH}"); r1, r2 = sOQ, sOE
    else: so = []; so2 = None; r1, r2 = sCM, sCH
    WOD.append([so + [I(f"s_add_u32 m0, {sWWO}, {2304*c}")], I(f"buffer_load_dwordx4 v{vWOa}, {SWO}, {r1} offen{NT['wo']} lds")])
    WOD.append([[so2, I(f"s_add_u32 m0, {sWWO}, {2304*c + 1024 - 64}")], I(f"buffer_load_dwordx4 v{vWOa}, {SWO}, {r1} offen offset:64{NT['wo']} lds")])
    WOD.append([I(f"s_add_u32 m0, {sWWO}, {2304*c + 2048}"), I(f"buffer_load_dword v{vWOb}, {SWO}, {r2} offen lds")])
WOD = link(WOD); sched(WOD, OPT["wo0"], OPT.get("wo1", 114))
TACC = 68; TSEL = 88; TB2 = 172 + 0; vTA, vTB, vPP, vG1, vG2, vOL, vOLR, vO0, vO1, vO2, vOW, vOWH, vWR, vWRH = range(48, 62); OF = 100; TW = 172
poll2_t = f"buffer_load_dword v{vTB}, v{vPP}, {SWS}, {sPP} offen sc1"
PLI = [(m, c) for m in range(4) for c in range(4)] + [(m, c) for m in range(4) for c in range(4, 9)]
PLD = link([[I(f"s_add_u32 {sOL}, {sPLM if c < 8 else sPLH}, {m*4*R + (4096 if 4 <= c < 8 else 0)}") if c % 4 == 0 else None,
             I(f"buffer_load_dwordx4 {a_(APL + 4*(9*m + c), 4)}, v{vPL}, {SWS}, {sOL} offen offset:{1024*(c%4)} sc1")] for m, c in PLI])
for stg, pl in enumerate((OPT["pa"], OPT["pl"])):
    poll2 = I(poll2_t)
    pre = f"""
v_lshlrev_b32 v{vPP}, 5, v{vPA}
v_lshrrev_b32 v{vTA}, 4, v0
v_mul_u32_u24 v{vPL}, {R}, v{vTA}
v_add_u32 v{vPL}, v{vPL}, v{vPA}
""" if stg == 0 else f"s_add_u32 {sPP}, {sPP}, {WS_PF2 - WS_PF}"
    sched(link([[pre, poll16(poll2)]]), pl, pl + 1)
    p2c, p2b = spin_check(poll2_t, f"v_cmp_ne_u32 vcc, 1, v{vTB}")
    sched([[[W(vm=[poll2])], p2c], [None, p2b]], pl + 5, pl + 6)
sched(PLD[:16], OPT["pa"] + 6, OPT["pl"] + 6); sched(PLD[16:], OPT["pl"] + 6, OPT["ld_end"])
gld1 = I(f"buffer_load_dword v{vG1}, v{vTB}, {SWS}, {sG1} offen sc1"); gld2 = I(f"buffer_load_dword v{vG2}, v{vTB}, {SWS}, {sG2} offen sc1")
b2l = [I(f"buffer_load_dwordx2 {v(TB2 + 2*t, 2)}, v{vTB}, {SB2}, {sCM if t < 4 else sCH} offen offset:{32*(t%4)}") for t in range(5)]
misc = [[f"v_and_b32 v{vTB}, 31, v0\nv_lshlrev_b32 v{vTB}, 7, v{vTB}", gld1], [f"v_lshlrev_b32 v{vTB}, 3, v{vPA}", gld2],
        [f"v_lshlrev_b32 v{vTB}, 3, v{vTA}", b2l[0]]] + [[None, x] for x in b2l[1:]] + code_touch()
sched(link(misc), 96, 112)
for d in range(7):
    arr, frd, fcmp, fbr = sync([KVD[d + 1][-1][1]])
    n = 16 * d + 12
    if arr:
        slots[n][0][3][1].vm += arr[0].vm; slots[n][0][3].append(arr[1])
        slots[n + 1][0][1] += frd
        slots[n + 1][0][3][1].lg += fcmp[0].lg; slots[n + 1][0][3].append(fcmp[1])
    front(slots[n + 2][0][0], fbr)
arr, frd, fcmp, fbr = sync([WOD[-1][1]])
if arr:
    slots[124][0][3][1].vm += arr[0].vm; slots[124][0][3].append(arr[1])
    slots[126][0][2] += frd; slots[127][0][2] += fcmp
front(slots[127][0][3], fbr)
pos = [slots[n][0][p] for n in range(128) for p in (0, 2, 3)]
cur = 0; prevop = -1
for n in range(128):
    for pre, op in events.get(n, []):
        pre = list(flat([pre])); ops = list(flat([op]))
        k = max(cur, 3 * n, 2)
        okpos = str(OPT["spos" if "store_dwordx4" in ops[0].mn else "lpos"])
        if not any(y.kind == "vmem" for y in ops): okpos = "012345"
        while str(k % 6) not in okpos: k += 1
        m = 0
        while m < len(pre) and pre[m].kind == "salu" and not isinstance(pre[m], W): m += 1
        free = []
        for j in range(k - 1, max(prevop, k - 7), -1):
            if pos[j][0] is not None and not any(y.label for y in pos[j]): free = [j] * max(nfree(pos[j])[0], 0) + free
        m = min(m, len(free))
        for y, j in zip(pre[:m], free[len(free) - m:]): pos[j].insert(nfree(pos[j])[1], y)
        rest = pre[m:]
        if rest and all(y.kind == "salu" for y in rest) and not any(y.label for y in pos[k]): pos[k][nfree(pos[k])[1]:nfree(pos[k])[1]] = rest; rest = []
        pos[k] += rest + ops
        prevop = k; cur = k + (OPT["sgap"] if "store_dwordx4" in ops[0].mn else 1)
for n in range(128):
    u, ex = slots[n]
    if n in (1, 17, 33, 37, 49, 61, 65, 73, 81, 89, 93, 113): u[0] += stamp(8)
    em(u[0], ex[0:4], u[1], ex[4:8], u[2], ex[8:12], u[3], ex[12:])
em(f"s_lshl_b32 {sOS}, {sJ}, 11", f"s_add_u32 {sOS}, {sOS}, {sOST}", f"v_smfmac_f32_32x32x32_bf16 {a_(AO[1],16)}, {a_(AV[1] + 4, 4)}, {v(SB[127%3] + 8, 8)}, v{vIDX}")
em(stamp(9 + 64))

OV = [SB[0], SB[2]]; XT = CR[0]
lim = f2u(2.0 ** 60) if not OPT["force_fb"] else f2u(0.5)
def o_read(h): return [f"v_accvgpr_read_b32 v{OV[h]+e}, a{AO[h]+e}" for e in range(10)]
def o_max(h):
    return [f"v_max3_f32 v{SB[1]+h}, |v{OV[h]}|, |v{OV[h]+1}|, |v{OV[h]+2}|"] + [f"v_max3_f32 v{SB[1]+h}, |v{OV[h]+e}|, |v{OV[h]+e+1}|, v{SB[1]+h}" for e in (3, 5, 7)]
em(f"""
s_lshl_b32 {sOL}, {sJ}, 8
s_add_u32 {sOL}, {sOL}, {sOST}
s_add_u32 {sOL}, {sOL}, 32768
""", o_read(0), f"v_rcp_f32 v{SB[1]+2}, v{OV[0]+9}", o_max(0), o_read(1), f"v_rcp_f32 v{SB[1]+3}, v{OV[1]+9}", o_max(1), f"""
v_max_f32 v{SB[1]}, v{SB[1]}, v{SB[1]+1}
v_add_f32 v{SB[1]+1}, v{OV[0]+9}, v{OV[1]+9}
v_fmac_f32 v{SB[1]+1}, {hex(f2u(2.0**-60))}, v{SB[1]}
v_cmp_ngt_f32 vcc, {hex(lim)}, v{SB[1]+1}
""", W(vm=[gld1]), f"""
s_cbranch_vccnz L_fb
L_fbdone:
v_mul_f32 v{SB[1]+2}, v{SB[1]+2}, v{vG1}
v_mul_f32 v{SB[1]+3}, v{SB[1]+3}, v{vG1}
""")
ost = []
for h in range(2):
    em([f"v_mul_f32 v{OV[h]+e}, v{OV[h]+e}, v{SB[1]+2+h}" for e in range(9)])
    em([f"v_cvt_pk_bf16_f32 v{OV[h]+12+e}, v{OV[h]+2*e}, v{OV[h]+2*e+1}" for e in range(4)])
    ost.append(I(f"buffer_store_dwordx4 {v(OV[h]+12, 4)}, v{vK}, {SWS}, {sOS} offen offset:{1024*h} sc1")); em(ost[-1])
ost.append(I(f"buffer_store_dword v{SB[1]}, v{vOL}, {SWS}, {sOL} offen sc1"))
em(f"""
v_cvt_pk_bf16_f32 v{SB[1]}, v{OV[0]+8}, v{OV[1]+8}
v_and_b32 v{vOL}, 31, v0
v_lshrrev_b32 v{vOLR}, 5, v0
v_lshlrev_b32 v{vOLR}, 2, v{vOLR}
v_lshl_add_u32 v{vOL}, v{vOL}, 3, v{vOLR}
""", ost[-1], stamp(32))
em(f"""
s_sub_u32 {sFLG}, {sFLG}, {WS_PF2 - WS_OF}
v_and_b32 v{vWR}, 16, v{vK}
v_mov_b32 v{vWRH}, 0x3f80
v_lshlrev_b32 v{vWRH}, v{vWR}, v{vWRH}
v_lshrrev_b32 v{vWR}, 5, v{vPA}
""", W(vm=b2l + [PLD[-1][1]]))
for e in range(10):
    if e < 8: em(f"v_cmp_eq_u32 vcc, {e}, v{vWR}")
    em(f"v_lshlrev_b32 v{TACC + 2*e}, 16, v{TB2 + e}", f"v_and_b32 v{TACC + 2*e + 1}, 0xffff0000, v{TB2 + e}")
    if e < 8: em(f"v_cndmask_b32 v{TSEL + e}, 0, v{vWRH}, vcc")
red = []
for t in range(5):
    for m in range(4):
        for c in ((2 * t, 2 * t + 1) if t < 4 else (8,)):
            red.append([I(f"v_mfma_f32_16x16x32_bf16 {v(TACC + 4*t, 4)}, {v(TSEL + 4*(c%2), 4)}, {a_(APL + 4*(9*m + c), 4)}, {v(TACC + 4*t, 4)}")])
tail_addr = f"""
v_mul_u32_u24 v{vWR}, {WOR}, v{vTA}
v_add_u32 v{vWR}, {WOB}, v{vWR}
v_bfe_u32 v{vTB}, v0, 2, 2
v_lshl_add_u32 v{vWRH}, v{vTB}, 4, v{vWR}
v_lshl_add_u32 v{vWR}, v{vTB}, 6, v{vWR}
v_lshl_add_u32 v{vWR}, v{vL4}, 3, v{vWR}
v_and_b32 v{vTB}, 1, v0
v_lshl_add_u32 v{vWRH}, v{vTB}, 3, v{vWRH}
s_lshl_b32 s62, {sFH}, 8
v_add_u32 v{vOL}, s62, v{vPA}
v_lshrrev_b32 v{vOLR}, 1, v{vOL}
v_lshl_add_u32 v{vOLR}, v{vTA}, 10, v{vOLR}
v_lshl_add_u32 v{vOL}, v{vTA}, 9, v{vOL}
v_sub_f32 v{vG2}, 1.0, v{vG2}
s_mul_i32 s62, {sW}, 2304
v_mul_u32_u24 v{vOW}, 9, v{vPA}
v_lshl_add_u32 v{vOW}, v{vTA}, 3, v{vOW}
v_add_u32 v{vOW}, s62, v{vOW}
s_and_b32 s63, {sJ}, 1
s_xor_b32 s63, s63, 1
s_lshl_b32 s63, s63, 7
v_lshrrev_b32 v{vTB}, 5, v0
v_lshl_add_u32 v{vOWH}, v{vTB}, 18, v{vOW}
v_add_u32 v{vOWH}, s63, v{vOWH}
s_and_b32 s63, {sJ}, 1
s_lshl_b32 s63, s63, 4
v_add_u32 v{vOW}, s63, v{vOW}
v_add_u32 v{vK2}, s62, v{vK}
"""
out_addr = []
for n in range(3):
    o = vO0 + n
    out_addr += [f"v_add_u32 v{vTMP}, {64*n}, v0", f"v_mul_u32_u24 v{o}, 7282, v{vTMP}", f"v_lshrrev_b32 v{o}, 16, v{o}", f"v_mul_u32_u24 v{o}, 1008, v{o}", f"v_lshl_add_u32 v{o}, v{vTMP}, 4, v{o}"]
out_addr += [f"v_lshl_add_u32 v{vO2}, v{vTA}, 28, v{vO2}"]
FR = [("a", 4 * k) for k in range(16)] + [("a", 208 + 4 * k) for k in range(12)] + [("a", 64 + 4 * k) for k in range(36)] + [("v", TW + 4 * (k % 20)) for k in range(26)]
def wo_read(n):
    c, r = divmod(n, 10); t, s = divmod(r, 2); o = []
    for rho in range(2):
        d = rg(FR[n], 2 * rho, 2)
        if t < 4: o.append(I(f"ds_read_b64_tr_b16 {d}, v{vWR} offset:{2304*c + 1024*(t//2) + 512*s + 256*rho + 32*(t%2)}"))
        else: o.append(I(f"ds_read_b64_tr_b16 {d}, v{vWRH} offset:{2304*c + 2048 + 128*s + 64*rho}"))
    return o
WRD = [wo_read(n) for n in range(90)]
def wo_batch(n0, n1):
    o = []
    for n in range(n0, n1):
        if n >= 6 and n % 2 == 0: o.append(W(lgkm=WRD[n - 5]))
        o += WRD[n]
    return o
poll3_t = f"buffer_load_dword v{vTB}, v{vPP}, {SWS}, {sOP} offen sc1"
poll3 = I(poll3_t)
p3c, p3b = spin_check(poll3_t, f"v_cmp_ne_u32 vcc, 1, v{vTB}", sleep=OPT["slp"])
FK_, PK_, NPRE = OPT["fk"], OPT["pk"], OPT["npre"]
fl = flag()
red[FK_ - 1].append(fl[0]); red[FK_] += [W(vm=ost)] + fl[1:] + stamp(32)
if PK_ < 36: red[PK_] += poll16(poll3)
assert not spread2(red, [tail_addr], 0, 24, 16)
k = 0
for sl in red[20:]:
    if len(sl) == 1: sl += wo_batch(k, k + 1); k += 1
em(red)
if PK_ >= 36: em(wo_batch(k, k + PK_ - 36), poll16(poll3)); k += PK_ - 36
em(wo_batch(k, NPRE), out_addr, [f"v_mul_f32 v{TACC+e}, v{TACC+e}, v{vG2}" for e in range(20)], stamp(33), W(vm=[poll3]), p3c, "s_nop 0", p3b, stamp(33))
OLD = []
for ks in range(16):
    pre = [f"s_add_u32 {sOL}, {sROT}, {ks//2}", f"s_and_b32 {sOL}, {sOL}, 7", f"s_lshl_b32 {sOL}, {sOL}, 12", f"s_add_u32 {sOL}, {sOL}, {sOLD}"] if ks % 2 == 0 else None
    OLD.append([pre, I(f"buffer_load_dwordx4 {v(OF + 4*ks, 4)}, v{vOL}, {SWS}, {sOL} offen offset:{2048*(ks%2)} sc1")])
for e in range(4):
    OLD.append([f"s_add_u32 {sOL}, {sOLD}, 32768" if e == 0 else None, I(f"buffer_load_dwordx2 {v(OF + 64 + 2*e, 2)}, v{vOLR}, {SWS}, {sOL} offen offset:{256*e} sc1")])
OLD = link(OLD)
NP2 = OPT.get('np2', 60)
em(OLD[:10], wo_batch(NPRE, NP2), stamp(32))
fin = []
for n in range(90):
    c, r = divmod(n, 10); t, s = divmod(r, 2)
    fin.append([I(f"v_mfma_f32_16x16x32_bf16 {v(TACC + 4*t, 4)}, {rg(FR[n], 0, 4)}, {v(OF + 8*c + 4*s, 4)}, {v(TACC + 4*t, 4)}")])
    fin[n][0].deps = WRD[n] + ([OLD[2*c + s][1]] if c < 8 else [OLD[16 + 2*s][1], OLD[17 + 2*s][1]])
    if r == 9 and c < 8: fin[n].append(W(vm=[OLD[2 * c + 3][1] if c < 7 else OLD[-1][1]], lgkm=WRD[10 * c + 19]))
    if n + 20 >= 84 and n + 20 < 90: fin[n] += WRD[n + 20]
    if n % 2 == 1 and NP2 + n // 2 < 84: fin[n] += WRD[NP2 + n // 2]
for k, p in enumerate((4, 6, 14, 16, 24, 26, 32, 34, 36, 38)): put(fin, p, *OLD[10 + k])
em(W(vm=[OLD[1][1]], lgkm=WRD[9]), stamp(32), fin)
em(stamp(32))
for t in range(5):
    em([f"v_cvt_pk_bf16_f32 v{TACC + 4*t + r}, v{TACC + 4*t + 2*r}, v{TACC + 4*t + 2*r + 1}" for r in range(2)])
    em(f"ds_write_b64 v{vOW if t < 4 else vOWH}, {v(TACC + 4*t, 2)} offset:{32*(t%4)}")
ord_ = [I(f"ds_read_b128 {v(OF + 4*n, 4)}, v{vK2} offset:{1024*n}") for n in range(3)]
em(ord_)
for n in range(3):
    em(W(lgkm=[ord_[n]]), f"buffer_store_dwordx4 {v(OF + 4*n, 4)}, v{vO0 + n}, {SOUT}, {sOUT} offen" + ["", " sc1", " nt", " sc0 sc1"][OPT["outsc"]])
if OPT["stamps"]:
    em("s_waitcnt vmcnt(0)", stamp(127), f"v_mov_b32 v1, 0")
    for k in range(nst[0]): em(f"v_writelane_b32 v1, s{84+k}, {k}")
    em(f"""
s_lshl_b32 s62, s2, 2
s_add_u32 s62, s62, {sW}
s_lshl_b32 s62, s62, 6
s_add_u32 s62, s62, {WS_ST}
v_cmp_gt_u32 vcc, 16, v0
v_lshlrev_b32 v2, 2, v0
v_mov_b32 v3, {OOB}
v_cndmask_b32 v2, v3, v2, vcc
buffer_store_dword v1, v2, {SWS}, s62 offen
""")
if "delay" in OPT:
    em(f"""
s_add_u32 s62, s{84 + OPT['delay']}, 7000
s_mov_b32 {sSP}, 100000
L_dly:
s_memrealtime s[80:81]
s_sub_u32 {sSP}, {sSP}, 1
s_cbranch_scc1 L_end
s_waitcnt lgkmcnt(0)
s_sub_u32 s63, s80, s62
s_cmp_lt_i32 s63, 0
s_cbranch_scc1 L_dly
""")
em("L_end:", "s_endpgm")

FK, FK2, FV, FM = 100, 116, 120, 152
fb = [f"""
L_fb:
v_cmp_gt_u32 vcc, {LOOB}, v{vV}
v_mov_b32 v{FM}, {OOB}
s_mov_b32 s62, {WS_KV}
v_cndmask_b32 v{vV}, v{FM}, v{vV}, vcc
v_mov_b32 v{FM}, 0xff7fffff
v_mov_b32 v{FM+1}, 0xff7fffff
L_fb1:
s_add_u32 s63, s62, 4096
"""]
fbk = [f"buffer_load_dwordx4 {v(FK + 4*r, 4)}, v{vK}, {SWS}, s62 offen offset:{1024*r} sc1" for r in range(4)] + [f"buffer_load_dwordx2 {v(FK2, 2)}, v{vK2}, {SWS}, s63 offen sc1"]
fb += fbk + ["s_waitcnt vmcnt(0)"]
for r in range(4):
    fb += [qk(0, r, SB[0], "0", v(FK + 4 * r, 4), v(FK2, 2)), qk(1, r, SB[1], "0", v(FK + 4 * r, 4), v(FK2, 2)), "s_nop 15",
           maxtree(SB[0], FM, FM), maxtree(SB[1], FM + 1, FM + 1)]
fb += [f"""
s_add_u32 s62, s62, {CH}
s_cmp_lt_u32 s62, {WS_KV + 16*CH}
s_cbranch_scc1 L_fb1
""", set_c(0, FM, FM + 2), set_c(1, FM + 1, FM + 2), [f"v_accvgpr_write_b32 a{e}, 0" for e in range(32)], f"""
s_mov_b32 s62, {WS_KV}
L_fb2:
s_add_u32 s63, s62, 4096
"""] + fbk + [f"s_add_u32 s63, s62, 4608"]
for r in range(4):
    if r == 2: fb += [f"s_add_u32 s63, s63, 2432"]
    fb += [f"buffer_load_dwordx4 {v(FV + 8*r + 4*e, 4)}, v{vV}, {SWS}, s63 offen offset:{1216*(r%2) + 608*e} sc1" for e in range(2)]
fb += ["s_waitcnt vmcnt(0)"]
for r in range(4):
    fb += [qk(0, r, SB[0], v(CR[0], 16), v(FK + 4 * r, 4), v(FK2, 2)), qk(1, r, SB[1], v(CR[1], 16), v(FK + 4 * r, 4), v(FK2, 2)), "s_nop 15"]
    for h in range(2):
        fb += [[f"v_exp_f32 v{SB[h]+e}, v{SB[h]+e}" for e in range(16)], "s_nop 1"]
        fb += [f"v_smfmac_f32_32x32x32_bf16 {a_(AO[h],16)}, {v(FV + 8*r + 4*e, 4)}, {v(SB[h] + 8*e, 8)}, v{vIDX}" for e in range(2)]
fb += [f"""
s_add_u32 s62, s62, {CH}
s_cmp_lt_u32 s62, {WS_KV + 16*CH}
s_cbranch_scc1 L_fb2
s_nop 15
""", o_read(0), o_read(1), f"v_rcp_f32 v{SB[1]+2}, v{OV[0]+9}", f"v_rcp_f32 v{SB[1]+3}, v{OV[1]+9}", "s_nop 1", "s_branch L_fbdone"]
OUTL.extend(flat(fb))

resolve_waits(P)
P2 = check(P)
O2 = check(OUTL)
if OPT.get("x_nospin"): P2 = [x for x in P2 if x.mn != "s_cbranch_vccnz"]
if OPT.get("x_nodma"): P2 = [x for x in P2 if not (getattr(x, "dma", False) and any(s in x.text for s in (SW1, SX, SWQ, SEX, SW2)))]
if OPT.get("x_nosync"): P2 = [x for x in P2 if not (x.mn in ("ds_add_u32", "s_cbranch_vccz") or x.text.startswith((f"ds_read_b32 v{vC},", "v_cmp_le_u32 vcc")))]
if OPT.get("x_nobr"): P2 = [x for x in P2 if x.mn != "s_cbranch_vccz"]
if OPT.get("x_notr"): P2 = [x for x in P2 if x.mn != "ds_read_b64_tr_b16"]
if OPT.get("x_nogelu"): P2 = [x for x in P2 if not (x.kind in ("valu", "trans") and x.wr and x.wr[0][0] == "v" and 32 <= x.wr[0][1] < 40 and "cndmask" not in x.mn and "mov" not in x.mn)]
if OPT.get("x_nost"): P2 = [x for x in P2 if not (x.mn == "buffer_store_dwordx4" and f"v{vPS}," in x.text)]
if OPT.get("x_nold"): P2 = [x for x in P2 if not (x.mn == "buffer_load_dwordx4" and x.text.split()[1].startswith("a["))]
if OPT.get("x_nokv"): P2 = [x for x in P2 if not any(x is KVD[d][n][1] for d in range(2, 8) for n in range(5))]
if OPT.get("x_nowo"): P2 = [x for x in P2 if not (getattr(x, "dma", False) and SWO in x.text)]
hdr = open(os.path.join(os.path.dirname(os.path.abspath(__file__)), "..", "cdna_kernels", NAME + ".s.ref")).read().split("; Override launch")[0]
src = hdr + f"""; Generated by gen/gen.py (hand-written generator).
; @launch grid=(256,1,1) block=(256,1,1) lds={LDS_BYTES}
.amdgcn_target "amdgcn-amd-amdhsa--gfx950"
.text
.globl {NAME}_kernel
.p2align 8
.type {NAME}_kernel,@function
{NAME}_kernel:
""" + render(P2) + render(O2) + f"""L_codeend:
    s_endpgm
.section .rodata,"a"
.p2align 6
.amdhsa_kernel {NAME}_kernel
  .amdhsa_next_free_vgpr 512
  .amdhsa_next_free_sgpr 102
  .amdhsa_accum_offset 256
  .amdhsa_group_segment_fixed_size 0
  .amdhsa_kernarg_size 112
  .amdhsa_user_sgpr_count 2
  .amdhsa_user_sgpr_kernarg_segment_ptr 1
  .amdhsa_system_sgpr_workgroup_id_x 1
.end_amdhsa_kernel
"""
open(sys.argv[1], "w").write(src)
print("instrs:", len(P2), len(O2))
```

```python
import sys, math, struct, os
from asm import *

NAME = "gated_mix__grouped_kv_mqa__dense_activation_gelu__prompt"
OPT = dict(off=-40, b2t=0, lpos=245, spos=13, sgap=1, slp=0, lp=1, rho=1, h8=1, early=0, fk=12, pk=6, bk=24, np2=62, ea=121, fz=125, lpos2=245, tlb=0, ct=1, hoist=0, nt0=0, c1=65, p2e=0, kvw=1, w2r=1, kvt=1, f1=2, ntw1=0, ntx=0, ntq=0, ntw2=0, ntwo=0, n1=6, perm=6, ta=0, tb=0, tc=0, c7=13, c70=0, stamps=0, force_fb=0, spin=1 << 18, sync=1, touch=1, st_end=64, fa=35, fl=70, pa=58, pl=81, ld_end=119, wo0=66, rot=1, outsc=2)
for a in sys.argv[2:]:
    k, v = a.split("="); OPT[k] = int(v)

def f2u(x): return struct.unpack("<I", struct.pack("<f", x))[0]
def v(a, n=1): return f"v{a}" if n == 1 else f"v[{a}:{a+n-1}]"
def a_(a, n=1): return f"a{a}" if n == 1 else f"a[{a}:{a+n-1}]"
def rg(r, off=0, n=1): return (v if r[0] == "v" else a_)(r[1] + off, n)

WS_KV = 0; CH = 9472; DC = 2 * CH
WS_G = 0x300000
WS_PF = 0x30000
WS_OF = 0x50000
WS_PF2 = 0x70000
WS_ST = 0x90000
WS_O = 0xa0000
WS_P = 0x400000; R = 73728
OOB = 0x40000000
WR = 10784; SLOT = 4 * WR; TOP = 3 * SLOT
XB = TOP; HB = TOP; TMP = TOP + 16384; BIAS = TOP + 32768; CNT = BIAS + 1152
KVS = [0, 20480, 40960]
WOR = 20768; WOB = 61440
LDS_BYTES = 163840; LOOB = 0x40000
SX, SW1, SWQ, SEX, SW2, SWO, SWS, SOUT, SB1, SB2, SGW, SDBG = [f"s[{4+4*k}:{7+4*k}]" for k in range(12)]
sI, sJ, sW, sWB = "s56", "s57", "s58", "s59"
sCM, sCH = "s60", "s61"
sO1, sOQ, sOE, sOM, sXT, sN = "s64", "s65", "s66", "s67", "s68", "s69"
sGB, sQS, sWKV, sWWO, sSP = "s70", "s71", "s72", "s73", "s74"
sFH, sROT, sOS, sOL, sXB = "s75", "s76", "s77", "s78", "s79"
sPC = "s[0:1]"; sFLG = "s3"
sPS0, sPS1, sPLM, sPLH = "s36", "s37", "s38", "s39"
sPP, sOP, sG1, sG2 = "s44", "s45", "s46", "s47"
sOST, sOLD, sOUT, sSIG = "s52", "s53", "s54", "s55"
sMASK = "s[82:83]"
sPERM, sX0 = sOS, sOL
sO1A, sRHO = "s67", "s71"
sW2R, sW2H, sW2S = sOQ, sOE, sXT
ORDERS = ["014235678", "125306487", "236014578", "301245687", "012734568", "123805647", "230156478", "301264587"]
if OPT["perm"] == 0: ORDERS = ["012345678"] * 8
if OPT["perm"] == 3: ORDERS = ["013245678", "124036587", "205134678", "012635478", "120743568", "201845367", "012345678", "120453687"]
if OPT["perm"] == 5: ORDERS = ["012534678", "123640578", "234701568", "340812567", "401235678", "012346785", "123407856", "234018567"]
if OPT["perm"] == 6: ORDERS = ["013245678", "120435678", "201354678", "012346578", "120345768", "201345687", "012345678", "120345678"]
if OPT["perm"] == 9: ORDERS = ["013245678", "120435678", "201354678", "012345678", "012346578", "120345768", "201345687", "120345678"]
if OPT["perm"] == 7: ORDERS = ["014235678", "123504678", "230164578", "301247568", "012345867", "123045678", "230145678", "301245678"]
if OPT["perm"] == 2: ORDERS = ["021345678", "103245678", "012435678", "102354678", "012346578", "102345768", "012345687", "102345678"]
if OPT["perm"] == 8: ORDERS = ["012345678", "123456780", "234567801", "345678012", "456780123", "567801234", "670812345", "708123456"]
for o in ORDERS: assert sorted(o) == list("012345678")
def perm_word(o): return sum(int(ch) << (4 * k) for k, ch in enumerate(o[1:]))
vR2, vW2, vHW, vHR, vGA, vC, vK, vTD, vONE, vR2P, vCA, vTW2, vIDX, vPA, vTMP = range(1, 16)
GT = 32; vHO = 44
ACCV = 48
PROJ = 48; XR = 72; WRING = 136; GATE = 168
(vW1, vWQ, vWQT, vEX, vX, vX2, vR1a, vR1b, vR1xa, vR1xb, vTID, vXR0, vXR1, vXR2, vXR3, vW1H, vG4, vW1B,
 vPW, vPWP, vPW2, vPQ, vPV, vS1, vS2, vS3, vQF, vT0, vT1, vT2, vBR, vGX) = range(191, 223)
AW = [192, 200, 240, 248]; AH = [176, 208]; AQ = 224; AQR = 232

def hp(s, T): return ("v", 224 + 16 * s + 4 * T) if s < 2 else ("a", 16 * (s - 2) + 4 * T)
ORD = [(t, o) for t in range(9) for o in range(2)]
ATILES = ORD[6:11]
def acc2(t, o):
    n = ORD.index((t, o))
    if n == 10: return ("v", 16)
    if (t, o) in ATILES: return ("a", 112 + 16 * (n - 6))
    return ("v", ACCV + 16 * (n if n < 6 else n - 5))
def packed(t, o): return ACCV + 8 * ORD.index((t, o))

P = []; OUTL = []
def em(*x): P.extend(flat(x))
nst = [0]
def stamp(mask=1):
    if not (OPT["stamps"] & mask): return []
    k = nst[0]; nst[0] += 1
    assert k < 16
    return list(flat([f"{'s_memtime' if OPT.get('cyc') else 's_memrealtime'} s[80:81]", "s_waitcnt lgkmcnt(0)", f"s_mov_b32 s{84+k}, s80"]))

nlab = [0]
def spin_check(load_text, cmp_text, sleep=2):
    k = nlab[0]; nlab[0] += 1
    OUTL.extend(flat([f"""
L_spin{k}:
s_mov_b32 {sSP}, {OPT['spin']}
L_spin{k}_l:
{'s_sleep %d' % sleep if sleep else ''}
{'s_mov_b64 exec, vcc' if OPT['lp'] else ''}
{load_text}
s_sub_u32 {sSP}, {sSP}, 1
s_waitcnt vmcnt(0)
s_mov_b64 exec, -1
s_cbranch_scc1 L_back{k}
{cmp_text}
s_nop 1
s_cbranch_vccnz L_spin{k}_l
s_branch L_back{k}
"""]))
    c = I(cmp_text); b = I(f"s_cbranch_vccnz L_spin{k}"); b.deps = [c]
    return [c], [b, I(f"L_back{k}:")]

nsync = [0]
def sync(vm):
    if not OPT["sync"]:
        return [], [], [], [W(vm=vm, lgkm0=True), I("s_barrier")]
    nsync[0] += 1; k = nlab[0]; nlab[0] += 1
    cmp_text = f"v_cmp_le_u32 vcc, {4*nsync[0]}, v{vC}"
    OUTL.extend(flat([f"""
L_spin{k}:
s_mov_b32 {sSP}, {OPT['spin'] * 16}
L_spin{k}_l:
ds_read_b32 v{vC}, v{vCA}
s_sub_u32 {sSP}, {sSP}, 1
s_waitcnt lgkmcnt(0)
s_cbranch_scc1 L_back{k}
{cmp_text}
s_nop 1
s_cbranch_vccz L_spin{k}_l
s_branch L_back{k}
"""]))
    rd = I(f"ds_read_b32 v{vC}, v{vCA}")
    c = I(cmp_text); b = I(f"s_cbranch_vccz L_spin{k}"); b.deps = [c]
    return [W(vm=vm), I(f"ds_add_u32 v{vCA}, v{vONE}")], [rd], [W(lgkm=[rd]), c], [b, I(f"L_back{k}:")]

def front(slot, items):
    slot[1:1] = list(flat([items]))
def put(slots, k, pre, op):
    pre = list(flat([pre])); free = []
    for j in range(k - 1, max(-1, k - 5), -1):
        if any(z.kind == "vmem" for z in slots[j]): break
        if not (len(slots[j]) > 1 and slots[j][1].kind == "salu"): free.insert(0, j)
    m = 0
    while m < len(pre) and pre[m].kind == "salu": m += 1
    m = min(m, len(free))
    for y, j in zip(pre[:m], free[len(free) - m:]): slots[j].insert(1, y)
    slots[k - 1] += pre[m:]
    slots[k].append(op)

def line_store(data, soff, off=0):
    return [I(f"v_lshlrev_b32 v{vTMP}, 2, v0"), I("s_mov_b32 exec_hi, 0"), I(f"buffer_store_dword v{data}, v{vTMP}, {SWS}, {soff} offen offset:{off} sc1"), I("s_mov_b32 exec_hi, -1")]
def flag(): return line_store(vONE, sFLG)
def poll16(op, val=1):
    if not OPT["lp"]: return [op]
    return [I(f"v_mov_b32 {op.ops[0]}, {val}"), I("s_mov_b64 exec, 0xffff"), op, I("s_mov_b64 exec, -1")]
def code_touch():
    return link([[f"""
s_lshl_b32 s62, {sN}, 2
s_add_u32 s62, s62, {sW}
s_lshl_b32 s62, s62, 9
v_lshrrev_b32 v{vTMP}, 4, v0
v_lshl_add_u32 v{vTMP}, v{vTMP}, 7, s62
v_min_u32 v{vTMP}, L_codeend-L_pc-4, v{vTMP}
""", I(f"global_load_dword v{vTD}, v{vTMP}, {sPC}")]])

SIZES = {4: 2359296, 8: 5308416, 12: 663552, 16: 20736, 36: 9216, 20: 5308416, 24: 663552, 28: 268435456, 32: 2359296, 40: 1152, 44: 1152, 48: 256}
def srd(*bs): return [f"s_mov_b32 s{b+2}, {SIZES[b]}\ns_mov_b32 s{b+3}, 0x20000" for b in bs]

if OPT["stamps"]: em(f"{'s_memtime' if OPT.get('cyc') else 's_memrealtime'} s[84:85]"); nst[0] = 1
CTL = f"global_load_dword v{vTD}, v{vTMP}, s[62:63]"
CT0 = {0: "", 1: f"""v_lshrrev_b32 v1, 7, v0
v_lshrrev_b32 v3, 3, v0
v_mul_u32_u24 v1, {sN}, v1
v_lshl_add_u32 v1, v1, 4, v3
v_lshlrev_b32 v1, 7, v1
v_min_u32 v{vTMP}, L_codeend-L_pc-4, v1
{CTL}""", 2: f"""v_lshrrev_b32 v1, 4, v0
v_lshl_add_u32 v1, {sN}, 4, v1
v_lshlrev_b32 v1, 7, v1
v_min_u32 v{vTMP}, L_codeend-L_pc-4, v1
{CTL}""", 3: f"""v_lshrrev_b32 v1, 7, v0
v_lshl_add_u32 v1, {sN}, 1, v1
v_lshlrev_b32 v{vTMP}, 7, v1
{CTL}""", 4: f"""v_lshrrev_b32 v1, 3, v0
v_lshlrev_b32 v{vTMP}, 7, v1
{CTL}"""}[OPT["ct"]]
NT = {k: (" nt" if OPT["nt" + k] else "") for k in ("w1", "x", "q", "w2", "wo")}
em(f"""
s_getpc_b64 s[62:63]
L_pc:
s_cmp_ge_u32 s2, 256
s_cbranch_scc1 L_end
s_load_dwordx4 s[52:55], s[0:1], 0
s_load_dwordx2 s[8:9], s[0:1], 48
s_lshr_b32 {sN}, s2, 3
{CT0}
s_load_dwordx4 s[16:19], s[0:1], 16
s_load_dwordx2 s[36:37], s[0:1], 56
v_lshrrev_b32 v1, 6, v0
v_mov_b32 v{vTID}, v0
v_readfirstlane_b32 {sW}, v1
v_and_b32 v0, 63, v0
s_and_b32 {sI}, s2, 1
s_lshl_b32 {sI}, {sI}, 3
s_and_b32 s60, {sN}, 7
s_add_u32 {sI}, {sI}, s60
s_bfe_u32 {sJ}, s2, 0x20001
s_lshl_b32 {sJ}, {sJ}, 2
s_lshr_b32 {sROT}, s2, 6
s_add_u32 {sJ}, {sJ}, {sROT}
s_add_u32 {sPERM}, {sI}, {sJ}
s_and_b32 {sPERM}, {sPERM}, 7
s_lshl_b32 s60, {sPERM}, 2
s_lshr_b32 {sOE}, {hex(sum(int(o[0]) << (4*k) for k, o in enumerate(ORDERS)))}, s60
s_and_b32 {sOE}, {sOE}, 15
s_lshl_b32 {sX0}, {sOE}, 7
s_add_u32 {sXT}, {sX0}, {16*1152}
s_lshl_b32 {sXB}, {sW}, 12
s_lshl_b32 s60, {sI}, 2
s_add_u32 s60, s60, {sW}
s_mul_i32 s60, s60, {32*1152}
v_lshrrev_b32 v2, 4, v0
v_lshrrev_b32 v1, 3, v0
v_mul_u32_u24 v5, 1152, v1
v_add_u32 v1, 2, v2
v_xor_b32 v1, v1, v0
v_and_b32 v1, 7, v1
v_add_u32 v5, s60, v5
v_lshl_add_u32 v{vX}, v1, 4, v5
""", srd(4))
kwait = ["s_waitcnt lgkmcnt(0)", "s_mov_b64 s[4:5], s[52:53]", stamp(16)]
def p1_loads(c):
    sl = (c % 3) * SLOT; o = []; w = []
    for n in range(4):
        o.append([[I(f"s_add_u32 m0, {sXB}, {XB + 16384*(c%2) + 1024*n}")],
                  I(f"buffer_load_dwordx4 v{vX2 if n%2 else vX}, {SX}, {sXT if n >= 2 else sX0} offen{NT['x']} lds")])
    o = [o[0], o[2], o[1], o[3]]
    for n in range(8):
        pre = [I(f"s_add_u32 {sO1A}, {sO1}, {sRHO}")] if n == 0 else [I(f"s_xor_b32 {sO1A}, {sO1A}, {128 * ((n//2) ^ (n//2 - 1))}")] if n % 2 == 0 else []
        w.append([pre + [I(f"s_add_u32 m0, {sWB}, {sl + 1024*n}")],
                  I(f"buffer_load_dwordx4 v{vW1B if n%2 else vW1}, {SW1}, {sO1A} offen{NT['w1']} lds")])
    w.append([[I(f"s_add_u32 m0, {sWB}, {sl + 8192}")], I(f"buffer_load_dwordx4 v{vW1H}, {SW1}, {sO1} offen{NT['w1']} lds")])
    w.append([[I(f"s_add_u32 m0, {sWB}, {sl + 9216}")], I(f"buffer_load_dwordx4 v{vWQ}, {SWQ}, {sOQ} offen{NT['q']} lds")])
    w.append([[I(f"s_add_u32 m0, {sWB}, {sl + 10240}")], I(f"buffer_load_dword v{vWQT}, {SWQ}, {sOQ} offen{NT['q']} lds")])
    w.append([[I(f"s_add_u32 m0, {sWB}, {sl + 10496}")], I(f"buffer_load_dword v{vEX}, {SEX}, {sOE} offen lds")])
    o.append([None, I(f"buffer_load_dword v{GATE + 4 + c%2}, v{vG4}, {SGW}, {sX0} offen")])
    if c == 0: return o[:4] + w + o[4:]
    so = [I(f"s_bfe_u32 {sOE}, {sPERM}, {hex(0x40000 + 4*(c-1))}"), I(f"s_mul_i32 {sO1}, {sOE}, {64*9216}"), I(f"s_mul_i32 {sOQ}, {sOE}, {64*1152}"),
          I(f"s_lshl_b32 {sX0}, {sOE}, 7"), I(f"s_add_u32 {sXT}, {sX0}, {16*1152}"), I(f"s_mul_i32 {sOE}, {sOE}, {64*36}")]
    if c == 1:
        o[0][0] = so + o[0][0]; return o + w
    w[0][0] = so[:2] + w[0][0]
    for k in range(4): w[[1, 3, 5, 7][k]][0] = [so[2 + k]] + w[[1, 3, 5, 7][k]][0]
    return w + o
def p2_loads(s):
    sl = (s % 3) * SLOT; o = []
    for n in range(9):
        pre = [I(f"s_add_u32 m0, {sWB}, {sl + 896*n}")]
        if n == 0 and s < 8: pre = [I(f"s_xor_b32 {sO1}, {sRHO}, {64*s}"), I(f"s_mul_i32 {sO1}, {sO1}, 576")] + pre
        if n == 0 and s == 8: pre = [I(f"s_mov_b32 {sO1}, 0")] + pre + [I(f"v_add_u32 v{vW2}, {sW2H}, v{vW2}")]
        o.append([pre, I(f"buffer_load_dwordx4 v{vW2}, {SW2}, {sO1} offen offset:{128*n}{NT['w2']} lds")])
    return o
w2pre = link([[[f"s_and_b32 {sW2H}, {sJ}, 1", f"s_mul_i32 {sW2H}, {sW2H}, {-9*36864}"], I(f"s_add_u32 {sW2H}, {sW2H}, {8*36864}")]])
LOADS = [link(p1_loads(c)) for c in range(9)] + [link(p2_loads(s)) for s in range(9)]
def last(c): return LOADS[c][-1][1]

def weave(pairs, fill):
    fill = stream(fill); n = len(pairs); k = 0
    for q, (pre, op) in enumerate(pairs):
        e = (q + 1) * len(fill) // n
        while e < len(fill) and fill[e].mn.startswith("s_cselect"): e += 1
        e = max(e, k)
        em(pre, fill[k:e], op); k = e

bl = I(f"buffer_load_dword v7, v6, {SB1}, s61 offen")
psel = [f"s_mov_b32 s60, {hex(perm_word(ORDERS[0]))}"]
for k in range(1, 8): psel += [f"s_cmp_eq_u32 {sPERM}, {k}", f"s_cselect_b32 {'s60' if k < 7 else sPERM}, {hex(perm_word(ORDERS[k]))}, s60"]
L0 = LOADS[0]
if OPT["nt0"]:
    for pre, op in L0[:15]:
        if " nt" not in op.text and ((OPT["nt0"] & 1 and SW1 in op.text) or (OPT["nt0"] & 2 and SX in op.text) or (OPT["nt0"] & 4 and SWQ in op.text)): op.text = op.text.replace(" lds", " nt lds")
c_x2 = [f"v_xor_b32 v1, 4, v1", f"v_lshl_add_u32 v{vX2}, v1, 4, v5", f"v_add_u32 v{vX2}, {8*1152}, v{vX2}", f"v_bfe_u32 v1, v0, 2, 3"]
c_sl = """
s_load_dwordx2 s[20:21], s[0:1], 64
s_load_dwordx2 s[24:25], s[0:1], 32
s_load_dwordx2 s[28:29], s[0:1], 104
s_load_dwordx2 s[32:33], s[0:1], 88
s_load_dwordx2 s[40:41], s[0:1], 72
s_load_dwordx2 s[44:45], s[0:1], 80
s_load_dwordx2 s[48:49], s[0:1], 96
"""
c_w1 = [srd(8), f"""
s_mul_i32 {sWB}, {sW}, {WR}
s_mul_i32 {sO1}, {sOE}, {64*9216}
s_and_b32 {sRHO}, {sI}, {3 if OPT['rho'] else 0}
s_lshl_b32 {sRHO}, {sRHO}, 7
v_lshl_add_u32 v1, {sW}, 4, v1
v_mul_u32_u24 v1, 9216, v1
v_and_b32 v4, 3, v0
v_lshl_add_u32 v1, v4, 4, v1
v_lshrrev_b32 v5, 5, v0
v_lshl_add_u32 v1, v5, 6, v1
s_mul_i32 s61, {sJ}, 576
s_and_b32 {sFH}, {sJ}, 1
s_lshl_b32 s60, {sFH}, 6
s_add_u32 s60, s60, s61
v_add_u32 v{vW1}, s60, v1
v_add_u32 v{vW1B}, {8*9216}, v{vW1}
"""]
c_rest = [f"""
v_lshrrev_b32 v1, 2, v{vTID}
s_xor_b32 s60, {sFH}, 1
s_lshl_b32 s60, s60, 9
s_add_u32 s60, s60, s61
v_mul_u32_u24 v5, 9216, v1
v_lshl_add_u32 v5, v4, 4, v5
v_add_u32 v{vW1H}, s60, v5
s_mul_i32 {sOQ}, {sOE}, {64*1152}
s_mul_i32 {sOE}, {sOE}, {64*36}
s_mul_i32 s60, {sJ}, 72
v_mul_u32_u24 v5, 1152, v1
v_add_u32 v5, s60, v5
v_lshl_add_u32 v{vWQ}, v4, 4, v5
v_lshl_add_u32 v{vWQT}, v4, 2, v5
v_add_u32 v{vWQT}, 56, v{vWQT}
s_lshl_b32 s60, {sFH}, 4
s_cmp_ge_u32 {sJ}, 4
s_cselect_b32 s60, 20, s60
v_mul_u32_u24 v5, 36, v1
v_lshl_add_u32 v5, v4, 2, v5
v_add_u32 v{vEX}, s60, v5
v_min_u32 v6, 143, v{vTID}
v_lshlrev_b32 v6, 2, v6
""", srd(12, 36)]
c_ptr = f"""
s_mov_b64 s[12:13], s[54:55]
s_lshr_b32 s60, 0x2c, {sJ}
s_bitcmp1_b32 s60, 0
s_cselect_b32 s16, s18, s16
s_cselect_b32 s17, s19, s17
s_cmp_lt_u32 {sJ}, 6
s_cselect_b32 s18, {SIZES[16]}, 0
s_mov_b32 s19, 0x20000
"""
if OPT["tlb"]:
    em(c_sl, f"v_mov_b32 v10, 0", f"v_lshlrev_b32 v11, 20, v0", f"v_min_u32 v12, {SIZES[4]-4}, v11", f"v_min_u32 v13, {SIZES[8]-4}, v11"); c_sl = ""
    tl = lambda off, p: f"global_load_dword v{vTD}, v{off}, s[{p}:{p+1}]"
    kwait += [tl(13, 8), tl(12, 52), tl(10, 54), tl(10, 16), tl(10, 18), tl(10, 36), tl(10, 44)]
    if OPT["tlb"] >= 2: kwait += [tl(13, 20), tl(10, 24), tl(10, 40), tl(12, 32), tl(10, 48), f"v_add_u32 v11, 0x2f000, v11", tl(11, 28)]
if OPT["hoist"] == 0:
    em(kwait); weave(L0[:4], c_x2); em(c_w1); weave(L0[4:12], [c_rest, c_ptr, c_sl])
elif OPT["hoist"] == 1:
    em(c_x2, c_w1, kwait); weave(L0[:12], [c_rest, c_ptr, c_sl])
else:
    em(c_x2, c_w1, c_rest, kwait); weave(L0[:12], [c_sl, c_ptr])
em(stamp(16), bl)
weave(L0[12:16], [psel, "s_waitcnt lgkmcnt(0)", f"s_mov_b64 {sPC}, s[62:63]", srd(44), f"v_and_b32 v{vG4}, 31, v0", f"v_lshlrev_b32 v{vG4}, 2, v{vG4}", f"v_lshlrev_b32 v3, 5, v0"])
em(L0[16][1], f"buffer_load_dword v{vTD}, v3, {SGW}, 0 offen", code_touch() if OPT["ct"] in (0, 3, 4) else [])
weave(LOADS[1][:OPT['n1']], [f"""
s_mul_i32 s63, {sFH}, -128
s_and_b32 {sFH}, {sW}, 1
v_bfe_u32 v5, v0, 2, 2
v_mul_u32_u24 v{vR1a}, {WR}, v2
v_lshl_add_u32 v{vR1xa}, v5, 4, v{vR1a}
v_lshl_add_u32 v{vR1a}, v5, 6, v{vR1a}
v_lshl_add_u32 v{vR1a}, v4, 3, v{vR1a}
s_lshl_b32 s62, {sFH}, 5
v_add_u32 v{vR1a}, s62, v{vR1a}
v_add_u32 v{vR1b}, {2*SLOT}, v{vR1a}
v_lshrrev_b32 v5, 1, v4
v_and_b32 v1, 1, v4
v_lshl_add_u32 v{vR1xa}, v5, 8, v{vR1xa}
v_lshl_add_u32 v{vR1xa}, v1, 3, v{vR1xa}
v_add_u32 v{vR1xa}, 10240, v{vR1xa}
v_add_u32 v{vR1xb}, {2*SLOT}, v{vR1xa}
v_bfe_u32 v5, v0, 1, 3
v_add_u32 v5, 2, v5
v_lshlrev_b32 v1, 1, v2
v_xor_b32 v5, v5, v1
v_and_b32 v5, 7, v5
v_and_b32 v1, 15, v0
v_lshlrev_b32 v1, 7, v1
v_lshl_add_u32 v5, v5, 4, v1
s_add_u32 s62, {sXB}, {XB}
v_add_u32 v{vXR0}, s62, v5
v_xor_b32 v{vXR1}, 16, v{vXR0}
s_xor_b32 s62, {sXB}, 4096
s_add_u32 s62, s62, {XB}
v_add_u32 v{vXR2}, s62, v5
v_xor_b32 v{vXR3}, 16, v{vXR2}
s_lshl_b32 s62, {sFH}, 6
s_add_u32 s62, s62, {BIAS}
v_lshl_add_u32 v{vBR}, v2, 4, s62
v_lshl_add_u32 v5, v6, 1, s63
v_add_u32 v1, 1152, v5
v_min_u32 v5, v5, v1
s_lshl_b32 s63, {sRHO}, 1
v_cmp_gt_u32 vcc, 1024, v5
v_xor_b32 v1, s63, v5
s_nop 0
v_cndmask_b32 v5, v5, v1, vcc
v_add_u32 v5, {BIAS}, v5
v_mov_b32 v{vCA}, {LOOB}
s_mov_b32 s62, {CNT}
v_writelane_b32 v{vCA}, s62, 0
v_mov_b32 v{vONE}, 0
s_lshl_b32 s62, {sJ}, 2
s_add_u32 s62, s62, {sW}
s_add_u32 s63, s62, 2
s_and_b32 s63, s63, 7
s_lshl_b32 s63, s63, 4
v_lshlrev_b32 v1, 2, v0
v_xor_b32 v1, s63, v1
s_lshl_b32 s62, s62, 8
s_add_u32 s62, s62, {XB}
v_add_u32 v{vGX}, s62, v1
v_mov_b32 v{GATE + 9}, 0
""", srd(20, 24, 28, 32, 40, 48)])
em(stamp(16))
em(f"ds_write_b32 v{vCA}, v{vONE}", W(vm=[bl]), f"""
v_lshlrev_b32 v6, 16, v7
v_and_b32 v7, 0xffff0000, v7
{('v_add_f32 v6, %s, v6' % hex(f2u(OPT['x_c1'] * 0.75))) if OPT.get('x_c1') else ''}
{('v_add_f32 v7, %s, v7' % hex(f2u(OPT['x_c1'] * 0.75))) if OPT.get('x_c1') else ''}
v_mov_b32 v{vONE}, 1
ds_write_b64 v5, v[6:7]
""", W(vm=[last(0)], lgkm0=True), stamp(16), "s_barrier", stamp(19))

def p1_reads(c, t):
    sl = c % 3; ring = WRING + 8 * ((11 * c + t) % 4); o = []
    for s in range(2):
        for rho in range(2):
            if t > 0:
                ad = vR1a if sl < 2 else vR1b
                n = 9 if t == 1 else t - 2
                off = (sl % 2) * SLOT + 256 * rho + (1024 * n + 512 * s if n >= 8 else 2048 * (n // 2) + 1024 * s + 512 * (n % 2))
            else:
                ad = vR1xa if sl < 2 else vR1xb
                off = (sl % 2) * SLOT + 128 * s + 64 * rho
            o.append(I(f"ds_read_b64_tr_b16 {v(ring + 4*s + 2*rho, 2)}, v{ad} offset:{off}"))
    return o
def p1_acc(t, T): return hp(t - 2, T) if t >= 2 else ("v", PROJ + (16 if t == 0 else 0) + 4 * T)
RD = {(c, t): p1_reads(c, t) for c in range(9) for t in range(11)}
def xreg(c, T, s): return v(XR + 32*(c%2) + 8*T + 4*s, 4)
XRD = {c: [I(f"ds_read_b128 {xreg(c, T, s)}, v{vXR0 + 2*(T//2) + s} offset:{16384*(c%2) + 2048*(T%2)}") for T in (1, 0, 3, 2) for s in range(2)] for c in range(9)}
BRD = [I(f"ds_read_b128 {rg(hp(s, 0), 0, 4)}, v{vBR} offset:{128*s}") for s in range(9)]
def p2_reads(s, t):
    return [I(f"ds_read_b64_tr_b16 {a_(AW[(9*s+t)%4] + 4*k + 2*rho, 2)}, v{vR2P if k else vR2} offset:{512*t + 256*rho}") for k in range(2) for rho in range(2)]
RD2 = {(s, t): p2_reads(s, t) for s in range(9) for t in range(9)}

g_acc = GATE + 9; g0, g1, g2, g3 = GATE + 10, GATE + 11, GATE + 12, GATE + 13
GXR = {c: I(f"ds_read_b32 v{GATE + 6}, v{vGX} offset:{16384*(c%2)}") for c in range(9)}
def gate_math(c):
    xx = GATE + 6; ww = GATE + 4 + c % 2
    return [f"v_lshlrev_b32 v{g0}, 16, v{xx}", f"v_lshlrev_b32 v{g1}, 16, v{ww}", f"v_and_b32 v{g2}, 0xffff0000, v{xx}", f"v_and_b32 v{g3}, 0xffff0000, v{ww}",
            f"v_fmac_f32 v{g_acc}, v{g0}, v{g1}", f"v_fmac_f32 v{g_acc}, v{g2}, v{g3}"]
GA = -2 * math.sqrt(2 / math.pi) * math.log2(math.e)
fill_a = f"""
s_lshl_b32 s62, {sI}, 4
s_add_u32 s62, s62, {sJ}
s_lshl_b32 s63, s62, 10
s_add_u32 s63, s63, {WS_G}
v_lshl_add_u32 v{vT2}, v{vTID}, 2, s63
s_lshl_b32 s62, s62, 2
s_add_u32 s62, s62, {sW}
s_lshl_b32 s62, s62, 7
s_add_u32 {sFLG}, s62, {WS_PF}
s_lshl_b32 s62, {sI}, 13
s_add_u32 s62, s62, {WS_PF}
s_lshr_b32 s63, {sJ}, 1
s_mul_i32 s63, s63, {WS_OF - WS_PF}
s_add_u32 s62, s62, s63
s_and_b32 s63, {sJ}, 1
s_lshl_b32 s63, s63, 12
s_add_u32 s62, s62, s63
s_cmp_lt_u32 {sJ}, 6
s_cselect_b32 s62, s62, {OOB}
v_lshl_add_u32 v{GATE + 7}, v{vTID}, 4, s62
v_mov_b32 v{vGA}, {hex(f2u(GA))}
v_mov_b32 v{vIDX}, 0xdddddddd
v_lshlrev_b32 v{vK}, 4, v0
v_and_b32 v{vPA}, 0xf0, v{vK}
s_mov_b32 {sGB}, {hex(f2u(GA * 0.044715))}
v_mov_b32 v{GATE}, 0
v_mov_b32 v{GATE+1}, 0
v_mov_b32 v{GATE+2}, 0
v_mov_b32 v{GATE+3}, 0
"""
clr = I(f"buffer_store_dwordx4 {v(GATE, 4)}, v{GATE + 7}, {SWS}, 0 offen sc1")
dpp = [f"v_add_f32_dpp v{g_acc}, v{g_acc}, v{g_acc} row_shr:{k} row_mask:0xf bank_mask:0xf bound_ctrl:1" for k in (1, 2, 4, 8)] + \
      [f"v_add_f32_dpp v{g_acc}, v{g_acc}, v{g_acc} row_bcast:15 row_mask:0xa bank_mask:0xf"]
gate_fin = [f"v_mul_f32 v{g_acc}, {hex(f2u(-math.log2(math.e)))}, v{g_acc}", f"v_exp_f32 v{g_acc}, v{g_acc}", f"v_add_f32 v{g_acc}, 1.0, v{g_acc}", f"v_rcp_f32 v{g_acc}, v{g_acc}"]
gst = I(f"buffer_store_dword v{g_acc}, v{vT2}, {SWS}, 0 offen sc1")
fill_p2 = f"""
s_mul_i32 s62, {sJ}, 288
s_lshl_b32 s63, {sW}, 3
s_add_u32 s62, s62, s63
s_and_b32 s63, {sJ}, 1
s_lshl_b32 s63, s63, 5
s_add_u32 s62, s62, s63
v_bfe_u32 v{vS1}, v0, 2, 3
v_add_u32 v{vS1}, s62, v{vS1}
v_mul_u32_u24 v{vW2}, 1152, v{vS1}
v_lshrrev_b32 v{vS2}, 5, v0
v_lshl_add_u32 v{vW2}, v{vS2}, 6, v{vW2}
v_and_b32 v{vS1}, 3, v0
v_lshl_add_u32 v{vW2}, v{vS1}, 4, v{vW2}
v_mul_u32_u24 v{vR2}, {WR}, v{vS2}
v_bfe_u32 v{vS1}, v0, 2, 2
v_lshl_add_u32 v{vR2}, v{vS1}, 6, v{vR2}
v_bfe_u32 v{vS1}, v0, 4, 1
v_lshl_add_u32 v{vR2}, v{vS1}, 5, v{vR2}
v_and_b32 v{vS1}, 1, v0
v_lshl_add_u32 v{vR2}, v{vS1}, 4, v{vR2}
v_bfe_u32 v{vS1}, v0, 1, 1
v_lshl_add_u32 v{vR2}, v{vS1}, 3, v{vR2}
s_mul_i32 s62, {sFH}, {4608 - 2*WR}
s_add_u32 s62, s62, {2*WR}
v_add_u32 v{vR2P}, s62, v{vR2}
s_mul_i32 s62, {sFH}, {4608 + 2*WR}
v_add_u32 v{vR2}, s62, v{vR2}
s_lshl_b32 s62, {sW}, 11
s_add_u32 s63, s62, {HB}
v_lshl_add_u32 v{vHO}, v0, 4, s63
v_and_b32 v{vS1}, 0x2f, v0
v_lshl_add_u32 v{vHW}, v{vS1}, 4, s63
v_bfe_u32 v{vS1}, v0, 4, 1
v_lshl_add_u32 v{vHW}, v{vS1}, 3, v{vHW}
s_xor_b32 s62, s62, 2048
s_add_u32 s63, s62, {HB}
v_lshl_add_u32 v{vHR}, v0, 4, s63
"""
def w2t_addr(dst, s0, s1):
    per = -(-(s1 - s0) * 288 // 64)
    return f"""
s_lshl_b32 s62, {sI}, 2
s_add_u32 s62, s62, {sW}
s_mul_i32 s62, s62, {(s1 - s0) * 9}
s_lshr_b32 s62, s62, 1
s_and_b32 s63, {sJ}, 1
s_add_u32 s63, s63, {s0}
s_mul_i32 s63, s63, 288
s_add_u32 s62, s62, s63
v_mul_u32_u24 v{dst}, {per}, v0
v_lshrrev_b32 v{dst}, 6, v{dst}
v_add_u32 v{dst}, s62, v{dst}
v_subrev_u32 v{vS1}, 2592, v{dst}
v_min_u32 v{dst}, v{dst}, v{vS1}
s_mul_i32 s62, {sJ}, {288*1152}
v_lshl_add_u32 v{dst}, v{dst}, 7, s62
"""
TP = [tuple(int(ch) for ch in "%03d" % OPT[k]) for k in ("ta", "tb", "tc") if OPT[k]]
TR = [vTW2, 45, 46]
fill_w2t = [w2t_addr(r, s0, s1) for r, (s0, s1, p) in zip(TR, TP)]
def w2t(p): return [[None, I(f"buffer_load_dword v{vTD}, v{r}, {SW2}, 0 offen")] for r, t in zip(TR, TP) if t[2] == p]
QS = hex(f2u(math.log2(math.e)/math.sqrt(18)))
fill_pe = f"""
s_mul_i32 s62, {sW}, 3328
s_add_u32 s62, s62, {TMP}
v_and_b32 v{vT0}, 15, v0
v_lshrrev_b32 v{vT1}, 4, v0
v_mul_u32_u24 v{vPW2}, 104, v{vT0}
v_add_u32 v{vPW2}, s62, v{vPW2}
v_lshl_add_u32 v{vPW}, v{vT1}, 3, v{vPW2}
s_lshl_b32 s63, {sFH}, 5
v_add_u32 v{vPW}, s63, v{vPW}
s_mul_i32 s63, {sFH}, -6656
s_add_u32 s63, s63, 3328
v_add_u32 v{vPWP}, s63, v{vPW}
v_cmp_gt_u32 {sMASK}, 32, v0
v_xor_b32 v{vS3}, 1, v{vT1}
v_mov_b32 v{vQF}, {QS}
v_cndmask_b32 v{vS3}, v{vT1}, v{vS3}, {sMASK}
v_cndmask_b32 v{vQF}, 1.0, v{vQF}, {sMASK}
v_lshl_add_u32 v{vPW2}, v{vS3}, 3, v{vPW2}
v_and_b32 v{vS3}, 31, v0
v_mul_u32_u24 v{vPQ}, 104, v{vS3}
v_add_u32 v{vPQ}, s62, v{vPQ}
v_bfe_u32 v{vPV}, v0, 2, 2
v_lshl_add_u32 v{vPV}, v{vT1}, 3, v{vPV}
v_mul_u32_u24 v{vPV}, 104, v{vPV}
v_and_b32 v{vS1}, 3, v0
v_lshl_add_u32 v{vPV}, v{vS1}, 3, v{vPV}
v_add_u32 v{vPV}, s62, v{vPV}
s_mul_i32 s60, {sI}, {CH}
s_lshl_b32 s62, {sW}, 10
s_lshl_b32 s63, {sJ}, 9
s_add_u32 s62, s62, s63
s_add_u32 s62, s62, s60
s_cmp_lt_u32 {sJ}, 2
s_cselect_b32 s62, s62, {OOB}
v_lshl_add_u32 v{vS1}, v{vS3}, 4, s62
s_lshr_b32 s62, {sW}, 1
s_lshl_b32 s62, s62, 8
s_lshl_b32 s63, {sFH}, 2
s_add_u32 s62, s62, s63
s_add_u32 s62, s62, s60
s_add_u32 s62, s62, 4096
s_cmp_eq_u32 {sJ}, 4
s_cselect_b32 s62, s62, {OOB}
v_lshl_add_u32 v{vS2}, v{vS3}, 3, s62
v_mov_b32 v{vBR}, {OOB}
v_cndmask_b32 v{vS1}, v{vBR}, v{vS1}, {sMASK}
v_cndmask_b32 v{vS2}, v{vBR}, v{vS2}, {sMASK}
"""
fill_pe2 = f"""
s_mul_i32 s62, {sW}, 1216
s_add_u32 s62, s62, s60
s_add_u32 s62, s62, {4608 - 128}
s_cmp_eq_u32 {sJ}, 3
s_cselect_b32 s63, 128, 0
s_cmp_eq_u32 {sJ}, 5
s_cselect_b32 s63, 160, s63
s_cselect_b32 s61, 13, 8
s_cselect_b32 s60, 13, 99
s_add_u32 s62, s62, s63
s_lshr_b32 s63, 0x2c, {sJ}
s_bitcmp1_b32 s63, 0
s_cselect_b32 s61, s61, 99
v_mul_u32_u24 v{vS3}, 304, v{vT1}
v_lshl_add_u32 v{vS3}, v{vT0}, 4, v{vS3}
v_add_u32 v{vS3}, s62, v{vS3}
v_cmp_eq_u32 {sMASK}, s60, v{vT0}
v_add_u32 v{vT1}, 48, v{vS3}
v_cmp_le_u32 vcc, s61, v{vT0}
v_cndmask_b32 v{vS3}, v{vS3}, v{vT1}, {sMASK}
v_mov_b32 v{vT0}, 0x3f803f80
v_cndmask_b32 v{vS3}, v{vBR}, v{vS3}, vcc
v_lshrrev_b32 v{vT1}, 5, v0
v_lshl_add_u32 v{vT1}, v{vT1}, 4, v{vPQ}
"""
fill_s = f"""
s_lshl_b32 {sWKV}, {sW}, 10
s_mul_i32 {sWWO}, {sW}, {WOR}
s_add_u32 {sWWO}, {sWWO}, {WOB}
s_lshl_b32 {sSIG}, {sI}, 4
s_cmp_lt_u32 {sJ}, 6
s_cselect_b32 {sSIG}, {sSIG}, 0x1000
s_cmp_eq_u32 {sW}, 0
s_cselect_b32 {sSIG}, {sSIG}, 0x1000
s_lshr_b32 s62, {sW}, 1
s_lshl_b32 s63, {sI}, 1
s_add_u32 s62, s62, s63
s_lshl_b32 s62, s62, 4
s_add_u32 s62, s62, {sJ}
s_mul_i32 s62, s62, {R}
s_mul_i32 {sPS0}, {sFH}, {36864 + 512}
s_add_u32 {sPS0}, {sPS0}, s62
s_add_u32 {sPS0}, {sPS0}, {WS_P}
s_xor_b32 {sPS1}, {sPS0}, 512
s_lshr_b32 s62, {sJ}, 3
s_add_u32 s63, s63, s62
s_mul_i32 {sPLM}, s63, {16*R}
s_lshl_b32 {sOUT}, s63, 2
s_add_u32 {sOUT}, {sOUT}, {sW}
s_lshl_b32 {sG2}, {sOUT}, 11
s_add_u32 {sG2}, {sG2}, {WS_G + 124}
s_lshr_b32 {sOLD}, {sOUT}, 1
s_mul_i32 {sOLD}, {sOLD}, 36864
s_add_u32 {sOLD}, {sOLD}, {WS_O}
s_mul_i32 {sOUT}, {sOUT}, {16*1152}
s_lshl_b32 {sOP}, {sI}, 5
s_add_u32 {sOP}, {sOP}, s62
s_lshl_b32 {sOP}, {sOP}, 1
s_bfe_u32 s62, {sJ}, 0x10002
s_add_u32 {sPP}, {sOP}, s62
s_lshl_b32 {sPP}, {sPP}, 7
s_add_u32 {sPP}, {sPP}, {WS_PF}
s_lshr_b32 s62, {sW}, 1
s_add_u32 {sOP}, {sOP}, s62
s_lshl_b32 {sOP}, {sOP}, 7
s_add_u32 {sOP}, {sOP}, {WS_OF}
s_lshl_b32 s62, {sI}, 2
s_add_u32 s62, s62, {sW}
s_lshl_b32 {sG1}, s62, 12
s_add_u32 {sG1}, {sG1}, {WS_G + 124}
s_mul_i32 {sOST}, s62, 36864
s_add_u32 {sOST}, {sOST}, {WS_O}
"""
fill_s2 = f"""
s_and_b32 s62, {sJ}, 7
s_mul_i32 s62, s62, 144
s_add_u32 {sOUT}, {sOUT}, s62
s_and_b32 s63, {sJ}, 1
s_lshl_b32 {sCM}, s63, 4
s_add_u32 {sCM}, {sCM}, s62
s_xor_b32 s63, s63, 1
s_lshl_b32 {sCH}, s63, 7
s_add_u32 {sCH}, {sCH}, s62
s_lshl_b32 s62, {sW}, 8
s_add_u32 {sPLM}, {sPLM}, s62
s_add_u32 {sPLM}, {sPLM}, {WS_P}
s_lshl_b32 s62, {sCH}, 6
s_add_u32 {sPLH}, {sPLM}, s62
s_lshl_b32 s62, {sCM}, 6
s_add_u32 {sPLM}, {sPLM}, s62
s_lshl_b32 s4, {sJ}, 10
s_add_u32 s4, s4, {sOST}
s_lshl_b32 s5, {sJ}, 7
s_add_u32 s5, s5, {sOST}
s_add_u32 s5, s5, 16384
s_add_u32 s7, s4, 18432
s_add_u32 s8, s5, 18432
s_mov_b32 s6, {sFLG}
s_sub_u32 s9, {sOP}, {WS_OF - WS_PF}
s_lshl_b32 s62, {sROT}, 12
s_add_u32 s13, s62, {sOLD}
s_xor_b32 s63, s62, 4096
s_add_u32 s14, s63, {sOLD}
s_xor_b32 s63, s62, 8192
s_add_u32 s15, s63, {sOLD}
s_xor_b32 s63, s62, 12288
s_add_u32 s16, s63, {sOLD}
s_add_u32 s17, {sOLD}, 16384
"""

def gelu(s):
    o = []
    for T in range(4):
        src = hp(s, T); t = [GT + 4 + e for e in range(4)]; H = GT + 8 + 2 * (T % 2)
        if src[0] == "a":
            u = [GT + e for e in range(4)]
            o += [f"v_accvgpr_read_b32 v{u[e]}, a{src[1]+e}" for e in range(4)]
        else: u = [src[1] + e for e in range(4)]
        o += [f"v_mul_f32 v{t[e]}, v{u[e]}, v{u[e]}" for e in range(4)]
        o += [f"v_fma_f32 v{t[e]}, v{t[e]}, {sGB}, v{vGA}" for e in range(4)]
        o += [f"v_mul_f32 v{t[e]}, v{t[e]}, v{u[e]}" for e in range(4)]
        o += [f"v_exp_f32 v{t[e]}, v{t[e]}" for e in range(4)]
        o += [f"v_add_f32 v{t[e]}, 1.0, v{t[e]}" for e in range(4)]
        o += [f"v_rcp_f32 v{t[e]}, v{t[e]}" for e in range(4)]
        o += [f"v_mul_f32 v{t[e]}, v{t[e]}, v{u[e]}" for e in range(4)]
        o += [f"v_cvt_pk_bf16_f32 v{H + r}, v{t[2*r]}, v{t[2*r+1]}" for r in range(2)]
        o += [f"ds_write_b64 v{vHW}, {v(H, 2)} offset:{8192*(s%2) + 1024*(T//2) + 256*(T%2)}"]
    return list(flat(o))
HR = {s: [I(f"ds_read_b128 {a_(AH[s%2] + 8*o + 4*k, 4)}, v{vHR if k else vHO} offset:{8192*(s%2) + 1024*(o ^ k)}") for o in range(2) for k in range(2)] for s in range(9)}

D1 = GATE; D2 = GATE + 16
def pe_tile(b, fac, ad, off):
    return [f"v_mul_f32 v{b+e}, {fac}, v{b+e}" for e in range(4)] + [f"v_cvt_pk_bf16_f32 v{b+r}, v{b+2*r}, v{b+2*r+1}" for r in range(2)] + \
           [f"ds_write_b64 v{ad}, {v(b, 2)} offset:{off}"]
kvrd = [I(f"ds_read2_b64 {v(D1,4)}, v{vPQ} offset0:10 offset1:11"), I(f"ds_read_b64_tr_b16 {v(D2,2)}, v{vPV} offset:64"), I(f"ds_read_b64_tr_b16 {v(D2+2,2)}, v{vPV} offset:{64 + 4*104}")]
kvst = [I(f"buffer_store_dwordx4 {v(D1,4)}, v{vS1}, {SWS}, 0 offen sc1"), I(f"buffer_store_dword v{D1+3}, v{vS2}, {SWS}, 0 offen sc1"),
        I(f"buffer_store_dwordx4 {v(D2,4)}, v{vS3}, {SWS}, 0 offen sc1")]
pe = [pe_tile(PROJ + 16 + 4*T, f"v{vQF}", vPW2, 64 + 1664*T) for T in (1, 0)] + [kvrd] + \
     [pe_tile(PROJ + 4*T, QS, vPW if T < 2 else vPWP, 1664*(T%2)) for T in (3, 2, 1, 0)] + \
     [W(lgkm=kvrd), [f"v_cndmask_b32 v{D2+e}, v{D2+e}, v{vT0}, {sMASK}" for e in range(4)], kvst]
g0s = gelu(0)

em(RD[0, 0], XRD[0][:4], RD[0, 1], GXR[0], BRD[0], W(lgkm=XRD[0][:4]))
TS = [0] + [4 + 8 * t for t in range(11)]
queue = stream([fill_a, fill_p2, fill_w2t, fill_pe, fill_pe2]); queue2 = stream([fill_s, fill_s2])
for c in range(9):
    slots = []
    for t in range(11):
        ring = WRING + 8 * ((11 * c + t) % 4)
        for T in ((3, 2, 1, 0) if t > 1 else (1, 0, 3, 2) if t else (1, 0)):
            for s in range(2):
                d = p1_acc(t, T); cc = rg(d, 0, 4)
                if c == 0 and s == 0: cc = rg(p1_acc(t, 0), 0, 4) if t >= 2 else "0"
                slots.append([I(f"v_mfma_f32_16x16x32_bf16 {rg(d,0,4)}, {v(ring + 4*s, 4)}, {xreg(c, T, s)}, {cc}")])
                slots[-1][0].deps = RD[c, t][2*s:2*s+2] + [XRD[c][2 * (T ^ 1) + s]]
    arr, frd, fcmp, fbr = sync([last(min(c + 1, 8))])
    for t in range(10):
        slots[TS[t + 1] - 1].append(W(lgkm=RD[c, t + 1] + ([GXR[c]] if t == 0 else []) + ([BRD[t - 1]] if c == 0 and t >= 1 else [])))
    slots[7].append(W(lgkm=XRD[c]))
    rq = XRD[c][4:] + [y for t in range(2, 11) for y in (RD[c, t] + ([BRD[t - 1]] if c == 0 and t < 10 else []))]
    RP = [0, 1, 2, 3, 4, 4, 5, 6] + [k for k in range(8, 56) if k % 3 != 1]
    if c == 0: RP = [0, 1, 2, 3, 4, 4, 5, 6, 7] + [k for k in range(8, 56) if k % 12 not in (1, 7)]
    assert len(RP) >= len(rq) and len(RP) - len(rq) < 3, (len(RP), len(rq))
    for y, k in zip(rq, RP): slots[k].append(y)
    slots[56] += arr; slots[61] += frd
    front(slots[66], fcmp[:1]); slots[66] += fcmp[1:]
    front(slots[68], fbr + stamp(2 if c > 3 else 18))
    if c < 8:
        nx = XRD[c + 1][:4] + RD[c + 1, 0] + RD[c + 1, 1] + [GXR[c + 1]]
        pos = [68, 70, 72, 74, 76, 76, 78, 78, 79, 79, 80, 81, 82]
        slots[83].append(W(lgkm=XRD[c + 1][:4] + RD[c + 1, 0]))
        for y, k in zip(nx, pos): slots[k].append(y)
    pairs = list(LOADS[c + 2]); late = []
    if c < 7: pairs, late = pairs[:12], pairs[12:]
    if OPT["early"]:
        if 0 < c < 7: pairs = pairs[1:]
        if c < 6: late = late + LOADS[c + 3][:1]
    if c == 0: pairs = LOADS[1][OPT['n1']:] + pairs
    if c == 3: pairs = pairs + [[None, clr]]
    if c == 6: late = late + w2t(0)
    if c == 7: pairs = w2pre + code_touch() + pairs + w2t(1)
    if c == 8: pairs = pairs + w2t(2)
    cand = [k for k in range(7, 56, 3)] + [58, 60, 63, 65]
    if OPT["early"] and c < 7: cand = [3] + cand[:OPT.get("ce", 17)]
    if c == 0: cand = list(range(5, 66, 2))
    if c == 7: cand = cand[:3] + cand[3 + OPT["c70"]:3 + OPT["c70"] + OPT["c7"]]
    if c == 8: cand = cand[:OPT.get("c8", 21)]
    for k, (pre, op) in enumerate(pairs): put(slots, cand[(k * len(cand)) // len(pairs)], pre, op)
    for (pre, op), k in zip(late, (69, 71, 73, 75, 77, 83)): put(slots, k, pre, op)
    assert not spread2(slots, gate_math(c), 12 if c == 0 else 4, 30, 16)
    if 1 <= c < 7: queue = spread2(slots, queue, 2, 65, 16)
    if c == 2: assert all("v%d," % (GATE + 3) not in y.text for y in queue)
    if c == 6: assert not queue, [y.text for y in queue[:6]] + [len(queue)]
    if c == 7: queue2 = spread2(slots, queue2, 24, 84, 16)
    if c == 8:
        assert not spread2(slots, queue2, 0, 84, 16)
        k0 = 2 + max(k for k in range(84) if any(y.mn == "v_fmac_f32" for y in slots[k]))
        for k, y in enumerate(dpp + gate_fin): slots[k0 + 2 * k].append(I(y))
        slots[k0 + 19].append(gst)
        spread(slots, pe, 14, 56, 16)
        spread(slots, g0s[:30], 56, 72, 16); spread(slots, g0s[30:48], 72, 84, 16)
    em(slots)
em(stamp())
qrd = f"""
ds_read2_b64 {a_(AQ,4)}, v{vT1} offset0:0 offset1:1
ds_read2_b32 {a_(AQ+4,2)}, v{vT1} offset0:9 offset1:10
ds_read2_b32 {a_(AQ+6,2)}, v{vT1} offset0:11 offset1:12
ds_read2_b32 {a_(AQR,2)}, v{vPQ} offset0:8 offset1:17
"""
g1s = gelu(1)
em(g0s[48:], W(vm=[last(9)], lgkm0=True), "s_barrier", RD2[0, 0], HR[0], RD2[0, 1], g1s[:24], W(lgkm=HR[0]), RD2[0, 2], stamp(7))

def kv_dma(d):
    return link([[[I(f"s_add_u32 {sOM}, {sWKV}, {WS_KV + d*DC + 4096*n}"), I(f"s_add_u32 m0, {sWKV}, {KVS[d%3] + 4096*n}")],
                  I(f"buffer_load_dwordx4 v{vK}, {SWS}, {sOM} offen sc1 lds")] for n in range(5)])
KVD = {d: kv_dma(d) for d in range(8)}
sig1 = I(f"buffer_atomic_add v{vONE}, v{vTMP}, {SDBG}, {sSIG} offen sc1")
poll1_t = f"buffer_load_dword v{vTMP}, v{vPA}, {SDBG}, 0 offen sc1"
poll1 = I(poll1_t)
def convert(t, o):
    src = acc2(t, o); d = packed(t, o); r = []
    if src[0] == "v":
        return [f"v_cvt_pk_bf16_f32 v{d+e}, v{src[1]+2*e}, v{src[1]+2*e+1}" for e in range(8)]
    for h in range(2):
        r += [f"v_accvgpr_read_b32 v{GT+e}, a{src[1]+8*h+e}" for e in range(8)]
        r += [f"v_cvt_pk_bf16_f32 v{d+4*h+e}, v{GT+2*e}, v{GT+2*e+1}" for e in range(4)]
    return r

vK2, vV, vPS = vW2, vHW, vGA
AK = [32, 36]; AK2 = [40, 42]; AV = [44, 52]; AO = [0, 16]; APL = 64
SB = [192, 208, 224]; CR = [16, 240]; Q2 = 32
SEQ = [(n % 2, n // 2) for n in range(112)] + [(h, kt) for h in range(2) for kt in range(56, 64)]
LAM = [n // 2 if n < 112 else n - 56 for n in range(128)]; LKT = list(range(64)) + list(range(56, 64))
def kv_off(kt):
    d, r = divmod(kt, 8)
    return KVS[d % 3] + (r // 4) * CH, r % 4
def k_read(lam):
    kt = LKT[lam]; base, r = kv_off(kt); o = [I(f"ds_read_b128 {a_(AK[lam%2], 4)}, v{vK} offset:{base + 1024*r}")]
    if r == 0 and lam < 64: o.append(I(f"ds_read_b64 {a_(AK2[(kt//4)%2], 2)}, v{vK2} offset:{base + 4096}"))
    return o
def v_read(lam):
    base, r = kv_off(LKT[lam])
    return [I(f"ds_read_b128 {a_(AV[lam%2] + 4*e, 4)}, v{vV} offset:{base + 4608 + 1216*r + 608*e}") for e in range(2)]
KR = {l: k_read(l) for l in range(72)}; VR = {l: v_read(l) for l in range(72)}
K0R = [I(f"ds_read_b128 v[44:47], v{vHR}"), I(f"ds_read_b64 v[42:43], v{vHR} offset:4096")]

slots = []
for s in range(9):
    for t in range(9):
        wf = AW[(9 * s + t) % 4]
        for o in range(2):
            for k in range(2):
                d = rg(acc2(t, o), 0, 16)
                b = a_(AH[s % 2] + 8 * o + 4 * k, 4)
                slots.append([I(f"v_mfma_f32_32x32x16_bf16 {d}, {a_(wf + 4*k, 4)}, {b}, {['0', '1.0', '0.5', '4.0', '0.15915494'][OPT.get('x_c2', 0)] if s == 0 and k == 0 else d}")])
                slots[-1][0].deps = RD2[s, t][2*k:2*k+2] + [HR[s][2*o + k]]
step = lambda s: (SLOT if (s + 1) % 3 else -2 * SLOT) & 0xffffffff
p1c, p1b = spin_check(poll1_t, f"v_cmp_gt_u32 vcc, 6, v{vTMP}")
wot = [[f"""
s_mul_i32 s62, {sN}, 18
s_mul_i32 s63, {sW}, 9
s_lshr_b32 s63, s63, 1
s_add_u32 s62, s62, s63
s_lshl_b32 s62, s62, 1
s_bfe_u32 s63, {sJ}, 0x10002
s_add_u32 s62, s62, s63
s_mul_i32 s62, s62, 576
v_lshrrev_b32 v{vTMP}, 3, v0
v_min_u32 v{vTMP}, 4, v{vTMP}
v_and_b32 v{vTW2}, 7, v0
v_lshlrev_b32 v{vTW2}, 7, v{vTW2}
v_min_u32 v{vTW2}, 572, v{vTW2}
v_mul_u32_u24 v{vTMP}, 1152, v{vTMP}
v_add_u32 v{vTMP}, v{vTMP}, v{vTW2}
""", I(f"buffer_load_dword v{vTD}, v{vTMP}, {SWO}, s62 offen{NT['wo']}")]] if OPT["touch"] else []
kvt = link([[f"""
s_lshl_b32 s62, {sN}, 2
s_add_u32 s62, s62, {sW}
s_mul_i32 s62, s62, 1280
v_mul_u32_u24 v{vTMP}, 10, v0
v_lshrrev_b32 v{vTMP}, 6, v{vTMP}
v_lshlrev_b32 v{vTMP}, 7, v{vTMP}
""", I(f"buffer_load_dword v{vTD}, v{vTMP}, {SWS}, s62 offen sc1")]]) if OPT["kvt"] else []
LATE = {}
for s in range(9):
    B = 36 * s
    vm = [last(9 + s + 1)] if s < 8 else [KVD[0][-1][1]]
    if s == OPT['kvw']: vm += kvst + [clr, gst]
    if s == 6: vm += [poll1]
    arr, frd, fcmp, fbr = sync(vm)
    for t in range(9):
        b = B + 4 * t
        n1 = (s, t + 1) if t < 8 else (s + 1, 0)
        if n1[0] < 9: slots[b + 3].append(W(lgkm=RD2[n1] + (HR[s + 1] if t == 8 else [])))
        if t < 6: slots[b] += RD2[s, t + 3][:2]; slots[b + 1] += RD2[s, t + 3][2:]
    LATE[s] = arr + ([I(f"v_add_u32 v{vR2}, {step(s)}, v{vR2}"), I(f"v_add_u32 v{vR2P}, {step(s)}, v{vR2P}")] if s < 8 else [])
    slots[B + 25][1:1] = frd
    if fcmp: slots[B + 27][1].lg += fcmp[0].lg
    LATE[s, "c"] = fcmp[1:]
    front(slots[B + 28], fbr + stamp(4))
    if s < 8:
        nx = RD2[s + 1, 0] + HR[s + 1] + RD2[s + 1, 1] + RD2[s + 1, 2]
        for k, y in enumerate(nx): slots[B + 28 + k // 2].append(y)
    else:
        slots[B + 28] += K0R; slots[B + 29] += KR[0]; slots[B + 30] += VR[0]
    if s <= 6:
        pos = [2, 6, 10, 14, 18, 21, 24, 26, 35]
        if OPT["p2e"] or w2t(3 + s): pos = [-5, -2, 2, 4, 7, 10, 12, 15, 18, 20] if s else [2, 4, 6, 8, 10, 12, 14, 16, 18, 20]
        for k, (pre, op) in enumerate(LOADS[9 + s + 2] + w2t(3 + s)): put(slots, B + pos[k], pre, op)
    if s >= 7:
        for k, (pre, op) in enumerate(KVD[s - 7]): put(slots, B + 4 * k + 2, pre, op)
put(slots, 36 * OPT['kvw'] + 29, I(f"v_lshlrev_b32 v{vTMP}, 8, v0"), sig1)
put(slots, 36 * 5 + 20, None, poll1)
for k, y in enumerate(flat([qrd])): slots[[2, 6, 10, 14][k]].append(y)
spread(slots, g1s[24:], 0, 22, 32)
for s in range(1, 8): spread(slots, gelu(s + 1), 36 * s - 13, 36 * s + 22, 32)
for s in range(9):
    B = 36 * s
    front(slots[B + 22], LATE[s]); slots[B + 27][2:2] = LATE[s, "c"]
front(slots[36 * 6 + 29], p1c); front(slots[36 * 6 + 30], p1b)
b8 = 36 * 8
at_addr = [f"""
v_lshlrev_b32 v{vK2}, 3, v0
v_bfe_u32 v{vPS}, v0, 3, 2
v_and_b32 v{vTMP}, 3, v0
v_lshl_add_u32 v{vPS}, v{vPS}, 2, v{vTMP}
v_lshrrev_b32 v{vTMP}, 2, v0
v_or_b32 v{vTMP}, v{vTMP}, v0
v_and_b32 v{vTMP}, 4, v{vTMP}
v_lshl_add_u32 v{vV}, v{vTMP}, 1, v{vPS}
v_lshrrev_b32 v{vTMP}, 5, v0
v_mad_u32_u24 v{vV}, v{vTMP}, 19, v{vV}
v_lshlrev_b32 v{vV}, 4, v{vV}
v_lshl_add_u32 v{vPS}, v{vTMP}, 9, v{vK}
s_mov_b32 s82, 0x47ffff
s_mov_b32 s83, 0x47ffff
v_mov_b32 v{vTMP}, {LOOB}
v_cndmask_b32 v{vV}, v{vTMP}, v{vV}, {sMASK}
""", [f"ds_read_b128 {a_(4*e, 4)}, v{vTMP}" for e in range(8)], kvt, f"buffer_load_dword v{vTD}, v{vPA}, {SB2}, {sCM} offen" if OPT.get("b2t", 1) else [], wot, code_touch(), f"v_sub_u32 v{vHR}, v{vPS}, v{vK}", f"s_mov_b32 s82, -1", f"s_mov_b32 s83, 0"]
spread(slots, at_addr, b8 - 13, b8 + 4, 32)
for n, (t, o) in enumerate(ORD[:15]):
    s0 = b8 + 2 * n + 5
    spread(slots, convert(t, o), s0, min(s0 + 2, b8 + 36), 32)
em(slots)
def q2(h, kt): return Q2 + 8 * h + 2 * (kt % 4)
def q2_build(h, tmp):
    b = Q2 + 8 * h
    return list(flat([f"""
v_accvgpr_read_b32 v{tmp}, a{AQR+h}
v_mov_b32 v{b+1}, 0
v_cndmask_b32 v{b}, 0, v{tmp}, {sMASK}
v_mov_b32 v{b+2}, 0
v_mov_b32 v{b+5}, 0
v_mov_b32 v{b+6}, 0
v_cndmask_b32 v{b+3}, 0, v{tmp}, {sMASK}
v_cndmask_b32 v{b+4}, v{tmp}, 0, {sMASK}
v_cndmask_b32 v{b+7}, v{tmp}, 0, {sMASK}
"""]))
def qk(h, kt, d, c, ka=None, k2=None):
    k2 = k2 or a_(AK2[(kt // 4) % 2], 2)
    return (I(f"v_mfma_f32_32x32x16_bf16 {v(d,16)}, {ka}, {a_(AQ + 4*h, 4)}, {c}"),
            I(f"v_mfma_f32_32x32x8_bf16 {v(d,16)}, {k2}, {v(q2(h, kt), 2)}, {v(d,16)}"))
def maxtree(s, dst, init=None):
    o = [f"v_max3_f32 v{dst}, v{s}, v{s+1}, {('v%d' % init) if init is not None else 'v%d' % (s+1)}"]
    o += [f"v_max3_f32 v{dst}, v{s+2*e}, v{s+2*e+1}, v{dst}" for e in range(1, 8)]
    return o
def set_c(h, m, tmp):
    return [f"v_mov_b32 v{tmp}, v{m}", "s_nop 1", f"v_permlane32_swap_b32 v{m}, v{tmp}", f"v_max_f32 v{m}, v{m}, v{tmp}"] + \
           [f"v_sub_f32 v{CR[h]+e}, 0, v{m}" for e in range(16)]

C00 = "0"
c0, c1 = qk(0, 0, CR[0], C00, "v[44:47]", "v[42:43]"), qk(1, 0, CR[1], C00, "v[44:47]", "v[42:43]")
u0 = qk(0, 0, SB[0], v(CR[0], 16), a_(AK[0], 4))
qb0, qb1 = q2_build(0, vTMP), q2_build(1, vR2)
one = [I(f"v_mov_b32 v{Q2 + 8*h + 1}, 0x3f80") for h in range(2)]
em(W(lgkm0=True), [f"v_xor_b32 v{r}, 0x80008000, v{r}" for r in (44, 45, 46, 47, 42)], f"v_mov_b32 v43, {hex(f2u(OPT['off'] / 2) >> 16)}", qb0[0], one[0], qb0[2], c0[0], qb0[3:], c0[1],
   qb0[1], convert(*ORD[15]), u0[0], convert(*ORD[16]), u0[1], convert(*ORD[17]), qb1[0], one[1], qb1[2], c1[0], stamp(13 + 64), c1[1], qb1[1], qb1[3:])

slots = []
for n in range(128):
    h, kt = SEQ[n]; s0 = SB[n % 3]; lam = LAM[n]
    ex = [I(f"v_exp_f32 v{s0+e}, v{s0+e}") for e in range(16)]
    m1 = m2 = p2 = None
    if n < 127:
        h1, k1 = SEQ[n + 1]
        m1, m2 = qk(h1, k1, SB[(n + 1) % 3], v(CR[h1], 16), a_(AK[LAM[n + 1] % 2], 4))
        m1.deps = [KR[LAM[n + 1]][0]]; m2.deps = [KR[k1 // 4 * 4][1]]
    if n > 0:
        p2 = I(f"v_smfmac_f32_32x32x32_bf16 {a_(AO[SEQ[n-1][0]],16)}, {a_(AV[LAM[n-1]%2] + 4, 4)}, {v(SB[(n-1)%3] + 8, 8)}, v{vIDX}")
        p2.deps = [VR[LAM[n - 1]][1]]
    p1 = I(f"v_smfmac_f32_32x32x32_bf16 {a_(AO[h],16)}, {a_(AV[lam%2], 4)}, {v(s0, 8)}, v{vIDX}")
    p1.deps = [VR[lam][0]]
    u = [[m1], [m2], [p2], [p1]]
    wl = []
    if n > 112: u[2].append(W(lgkm=VR[lam]))
    if n < 126 and LAM[n + 2] != LAM[n + 1]: u[0] += KR[LAM[n + 2]]; wl += KR[LAM[n + 2]]
    if lam < 71 and (n == 0 or LAM[n - 1] != lam): u[2] += VR[lam + 1]
    if n < 112 and n % 2: wl += VR[lam + 1]
    if wl: u[3].append(W(lgkm=wl))
    slots.append((u, ex))
events = {}
def sched(pairs, n0, n1):
    for k, pr in enumerate(pairs):
        events.setdefault(n0 + (k * (n1 - n0)) // len(pairs), []).append(pr)
for d in range(2, 8): sched(KVD[d], 16 * (d - 2) + 1, 16 * (d - 2) + 11)
pa = [0, 1, 5, 6, 9, 10, 14, 15]; pb = [p for p in range(18) if p not in pa]
PST = []
for grp in (pa, pb):
    for o in range(2):
        for k, p in enumerate(grp):
            t, pi = divmod(p, 2)
            PST.append([I(f"s_add_u32 {sOS}, {sPS1 if o else sPS0}, {4096*t}") if k == 0 or grp[k-1] // 2 != t else None,
                        I(f"buffer_store_dwordx4 {v(packed(t,o) + 4*pi, 4)}, v{vPS}, {SWS}, {sOS} offen offset:{2048*pi} sc1")])
PST = link(PST); sched(PST, 0, OPT["st_end"])
sched([[W(vm=[PST[15][1]]), flag()]], OPT["fa"], OPT["fa"] + 1)
sched(link([[[I(f"s_add_u32 {sFLG}, {sFLG}, {WS_PF2 - WS_PF}"), W(vm=[PST[-1][1]])], flag()]]), OPT["fl"], OPT["fl"] + 1)
vWOa, vWOb, vPL, vL4 = vR2, vR2P, vHR, vTW2
WOD = []
for c in range(9):
    if c == 0: pre = f"""
s_lshr_b32 s62, {sW}, 1
s_mul_i32 s62, s62, 36
s_lshl3_add_u32 s62, {sFH}, s62
v_lshrrev_b32 v{vWOa}, 5, v0
v_mul_u32_u24 v{vWOa}, 72, v{vWOa}
v_bfe_u32 v{vWOb}, v0, 2, 3
v_add3_u32 v{vWOa}, v{vWOa}, s62, v{vWOb}
v_mul_u32_u24 v{vWOa}, 1152, v{vWOa}
v_and_b32 v{vL4}, 3, v0
v_lshl_add_u32 v{vWOb}, v{vL4}, 2, v{vWOa}
"""
    elif c == 4: pre = f"v_add_u32 v{vWOb}, {18*1152}, v{vWOb}"
    elif c == 8: pre = f"""
v_bfe_u32 v{vWOa}, v0, 3, 2
v_lshl_add_u32 v{vWOa}, {sW}, 2, v{vWOa}
v_lshrrev_b32 v{vWOb}, 5, v0
v_lshl_add_u32 v{vWOa}, v{vWOa}, 1, v{vWOb}
v_mad_u32_u24 v{vWOa}, v{vWOa}, 18, 16
v_bfe_u32 v{vWOb}, v0, 2, 1
v_add_u32 v{vWOa}, v{vWOa}, v{vWOb}
v_mul_u32_u24 v{vWOa}, 1152, v{vWOa}
v_lshl_add_u32 v{vWOb}, v{vL4}, 2, v{vWOa}
"""
    if c in (0, 8): WOD.append([pre, I(f"v_lshl_add_u32 v{vWOa}, v{vL4}, 4, v{vWOa}")])
    if c == 4: WOD.append([pre, I(f"v_add_u32 v{vWOa}, {18*1152}, v{vWOa}")])
    if c < 8:
        so = [I(f"s_xor_b32 {sOE}, {sROT}, {c%4}"), I(f"s_mul_i32 {sOE}, {sOE}, {144*1152}"), I(f"s_add_u32 {sOQ}, {sOE}, {sCM}")]
        so2 = I(f"s_add_u32 {sOE}, {sOE}, {sCH}"); r1, r2 = sOQ, sOE
    else: so = []; so2 = None; r1, r2 = sCM, sCH
    WOD.append([so + [I(f"s_add_u32 m0, {sWWO}, {2304*c}")], I(f"buffer_load_dwordx4 v{vWOa}, {SWO}, {r1} offen{NT['wo']} lds")])
    WOD.append([[so2, I(f"s_add_u32 m0, {sWWO}, {2304*c + 1024 - 64}")], I(f"buffer_load_dwordx4 v{vWOa}, {SWO}, {r1} offen offset:64{NT['wo']} lds")])
    WOD.append([I(f"s_add_u32 m0, {sWWO}, {2304*c + 2048}"), I(f"buffer_load_dword v{vWOb}, {SWO}, {r2} offen lds")])
WOD = link(WOD); sched(WOD, OPT["wo0"], OPT.get("wo1", 112))
TACC = 68; TSEL = 88; TB2 = 172 + 0; vTA, vTB, vPP, vG1, vG2, vOL, vOLR, vO0, vO1, vO2, vOW, vOWH, vWR, vWRH = range(48, 62); OF = 100; TW = 172
poll2_t = f"buffer_load_dword v{vTB}, v{vPP}, {SWS}, {sPP} offen sc1"
PLI = [(m, c) for m in range(4) for c in range(4)] + [(m, c) for m in range(4) for c in range(4, 9)]
PLD = link([[I(f"s_add_u32 {sOL}, {sPLM if c < 8 else sPLH}, {m*4*R + (4096 if 4 <= c < 8 else 0)}") if c % 4 == 0 else None,
             I(f"buffer_load_dwordx4 {a_(APL + 4*(9*m + c), 4)}, v{vPL}, {SWS}, {sOL} offen offset:{1024*(c%4)} sc1")] for m, c in PLI])
for stg, pl in enumerate((OPT["pa"], OPT["pl"])):
    poll2 = I(poll2_t)
    pre = f"""
v_lshlrev_b32 v{vPP}, 5, v{vPA}
v_lshrrev_b32 v{vTA}, 4, v0
v_mul_u32_u24 v{vPL}, {R}, v{vTA}
v_add_u32 v{vPL}, v{vPL}, v{vPA}
""" if stg == 0 else f"s_add_u32 {sPP}, {sPP}, {WS_PF2 - WS_PF}"
    sched(link([[pre, poll16(poll2)]]), pl, pl + 1)
    p2c, p2b = spin_check(poll2_t, f"v_cmp_gt_u32 vcc, 1, v{vTB}")
    sched([[[W(vm=[poll2])], p2c], [None, p2b]], pl + 5, pl + 6)
sched(PLD[:16], OPT["pa"] + 6, OPT["pl"] + 6); sched(PLD[16:], OPT["pl"] + 6, OPT["ld_end"])
gld1 = I(f"buffer_load_dword v{vG1}, v{vTB}, {SWS}, {sG1} offen sc1"); gld2 = I(f"buffer_load_dword v{vG2}, v{vTB}, {SWS}, {sG2} offen sc1")
b2l = [I(f"buffer_load_dwordx2 {v(TB2 + 2*t, 2)}, v{vTB}, {SB2}, {sCM if t < 4 else sCH} offen offset:{32*(t%4)}") for t in range(5)]
misc = [[f"v_and_b32 v{vTB}, 31, v0\nv_lshlrev_b32 v{vTB}, 7, v{vTB}", gld1], [f"v_lshlrev_b32 v{vTB}, 3, v{vPA}", gld2],
        [f"v_lshlrev_b32 v{vTB}, 3, v{vTA}", b2l[0]]] + [[None, x] for x in b2l[1:]] + (code_touch() if OPT.get("ct3", 1) else [])
sched(link(misc), OPT.get("m0", 96), OPT.get("m1", 112))
lim = f2u(2.0 ** 60)
def o_read(h, B): return [f"v_accvgpr_read_b32 v{B+e}, a{AO[h]+e}" for e in (10, 0, 1, 2, 3, 4, 5, 6, 7, 8, 9)] + [f"v_rcp_f32 v{B+11}, v{B+10}"]
def o_check(h, B):
    return [f"v_max3_f32 v{B+12+e}, |v{B+3*e}|, |v{B+3*e+1}|, |v{B+3*e+2}|" for e in range(3)] + [f"v_max_f32 v{B+12}, |v{B+9}|, v{B+12}", f"v_max3_f32 v{B+12}, v{B+12}, v{B+13}, v{B+14}"] + \
           [f"v_fmamk_f32 v{B+12}, v{B+12}, {hex(f2u(2.0**-60))}, v{B+10}", f"v_cmp_ngt_f32 vcc, {hex(f2u(2.0 ** -100) if OPT['force_fb'] >> h & 1 else lim)}, v{B+12}"]
def o_pack(B):
    return [f"v_mul_f32 v{B+11}, v{B+11}, v{vG1}"] + [f"v_mul_f32 v{B+e}, v{B+e}, v{B+11}" for e in range(10)] + \
           [f"v_cvt_pk_bf16_f32 v{B+12+e}, v{B+2*e}, v{B+2*e+1}" for e in range(4)] + [f"v_cvt_pk_bf16_f32 v{B+11}, v{B+8}, v{B+9}"]
def o_store(B, s1, s2): return [I(f"buffer_store_dwordx4 {v(B+12, 4)}, v{vK}, {SWS}, {s1} offen sc1")], line_store(B + 11, s2)
EA = 100; stA = o_store(EA, "s10", "s11")
epiA = stream([W(vm=[gld1]), o_read(0, EA), o_check(0, EA), o_pack(EA)[:4], "s_cmp_eq_u64 vcc, 0", f"s_cselect_b32 s10, s4, {OOB}", f"s_cselect_b32 s11, s5, {OOB}", f"s_cselect_b32 s12, s6, {OOB}",
               f"s_mov_b64 {sMASK}, vcc", o_pack(EA)[4:]])
sched([[None, epiA], [None, stA[0]], [None, stA[1]]], OPT["ea"], OPT["ea"] + 1)
sched([[[W(vm=[stA[1][2]]), I(f"v_mov_b32 v{EA}, 2")], line_store(EA, "s12")]], OPT["fz"], OPT["fz"] + 1)
pollA_t = f"buffer_load_dword v{vTB}, v{vPP}, {SWS}, s9 offen sc1"
for d in range(7):
    arr, frd, fcmp, fbr = sync([KVD[d + 1][-1][1]])
    n = 16 * d + 12
    if arr:
        slots[n][0][3][1].vm += arr[0].vm; slots[n][0][3].append(arr[1])
        slots[n + 1][0][1] += frd
        slots[n + 1][0][3][1].lg += fcmp[0].lg; slots[n + 1][0][3].append(fcmp[1])
    front(slots[n + 2][0][0], fbr)
arr, frd, fcmp, fbr = sync([WOD[-1][1]])
if arr:
    slots[120][0][3][1].vm += arr[0].vm; slots[120][0][3].append(arr[1])
    slots[126][0][0] += frd; slots[126][0][3] += fcmp
slots[127][0][2] += fbr
pos = [slots[n][0][p] for n in range(128) for p in (0, 2, 3)]
cur = 0; prevop = -1
for n in range(128):
    for pre, op in events.get(n, []):
        pre = list(flat([pre])); ops = list(flat([op]))
        k = max(cur, 3 * n, 2)
        okpos = str(OPT["spos" if "store_dwordx4" in ops[0].mn else "lpos" if n < 64 else "lpos2"])
        if not any(y.kind == "vmem" for y in ops) or n >= 120: okpos = "012345"
        while str(k % 6) not in okpos: k += 1
        m = 0
        while m < len(pre) and pre[m].kind == "salu" and not isinstance(pre[m], W): m += 1
        free = []
        for j in range(k - 1, max(prevop, k - 7), -1):
            if pos[j][0] is not None and not any(y.label for y in pos[j]): free = [j] * max(nfree(pos[j])[0], 0) + free
        m = min(m, len(free))
        for y, j in zip(pre[:m], free[len(free) - m:]): pos[j].insert(nfree(pos[j])[1], y)
        rest = pre[m:]
        if rest and all(y.kind == "salu" for y in rest) and not any(y.label for y in pos[k]): pos[k][nfree(pos[k])[1]:nfree(pos[k])[1]] = rest; rest = []
        pos[k] += rest + ops
        prevop = k; cur = k + (OPT["sgap"] if "store_dwordx4" in ops[0].mn else 1)
for n in range(128):
    u, ex = slots[n]
    if n in (1, 17, 33, 37, 49, 61, 65, 73, 81, 89, 93, 113): u[0] += stamp(8)
    em(u[0], ex[0:4], u[1], ex[4:8], u[2], ex[8:12], u[3], ex[12:])
em(f"s_sub_u32 {sFLG}, {sFLG}, {WS_PF2 - WS_OF}", f"s_lshl_b32 s62, {sFH}, 8", f"v_smfmac_f32_32x32x32_bf16 {a_(AO[1],16)}, {a_(AV[1] + 4, 4)}, {v(SB[127%3] + 8, 8)}, v{vIDX}")
em(stamp(9 + 64))

EB = SB[0]; stB = o_store(EB, "s7", "s8"); ost = [stB[1][2]]
pollA = I(pollA_t); pAc, pAb = spin_check(pollA_t, f"v_cmp_gt_u32 vcc, 2, v{vTB}", sleep=OPT["slp"])
em(f"""
v_add_u32 v{vOL}, s62, v{vPA}
v_lshrrev_b32 v{vOLR}, 2, v{vOL}
v_lshl_add_u32 v{vOLR}, v{vTA}, 9, v{vOLR}
v_lshl_add_u32 v{vOL}, v{vTA}, 9, v{vOL}
v_and_b32 v{vWR}, 16, v{vK}
v_mov_b32 v{vWRH}, 0x3f80
v_lshlrev_b32 v{vWRH}, v{vWR}, v{vWRH}
v_lshrrev_b32 v{vWR}, 5, v{vPA}
""", o_read(1, EB), o_check(1, EB), o_pack(EB)[:5], f"s_or_b64 vcc, vcc, {sMASK}", "s_cbranch_scc1 L_fb", "L_fbdone:", o_pack(EB)[5:], stB, poll16(pollA, 2), stamp(32))
def o_loads(e):
    return [[[], I(f"buffer_load_dwordx4 {v(OF + 36*e + 4*ks, 4)}, v{vOL}, {SWS}, s{13 + ks//2} offen offset:{2048*(ks%2)} sc1")] for ks in range(8)] + \
           [[[], I(f"buffer_load_dword v{OF + 36*e + 32 + r}, v{vOLR}, {SWS}, s17 offen offset:{128*r} sc1")] for r in range(4)]
OLD = [o_loads(0), o_loads(1)]
em(W(vm=b2l + [PLD[-1][1]]))
for e in range(10):
    if e < 8: em(f"v_cmp_eq_u32 vcc, {e}, v{vWR}")
    em(f"v_lshlrev_b32 v{TACC + 2*e}, 16, v{TB2 + e}", f"v_and_b32 v{TACC + 2*e + 1}, 0xffff0000, v{TB2 + e}")
    if e < 8: em(f"v_cndmask_b32 v{TSEL + e}, 0, v{vWRH}, vcc")
red = []
for t in range(5):
    for m in range(4):
        for c in ((2 * t, 2 * t + 1) if t < 4 else (8,)):
            red.append([I(f"v_mfma_f32_16x16x32_bf16 {v(TACC + 4*t, 4)}, {v(TSEL + 4*(c%2), 4)}, {a_(APL + 4*(9*m + c), 4)}, {v(TACC + 4*t, 4)}")])
tail_addr = f"""
v_mul_u32_u24 v{vWR}, {WOR}, v{vTA}
v_add_u32 v{vWR}, {WOB}, v{vWR}
v_bfe_u32 v{vTMP}, v0, 2, 2
v_lshl_add_u32 v{vWRH}, v{vTMP}, 4, v{vWR}
v_lshl_add_u32 v{vWR}, v{vTMP}, 6, v{vWR}
v_lshl_add_u32 v{vWR}, v{vL4}, 3, v{vWR}
v_and_b32 v{vTMP}, 1, v0
v_lshl_add_u32 v{vWRH}, v{vTMP}, 3, v{vWRH}
v_sub_f32 v{vG2}, 1.0, v{vG2}
"""
tail_addr2 = f"""
s_mul_i32 s62, {sW}, 2304
v_mul_u32_u24 v{vOW}, 9, v{vPA}
v_lshl_add_u32 v{vOW}, v{vTA}, 3, v{vOW}
v_add_u32 v{vOW}, s62, v{vOW}
s_and_b32 s63, {sJ}, 1
s_xor_b32 s63, s63, 1
s_lshl_b32 s63, s63, 7
v_lshrrev_b32 v{vTMP}, 5, v0
v_lshl_add_u32 v{vOWH}, v{vTMP}, 18, v{vOW}
v_add_u32 v{vOWH}, s63, v{vOWH}
s_and_b32 s63, {sJ}, 1
s_lshl_b32 s63, s63, 4
v_add_u32 v{vOW}, s63, v{vOW}
v_add_u32 v{vK2}, s62, v{vK}
"""
out_addr = []
for n in range(3):
    o = vO0 + n
    out_addr += [f"v_add_u32 v{vTMP}, {64*n}, v0", f"v_mul_u32_u24 v{o}, 7282, v{vTMP}", f"v_lshrrev_b32 v{o}, 16, v{o}", f"v_mul_u32_u24 v{o}, 1008, v{o}", f"v_lshl_add_u32 v{o}, v{vTMP}, 4, v{o}"]
out_addr += [f"v_lshl_add_u32 v{vO2}, v{vTA}, 28, v{vO2}"]
FR = [("a", 4 * k) for k in range(16)] + [("a", 208 + 4 * k) for k in range(12)] + [("a", 64 + 4 * k) for k in range(36)] + [("v", TW + 4 * (k % 20)) for k in range(26)]
FR[84:] = FR[:6]
FO = [x for e in range(2) for x in [(4*e + c, t, s) for c in range(4) for t in range(5) for s in range(2)] + [(8, t, e) for t in range(5)]]
def wo_read(n):
    c, t, s = FO[n]; o = []
    for rho in range(2):
        d = rg(FR[n], 2 * rho, 2)
        if t < 4: o.append(I(f"ds_read_b64_tr_b16 {d}, v{vWR} offset:{2304*c + 1024*(t//2) + 512*s + 256*rho + 32*(t%2)}"))
        else: o.append(I(f"ds_read_b64_tr_b16 {d}, v{vWRH} offset:{2304*c + 2048 + 128*s + 64*rho}"))
    return o
WRD = [wo_read(n) for n in range(90)]
def wo_batch(n0, n1):
    o = []
    for n in range(n0, n1):
        if n >= 6 and n % 2 == 0: o.append(W(lgkm=WRD[n - 5]))
        o += WRD[n]
    return o
poll3_t = f"buffer_load_dword v{vTB}, v{vPP}, {SWS}, {sOP} offen sc1"
poll3 = I(poll3_t)
p3c, p3b = spin_check(poll3_t, f"v_cmp_ne_u32 vcc, 1, v{vTB}", sleep=OPT["slp"])
FK_, PK_ = OPT["fk"], OPT["pk"]
fl = flag()
assert not spread2(red, [tail_addr], 0, 6, 16)
red[FK_ - 1].append(fl[0]); red[FK_] += [W(vm=ost)] + fl[1:] + stamp(32)
red[FK_ + 1] += [W(vm=[pollA])] + pAc; red[FK_ + 3] += pAb + stamp(32)
q = FK_ + 3
for pre, op in OLD[0]:
    red[q] += pre + [op]; q += 1
red[q] += [I(f"v_add_u32 v{vOL}, 18432, v{vOL}"), I(f"v_add_u32 v{vOLR}, 18432, v{vOLR}")]
k = 0
for sl in red[5:]:
    if len(sl) == 1: sl += wo_batch(k, k + 1); k += 1
scale = [f"v_mul_f32 v{TACC+e}, v{TACC+e}, v{vG2}" for e in range(20)]
NPRE = OPT.get("npre", 24)
em(red, wo_batch(k, NPRE), poll16(poll3) if PK_ < 0 else [], scale); k = NPRE
def fin(e):
    o = []
    for q in range(45):
        n = 45 * e + q; c, t, s = FO[n]; ks = 2 * (c % 4) + s if c < 8 else 8
        o.append([I(f"v_mfma_f32_16x16x32_bf16 {v(TACC + 4*t, 4)}, {rg(FR[n], 0, 4)}, {v(OF + 36*e + 4*ks, 4)}, {v(TACC + 4*t, 4)}")])
        o[q][0].deps = WRD[n] + ([OLD[e][ks][1]] if c < 8 else [x[1] for x in OLD[e][8:]])
        if q % 10 == 9: o[q].append(W(vm=[OLD[e][ks + 2][1] if q < 39 else OLD[e][-1][1]], lgkm=WRD[min(n + 10, 45 * e + 44)]))
    return o
fa = fin(0); fb_ = fin(1); BK_ = OPT["bk"]
if PK_ >= 0: fa[PK_] += poll16(poll3)
fa[BK_] += stamp(33) + [W(vm=[poll3])] + p3c; fa[BK_ + 2] += p3b + stamp(33)
for q, (pre, op) in enumerate(OLD[1]): fa[BK_ + 2 + (q * OPT.get("bs", 3)) // 2].append(op)
for q, sl in enumerate(fa):
    if not any(y.kind in ("vmem", "valu") for y in sl):
        sl += WRD[k]; k += 1
        if k % 3 == 0 and nfree(sl)[0] > 0: front(sl, W(lgkm=WRD[k - 5]))
NP2 = max(k, OPT.get("np2", 70))
mid = wo_batch(k, NP2); k = NP2
for q, sl in enumerate(fb_):
    if k < 90: sl += WRD[k]; k += 1
assert not spread2(fb_, [tail_addr2, out_addr], 0, 45, 16)
em(W(vm=[OLD[0][1][1]], lgkm=WRD[9]), fa, mid, W(vm=[OLD[1][1][1]], lgkm=WRD[54]), stamp(32), fb_)
em(stamp(32))
for t in range(5):
    em([f"v_cvt_pk_bf16_f32 v{TACC + 4*t + r}, v{TACC + 4*t + 2*r}, v{TACC + 4*t + 2*r + 1}" for r in range(2)])
    em(f"ds_write_b64 v{vOW if t < 4 else vOWH}, {v(TACC + 4*t, 2)} offset:{32*(t%4)}")
ord_ = [I(f"ds_read_b128 {v(OF + 4*n, 4)}, v{vK2} offset:{1024*n}") for n in range(3)]
em(ord_)
for n in range(3):
    em(W(lgkm=[ord_[n]]), f"buffer_store_dwordx4 {v(OF + 4*n, 4)}, v{vO0 + n}, {SOUT}, {sOUT} offen" + ["", " sc1", " nt", " sc0 sc1"][OPT["outsc"]])
if OPT["stamps"]:
    em("s_waitcnt vmcnt(0)", stamp(127), f"v_mov_b32 v1, 0")
    for k in range(nst[0]): em(f"v_writelane_b32 v1, s{84+k}, {k}")
    em(f"""
s_lshl_b32 s62, s2, 2
s_add_u32 s62, s62, {sW}
s_lshl_b32 s62, s62, 6
s_add_u32 s62, s62, {WS_ST}
v_cmp_gt_u32 vcc, 16, v0
v_lshlrev_b32 v2, 2, v0
v_mov_b32 v3, {OOB}
v_cndmask_b32 v2, v3, v2, vcc
buffer_store_dword v1, v2, {SWS}, s62 offen
""")
if "delay" in OPT:
    em(f"""
s_add_u32 s62, s{84 + OPT['delay']}, 7000
s_mov_b32 {sSP}, 100000
L_dly:
s_memrealtime s[80:81]
s_sub_u32 {sSP}, {sSP}, 1
s_cbranch_scc1 L_end
s_waitcnt lgkmcnt(0)
s_sub_u32 s63, s80, s62
s_cmp_lt_i32 s63, 0
s_cbranch_scc1 L_dly
""")
em("L_end:", "s_endpgm")

FK, FK2, FV, FM = 100, 116, 120, 152
fb = [f"""
L_fb:
v_cmp_gt_u32 vcc, {LOOB}, v{vV}
v_mov_b32 v{FM}, {OOB}
s_mov_b32 s62, {WS_KV}
v_cndmask_b32 v{vV}, v{FM}, v{vV}, vcc
v_mov_b32 v{FM}, 0xff7fffff
v_mov_b32 v{FM+1}, 0xff7fffff
L_fb1:
s_add_u32 s63, s62, 4096
"""]
fbk = [f"buffer_load_dwordx4 {v(FK + 4*r, 4)}, v{vK}, {SWS}, s62 offen offset:{1024*r} sc1" for r in range(4)] + [f"buffer_load_dwordx2 {v(FK2, 2)}, v{vK2}, {SWS}, s63 offen sc1"]
fb += fbk + ["s_waitcnt vmcnt(0)"]
for r in range(4):
    fb += [qk(0, r, SB[0], "0", v(FK + 4 * r, 4), v(FK2, 2)), qk(1, r, SB[1], "0", v(FK + 4 * r, 4), v(FK2, 2)), "s_nop 15",
           maxtree(SB[0], FM, FM), maxtree(SB[1], FM + 1, FM + 1)]
fb += [f"""
s_add_u32 s62, s62, {CH}
s_cmp_lt_u32 s62, {WS_KV + 16*CH}
s_cbranch_scc1 L_fb1
""", set_c(0, FM, FM + 2), set_c(1, FM + 1, FM + 2), [f"v_accvgpr_write_b32 a{e}, 0" for e in range(32)], f"""
s_mov_b32 s62, {WS_KV}
L_fb2:
s_add_u32 s63, s62, 4096
"""] + fbk + [f"s_add_u32 s63, s62, 4608"]
for r in range(4):
    if r == 2: fb += [f"s_add_u32 s63, s63, 2432"]
    fb += [f"buffer_load_dwordx4 {v(FV + 8*r + 4*e, 4)}, v{vV}, {SWS}, s63 offen offset:{1216*(r%2) + 608*e} sc1" for e in range(2)]
fb += ["s_waitcnt vmcnt(0)"]
for r in range(4):
    fb += [qk(0, r, SB[0], v(CR[0], 16), v(FK + 4 * r, 4), v(FK2, 2)), qk(1, r, SB[1], v(CR[1], 16), v(FK + 4 * r, 4), v(FK2, 2)), "s_nop 15"]
    for h in range(2):
        fb += [[f"v_exp_f32 v{SB[h]+e}, v{SB[h]+e}" for e in range(16)], "s_nop 1"]
        fb += [f"v_smfmac_f32_32x32x32_bf16 {a_(AO[h],16)}, {v(FV + 8*r + 4*e, 4)}, {v(SB[h] + 8*e, 8)}, v{vIDX}" for e in range(2)]
fb += [f"""
s_add_u32 s62, s62, {CH}
s_cmp_lt_u32 s62, {WS_KV + 16*CH}
s_cbranch_scc1 L_fb2
s_nop 15
s_cmp_eq_u64 {sMASK}, 0
s_cbranch_scc1 L_fb3
""", o_read(0, EA), "s_nop 0", o_pack(EA), o_store(EA, "s4", "s5"), "s_waitcnt vmcnt(0)", f"v_mov_b32 v{EA}, 2", line_store(EA, "s6"),
"L_fb3:", o_read(1, EB), "s_nop 0", o_pack(EB)[:5], "s_branch L_fbdone"]
OUTL.extend(flat(fb))

resolve_waits(P)
P2 = check(P)
O2 = check(OUTL)
if OPT.get("x_nospin"): P2 = [x for x in P2 if x.mn != "s_cbranch_vccnz"]
if OPT.get("x_nodma"): P2 = [x for x in P2 if not (getattr(x, "dma", False) and any(s in x.text for s in (SW1, SX, SWQ, SEX, SW2)))]
if OPT.get("x_nosync"): P2 = [x for x in P2 if not (x.mn in ("ds_add_u32", "s_cbranch_vccz") or x.text.startswith((f"ds_read_b32 v{vC},", "v_cmp_le_u32 vcc")))]
if OPT.get("x_nobr"): P2 = [x for x in P2 if x.mn != "s_cbranch_vccz"]
if OPT.get("x_notr"): P2 = [x for x in P2 if x.mn != "ds_read_b64_tr_b16"]
if OPT.get("x_nogelu"): P2 = [x for x in P2 if not (x.kind in ("valu", "trans") and x.wr and x.wr[0][0] == "v" and 32 <= x.wr[0][1] < 40 and "cndmask" not in x.mn and "mov" not in x.mn)]
if OPT.get("x_nost"): P2 = [x for x in P2 if not (x.mn == "buffer_store_dwordx4" and f"v{vPS}," in x.text)]
if OPT.get("x_nold"): P2 = [x for x in P2 if not (x.mn == "buffer_load_dwordx4" and x.text.split()[1].startswith("a["))]
if OPT.get("x_nokv"): P2 = [x for x in P2 if not any(x is KVD[d][n][1] for d in range(2, 8) for n in range(5))]
if OPT.get("x_nowo"): P2 = [x for x in P2 if not (getattr(x, "dma", False) and SWO in x.text)]
hdr = open(os.path.join(os.path.dirname(os.path.abspath(__file__)), "..", "cdna_kernels", NAME + ".s.ref")).read().split("; Override launch")[0]
src = hdr + f"""; Generated by gen/gen.py (hand-written generator).
; @launch grid=(256,1,1) block=(256,1,1) lds={LDS_BYTES}
.amdgcn_target "amdgcn-amd-amdhsa--gfx950"
.text
.globl {NAME}_kernel
.p2align 8
.type {NAME}_kernel,@function
{NAME}_kernel:
""" + render(P2) + render(O2) + f"""L_codeend:
    s_endpgm
.section .rodata,"a"
.p2align 6
.amdhsa_kernel {NAME}_kernel
  .amdhsa_next_free_vgpr 512
  .amdhsa_next_free_sgpr 102
  .amdhsa_accum_offset 256
  .amdhsa_group_segment_fixed_size 0
  .amdhsa_kernarg_size 112
  .amdhsa_user_sgpr_count 2
  .amdhsa_user_sgpr_kernarg_segment_ptr 1
  .amdhsa_system_sgpr_workgroup_id_x 1
.end_amdhsa_kernel
"""
open(sys.argv[1], "w").write(src)
print("instrs:", len(P2), len(O2))
```
